```python
import torch

def _softmax(x, axis=-1):
    return torch.softmax(x, dim=axis)
def _gelu(x):
    return torch.nn.functional.gelu(x, approximate="tanh")
def _silu(x):
    return torch.nn.functional.silu(x)
def _sigmoid(x):
    return torch.sigmoid(x)
def _layernorm(x, axis=-1, eps=1e-5):
    m = x.mean(dim=axis, keepdim=True)
    v = x.var(dim=axis, keepdim=True, unbiased=False)
    return (x - m) / torch.sqrt(v + eps)
def _scatter_add(tgt, idx, src, axis=0):
    return tgt.clone().index_add_(axis, idx, src)
def _segment_sum(src, seg, n):
    out = torch.zeros((n,) + src.shape[1:], dtype=src.dtype)
    return out.index_add_(0, seg, src)
def _pad(x, pw):
    flat = tuple(v for pair in reversed(pw) for v in pair)
    return torch.nn.functional.pad(x, flat)

kernel_name = 'parallel_sum__ssm_conv_h3__mixer_token_mlp__prompt'

def setup_inputs():

    _w = (lambda a: (lambda t: t.to(torch.bfloat16) if t.is_floating_point() else t)(torch.as_tensor(a)))
    def _A_setup():
        B, S, D = 1, 2048, 1024
        ks = 4
        return {
            "q": _w((lambda *s: torch.randn(*s, dtype=torch.bfloat16) * 0.05)(B, S, D)),
            "k": _w((lambda *s: torch.randn(*s, dtype=torch.bfloat16) * 0.2)(B, S, D)),
            "v": _w((lambda *s: torch.randn(*s, dtype=torch.bfloat16) * 0.2)(B, S, D)),
            "shift_k": _w((lambda *s: torch.randn(*s, dtype=torch.bfloat16) * 0.2)(D, ks) * 0.5),
            "ssm_k": _w((lambda *s: torch.randn(*s, dtype=torch.bfloat16) * 0.2)(D, S) * (1.0 / S ** 0.5)),
            "ssm_D": _w((lambda *s: torch.randn(*s, dtype=torch.bfloat16) * 0.2)(D)),
        }
    _A_in = _A_setup()

    def _B_setup():
        B, S, D, F = 1, 2048, 1024, 3584
        return {
            "x": _w((lambda *s: torch.randn(*s, dtype=torch.bfloat16) * 0.05)(B, S, D)),
            "w1": _w((lambda *s: torch.randn(*s, dtype=torch.bfloat16) * 0.4)(S, F) * (S ** -0.5)),
            "b1": _w((lambda *s: torch.randn(*s, dtype=torch.bfloat16) * 3.2)(F) * 0.02),
            "w2": _w((lambda *s: torch.randn(*s, dtype=torch.bfloat16) * 0.2)(F, S) * (F ** -0.5)),
            "b2": _w((lambda *s: torch.randn(*s, dtype=torch.bfloat16) * 0.4)(S) * 0.02),
        }
    _B_in = _B_setup()

    return {
        "A_q": _A_in["q"],
        "A_k": _A_in["k"],
        "A_v": _A_in["v"],
        "A_shift_k": _A_in["shift_k"],
        "A_ssm_k": _A_in["ssm_k"],
        "A_ssm_D": _A_in["ssm_D"],
        "B_x": _B_in["x"],
        "B_w1": _B_in["w1"],
        "B_b1": _B_in["b1"],
        "B_w2": _B_in["w2"],
        "B_b2": _B_in["b2"],
    }

def reference(A_q, A_k, A_v, A_shift_k, A_ssm_k, A_ssm_D, B_x, B_w1, B_b1, B_w2, B_b2):
    def _A_ref(q, k, v, shift_k, ssm_k, ssm_D):
        B, S, D = q.shape
        ks = shift_k.shape[-1]
        k_pad = _pad(k, ((0, 0), (ks - 1, 0), (0, 0)))
        k_shift = torch.zeros_like(k)
        for t in range(ks):
            k_shift = k_shift + k_pad[:, t:t + S, :] * shift_k[:, ks - 1 - t][None, None, :]
        kv = k_shift * v
        L = 2 * S
        kv_pad = _pad(kv, ((0, 0), (0, S), (0, 0)))
        kf_pad = _pad(ssm_k, ((0, 0), (0, S)))
        kv_f = (lambda x, axes=(-2,-1): torch.fft.rfft2(x.float(), dim=axes))(kv_pad[:, None, :, :], axes=(1, 2))
        kf_f = (lambda x, axes=(-2,-1): torch.fft.rfft2(x.float(), dim=axes))(kf_pad[:, None, :], axes=(1, 2))
        kf_f = (lambda x, *d: x.permute(*d))(kf_f, 1, 2, 0)
        y_f = kv_f * kf_f[None, :, :, :]
        y = (lambda x, s, axes=(-2,-1): torch.fft.irfft2(x, s=s, dim=axes).to(torch.bfloat16))(y_f, (1, L), axes=(1, 2))[:, 0, :S, :]
        y = y + kv * ssm_D[None, None, :]
        return q * y

    def _B_ref(x, w1, b1, w2, b2):
        B, S, D = x.shape
        h = _layernorm(x, axis=-1)
        u = torch.einsum("bsd,sf->bdf", h, w1) + b1
        u = _gelu(u)
        y = torch.einsum("bdf,fs->bds", u, w2) + b2
        return (lambda x, *d: x.permute(*d))(y, 0, 2, 1)

    x = A_q
    xn = _layernorm(x, axis=-1)
    return x + _A_ref(xn, A_k, A_v, A_shift_k, A_ssm_k, A_ssm_D) + _B_ref(xn, B_w1, B_b1, B_w2, B_b2)
```

```python
class Asm:
    def __init__(self):
        self.lines = []
        self._lbl = 0
    def __call__(self, s):
        for ln in s.strip("\n").split("\n"):
            self.lines.append("    " + ln.strip())
    def label(self, name):
        self.lines.append(name + ":")
    def newlabel(self, p="L"):
        self._lbl += 1
        return f"{p}_{self._lbl}"
    def comment(self, s):
        self.lines.append("    ; " + s)
    def text(self):
        return "\n".join(self.lines) + "\n"

def vr(b, n=1):
    return f"v{b}" if n == 1 else f"v[{b}:{b+n-1}]"
def sr(b, n=1):
    return f"s{b}" if n == 1 else f"s[{b}:{b+n-1}]"
def ar(b, n=1):
    return f"a{b}" if n == 1 else f"a[{b}:{b+n-1}]"

def kernel_header(a, name):
    a.lines.append(f".globl {name}")
    a.lines.append(".p2align 8")
    a.lines.append(f".type {name},@function")
    a.label(name)

def kernel_desc(name, vgpr, sgpr, accum=None):
    if accum is None:
        accum = (vgpr + 3) // 4 * 4
    return f""".amdhsa_kernel {name}
  .amdhsa_next_free_vgpr {vgpr}
  .amdhsa_next_free_sgpr {sgpr}
  .amdhsa_accum_offset {accum}
  .amdhsa_group_segment_fixed_size 0
  .amdhsa_kernarg_size 112
  .amdhsa_user_sgpr_count 2
  .amdhsa_user_sgpr_kernarg_segment_ptr 1
  .amdhsa_system_sgpr_workgroup_id_x 1
.end_amdhsa_kernel
"""

def srd(a, d, base, nbytes, off=0):
    if off:
        a(f"s_add_u32 s{d}, s{base}, {off}")
        a(f"s_addc_u32 s{d+1}, s{base+1}, 0")
    else:
        a(f"s_mov_b32 s{d}, s{base}")
        a(f"s_mov_b32 s{d+1}, s{base+1}")
    a(f"s_mov_b32 s{d+2}, {nbytes}")
    a(f"s_mov_b32 s{d+3}, 0x00020000")
```

```python
import sys
from asmlib import *

S, D, F = 2048, 1024, 3584
MB = 1 << 20
WS_H, WS_STATS, WS_KVT, WS_Y2T, WS_U = 0, 4 * MB, 8 * MB, 12 * MB, 16 * MB

HEADER = open("parallel_sum__ssm_conv_h3__mixer_token_mlp__prompt.s.ref").read().split("; Override launch")[0]

def rnd2(a, x, y, t):
    a(f"v_cvt_pk_bf16_f32 v{t}, v{x}, v{y}")
    a(f"v_lshlrev_b32 v{x}, 16, v{t}")
    a(f"v_and_b32 v{y}, 0xffff0000, v{t}")

def wave_sum(a, v, sdst):
    for sh in (1, 2, 4, 8):
        a("s_nop 1")
        a(f"v_add_f32_dpp v{v}, v{v}, v{v} row_shr:{sh} row_mask:0xf bank_mask:0xf bound_ctrl:0")
    a("s_nop 1")
    a(f"v_add_f32_dpp v{v}, v{v}, v{v} row_bcast:15 row_mask:0xa bank_mask:0xf")
    a("s_nop 1")
    a(f"v_add_f32_dpp v{v}, v{v}, v{v} row_bcast:31 row_mask:0xc bank_mask:0xf")
    a("s_nop 1")
    a(f"v_readlane_b32 s{sdst}, v{v}, 63")
    a("s_nop 3")

def gen_prep(a):
    name = "prep_kernel"
    kernel_header(a, name)
    a("s_cmp_ge_u32 s2, 768")
    a("s_cbranch_scc1 prep_done")
    a("s_load_dwordx4 s[4:7], s[0:1], 0")
    a("s_load_dwordx4 s[8:11], s[0:1], 16")
    a("s_load_dwordx2 s[12:13], s[0:1], 104")
    a("s_cmp_ge_u32 s2, 512")
    a("s_cbranch_scc1 prep_kv")
    a("v_and_b32 v1, 63, v0")
    a("v_lshrrev_b32 v2, 6, v0")
    a("s_lshl_b32 s3, s2, 2")
    a("v_add_u32 v2, s3, v2")
    a("v_lshlrev_b32 v3, 11, v2")
    a("v_lshl_add_u32 v3, v1, 4, v3")
    a("s_waitcnt lgkmcnt(0)")
    srd(a, 16, 4, S * D * 2)
    srd(a, 20, 12, S * D * 2, WS_H)
    srd(a, 24, 12, S * 8, WS_STATS)
    a("buffer_load_dwordx4 v[4:7], v3, s[16:19], 0 offen")
    a("buffer_load_dwordx4 v[8:11], v3, s[16:19], 0 offen offset:1024")
    a("s_waitcnt vmcnt(0)")
    X = 16
    for i in range(8):
        a(f"v_lshlrev_b32 v{X+2*i}, 16, v{4+i}")
        a(f"v_and_b32 v{X+2*i+1}, 0xffff0000, v{4+i}")
    a("s_mov_b32 s30, 0x3a800000")
    a("s_mov_b32 s31, 0x3727c5ac")
    def ln_pass(save):
        T = 32
        a(f"v_add_f32 v12, v{X}, v{X+1}")
        for i in range(2, 16):
            a(f"v_add_f32 v12, v12, v{X+i}")
        wave_sum(a, 12, 28)
        a("v_mov_b32 v13, s28")
        a("v_mul_f32 v13, s30, v13")
        for i in range(16):
            a(f"v_sub_f32 v{T+i}, v{X+i}, v13")
        a(f"v_mul_f32 v12, v{T}, v{T}")
        for i in range(1, 16):
            a(f"v_fmac_f32 v12, v{T+i}, v{T+i}")
        wave_sum(a, 12, 28)
        a("v_mov_b32 v14, s28")
        a("v_mul_f32 v14, s30, v14")
        rnd2(a, 13, 14, 15)
        a("v_add_f32 v14, s31, v14")
        a("v_cvt_pk_bf16_f32 v15, v14, v14")
        a("v_lshlrev_b32 v14, 16, v15")
        a("v_sqrt_f32 v14, v14")
        a("s_nop 0")
        a("v_cvt_pk_bf16_f32 v15, v14, v14")
        a("v_lshlrev_b32 v14, 16, v15")
        a("v_rcp_f32 v15, v14")
        if save:
            a("v_lshlrev_b32 v48, 3, v2")
            a("v_cmp_eq_u32 vcc, 0, v1")
            a("s_and_saveexec_b64 s[26:27], vcc")
            a("v_mov_b32 v50, v13")
            a("v_mov_b32 v51, v14")
            a("buffer_store_dwordx2 v[50:51], v48, s[24:27], 0 offen")
            a("s_mov_b64 exec, s[26:27]")
        for i in range(16):
            a(f"v_sub_f32 v{X+i}, v{X+i}, v13")
        for i in range(0, 16, 2):
            rnd2(a, X + i, X + i + 1, 12)
        for i in range(16):
            a(f"v_mul_f32 v{T+i}, v{X+i}, v15")
            a(f"v_fma_f32 v{X+i}, -v{T+i}, v14, v{X+i}")
            a(f"v_fmac_f32 v{T+i}, v{X+i}, v15")
        for i in range(0, 16, 2):
            a(f"v_cvt_pk_bf16_f32 v{4+i//2}, v{T+i}, v{T+i+1}")
            a(f"v_lshlrev_b32 v{X+i}, 16, v{4+i//2}")
            a(f"v_and_b32 v{X+i+1}, 0xffff0000, v{4+i//2}")
    a.lines = [l.replace("s[24:27], 0 offen", "s[40:43], 0 offen") for l in a.lines]
    srd(a, 40, 12, S * 8, WS_STATS)
    ln_pass(True)
    ln_pass(False)
    a.lines = [l.replace("s[24:27], 0 offen", "s[40:43], 0 offen") for l in a.lines]
    a("buffer_store_dwordx4 v[4:7], v3, s[20:23], 0 offen")
    a("buffer_store_dwordx4 v[8:11], v3, s[20:23], 0 offen offset:1024")
    a("s_endpgm")
    a.label("prep_kv")
    a("s_sub_u32 s3, s2, 512")
    a("s_and_b32 s14, s3, 15")
    a("s_lshr_b32 s15, s3, 4")
    a("v_and_b32 v1, 7, v0")
    a("v_lshrrev_b32 v2, 3, v0")
    a("s_lshl_b32 s14, s14, 7")
    a("s_lshl_b32 s15, s15, 6")
    a("v_lshl_add_u32 v2, v2, 2, s14")
    a("v_lshl_add_u32 v1, v1, 3, s15")
    a("v_lshlrev_b32 v3, 11, v2")
    a("v_lshl_add_u32 v3, v1, 1, v3")
    a("s_waitcnt lgkmcnt(0)")
    srd(a, 16, 6, S * D * 2)
    srd(a, 20, 8, S * D * 2)
    srd(a, 24, 10, D * 8)
    srd(a, 28, 12, D * S * 2, WS_KVT)
    KO = 4
    for i in range(7):
        a(f"v_add_u32 v{KO+i}, {(i-3)*2048 & 0xffffffff:#x}, v3")
    KR = 16
    VR = 44
    WR = 60
    for i in range(7):
        a(f"buffer_load_dwordx4 v[{KR+4*i}:{KR+4*i+3}], v{KO+i}, s[16:19], 0 offen")
    for i in range(4):
        a(f"buffer_load_dwordx4 v[{VR+4*i}:{VR+4*i+3}], v{KO+3+i}, s[20:23], 0 offen")
    a("v_lshlrev_b32 v11, 3, v1")
    for i in range(4):
        a(f"buffer_load_dwordx4 v[{WR+4*i}:{WR+4*i+3}], v11, s[24:27], 0 offen offset:{16*i}")
    a("v_lshlrev_b32 v12, 12, v1")
    a("v_lshl_add_u32 v12, v2, 1, v12")
    a("s_waitcnt vmcnt(0)")
    KF = 80
    VF = 88
    WF = 92
    P = 96
    for j in range(8):
        dw, hi = j >> 1, j & 1
        def unp(dst, src):
            if hi: a(f"v_and_b32 v{dst}, 0xffff0000, v{src}")
            else: a(f"v_lshlrev_b32 v{dst}, 16, v{src}")
        for i in range(7): unp(KF + i, KR + 4 * i + dw)
        for i in range(4): unp(VF + i, VR + 4 * i + dw)
        a(f"v_lshlrev_b32 v{WF}, 16, v{WR+2*j}")
        a(f"v_and_b32 v{WF+1}, 0xffff0000, v{WR+2*j}")
        a(f"v_lshlrev_b32 v{WF+2}, 16, v{WR+2*j+1}")
        a(f"v_and_b32 v{WF+3}, 0xffff0000, v{WR+2*j+1}")
        for t in range(4):
            for r in range(4):
                a(f"v_mul_f32 v{P+4*t+r}, v{KF+r+t}, v{WF+3-t}")
            rnd2(a, P + 4 * t, P + 4 * t + 1, 13)
            rnd2(a, P + 4 * t + 2, P + 4 * t + 3, 13)
        for t in range(1, 4):
            for r in range(4):
                a(f"v_add_f32 v{P+r}, v{P+r}, v{P+4*t+r}")
            rnd2(a, P, P + 1, 13)
            rnd2(a, P + 2, P + 3, 13)
        for r in range(4):
            a(f"v_mul_f32 v{P+r}, v{P+r}, v{VF+r}")
        o = 112 + 2 * (j & 1)
        a(f"v_cvt_pk_bf16_f32 v{o}, v{P}, v{P+1}")
        a(f"v_cvt_pk_bf16_f32 v{o+1}, v{P+2}, v{P+3}")
        a(f"buffer_store_dwordx2 v[{o}:{o+1}], v12, s[28:31], 0 offen")
        a("v_add_u32 v12, 0x1000, v12")
    a.label("prep_done")
    a("s_endpgm")
    return kernel_desc(name, 120, 48)

def gen_gemm1(a, NST=4, compute=True, epilogue=True, nwg=224, only=0, blk=0):
    name = "gemm1_kernel"
    NK = S // 64
    SLOT = 32768
    kernel_header(a, name)
    a(f"s_cmp_ge_u32 s2, {nwg}")
    a("s_cbranch_scc1 g1_done")
    a("s_load_dwordx4 s[4:7], s[0:1], 56")
    a("s_load_dwordx2 s[8:9], s[0:1], 104")
    a("s_and_b32 s10, s2, 7")
    a("s_lshr_b32 s11, s2, 3")
    a("s_mul_i32 s12, s11, 37")
    a("s_lshr_b32 s12, s12, 8")
    a("s_mul_i32 s13, s12, 7")
    a("s_sub_u32 s13, s11, s13")
    a("s_and_b32 s14, s10, 3")
    a("s_mul_i32 s14, s14, 7")
    a("s_add_u32 s14, s14, s13")
    a("s_lshr_b32 s15, s10, 2")
    a("s_lshl_b32 s15, s15, 2")
    a("s_add_u32 s15, s15, s12")
    if blk == 2: a("s_mov_b32 s15, 0")
    a("v_and_b32 v1, 63, v0")
    a("v_lshrrev_b32 v2, 6, v0")
    a("s_nop 0")
    a("v_readfirstlane_b32 s16, v2")
    a("s_waitcnt lgkmcnt(0)")
    srd(a, 20, 4, S * F * 2)
    srd(a, 24, 8, S * D * 2, WS_H)
    srd(a, 28, 8, D * F * 2, WS_U)
    srd(a, 32, 6, F * 2)
    a("s_cmp_ge_u32 s16, 4")
    a("s_cbranch_scc1 g1_loader")
    a("s_and_b32 s17, s16, 1")
    a("s_lshr_b32 s18, s16, 1")
    a("v_lshrrev_b32 v3, 4, v1")
    a("v_bfe_u32 v4, v1, 2, 2")
    a("v_and_b32 v5, 3, v1")
    a("v_and_b32 v6, 1, v3")
    a("v_lshl_or_b32 v6, v6, 2, v4")
    a("v_lshl_add_u32 v7, v3, 3, v4")
    a("v_lshlrev_b32 v7, 8, v7")
    a("v_lshl_add_u32 v7, v5, 3, v7")
    AC, BC = 8, 12
    AA, BA = 16, 20
    a("s_lshl_b32 s19, s17, 2")
    a("s_lshl_b32 s36, s18, 2")
    for i in range(4):
        a(f"s_add_u32 s37, s19, {i}")
        a(f"v_xor_b32 v{AC+i}, s37, v6")
        a(f"v_lshl_add_u32 v{AC+i}, v{AC+i}, 5, v7")
        a(f"s_add_u32 s37, s36, {i}")
        a(f"v_xor_b32 v{BC+i}, s37, v6")
        a(f"v_lshl_add_u32 v{BC+i}, v{BC+i}, 5, v7")
        a(f"v_add_u32 v{BC+i}, 0x4000, v{BC+i}")
        a(f"v_mov_b32 v{AA+i}, v{AC+i}")
        a(f"v_mov_b32 v{BA+i}, v{BC+i}")
    a("s_lshl_b32 s37, s14, 7")
    a("s_lshl_b32 s38, s17, 6")
    a("s_add_u32 s37, s37, s38")
    a("v_lshl_add_u32 v24, v3, 2, s37")
    a("v_lshlrev_b32 v24, 1, v24")
    BI = 40
    for i in range(4):
        a(f"buffer_load_dwordx2 v[{BI+2*i}:{BI+2*i+1}], v24, s[32:35], 0 offen offset:{32*i}")
    FA = [64, 96]; FB = [80, 112]
    ACC = 128
    for i in range(64):
        a(f"v_mov_b32 v{ACC+i}, 0")
    a("s_mov_b32 s39, 0")
    a("s_mov_b32 s40, 0")
    a("s_barrier")
    def reads(buf, ks):
        L = []
        for i in range(4):
            for hh in range(2):
                L.append(f"ds_read_b64_tr_b16 v[{FA[buf]+4*i+2*hh}:{FA[buf]+4*i+2*hh+1}], v{AA+i} offset:{ks*8192+hh*1024}")
            for hh in range(2):
                L.append(f"ds_read_b64_tr_b16 v[{FB[buf]+4*i+2*hh}:{FB[buf]+4*i+2*hh+1}], v{BA+i} offset:{ks*8192+hh*1024}")
        return L
    def mfmas(buf):
        L = []
        for i in range(4):
            for j in range(4):
                c = ACC + 16 * i + 4 * j
                L.append(f"v_mfma_f32_16x16x32_bf16 v[{c}:{c+3}], v[{FA[buf]+4*i}:{FA[buf]+4*i+3}], v[{FB[buf]+4*j}:{FB[buf]+4*j+3}], v[{c}:{c+3}]")
        return L
    def interleave(M, R):
        R = list(R)
        for m in M:
            a(m)
            for _ in range(2):
                if R: a(R.pop(0))
        for r in R: a(r)
    if compute:
        for r in reads(0, 0): a(r)
    a.label("g1_cloop")
    if compute:
        a("s_waitcnt lgkmcnt(0)")
        interleave(mfmas(0), reads(1, 1))
        a("s_waitcnt lgkmcnt(0)")
    a("s_barrier")
    a(f"s_add_u32 s39, s39, {SLOT}")
    a(f"s_cmp_eq_u32 s39, {SLOT*NST}")
    a("s_cselect_b32 s39, 0, s39")
    upd = []
    for i in range(4):
        upd.append(f"v_add_u32 v{AA+i}, s39, v{AC+i}")
        upd.append(f"v_add_u32 v{BA+i}, s39, v{BC+i}")
    if compute:
        M = mfmas(1)
        a(M[0])
        for u in upd: a(u)
        interleave(M[1:], reads(0, 0))
    a("s_add_u32 s40, s40, 1")
    a(f"s_cmp_lt_u32 s40, {NK}")
    a("s_cbranch_scc1 g1_cloop")
    a("s_waitcnt lgkmcnt(0) vmcnt(0)")
    if epilogue:
        a("s_nop 7")
        a("s_lshl_b32 s41, s15, 7")
        a("s_lshl_b32 s42, s18, 6")
        a("s_add_u32 s41, s41, s42")
        a("v_and_b32 v25, 15, v1")
        a("v_add_u32 v25, s41, v25")
        a("s_movk_i32 s42, 7168")
        a("v_mul_lo_u32 v25, v25, s42")
        a("v_add_u32 v25, v25, v24")
        c1 = -2.0 * 0.7978845608028654 * 1.4426950408889634
        c2 = c1 * 0.044715
        import struct
        fb = lambda x: struct.unpack("<I", struct.pack("<f", x))[0]
        a(f"s_mov_b32 s43, {fb(c1):#x}")
        a(f"s_mov_b32 s44, {fb(c2):#x}")
        a("v_mov_b32 v26, s43")
        for i in range(4):
            a(f"v_lshlrev_b32 v48, 16, v{BI+2*i}")
            a(f"v_and_b32 v49, 0xffff0000, v{BI+2*i}")
            a(f"v_lshlrev_b32 v50, 16, v{BI+2*i+1}")
            a(f"v_and_b32 v51, 0xffff0000, v{BI+2*i+1}")
            for j in range(4):
                c = ACC + 16 * i + 4 * j
                rnd2(a, c, c + 1, 27)
                rnd2(a, c + 2, c + 3, 27)
                for r in range(4):
                    a(f"v_add_f32 v{c+r}, v{c+r}, v{48+r}")
                rnd2(a, c, c + 1, 27)
                rnd2(a, c + 2, c + 3, 27)
                for r in range(4):
                    a(f"v_mul_f32 v{52+r}, v{c+r}, v{c+r}")
                for r in range(4):
                    a(f"v_fma_f32 v{52+r}, v{52+r}, s44, v26")
                for r in range(4):
                    a(f"v_mul_f32 v{52+r}, v{52+r}, v{c+r}")
                for r in range(4):
                    a(f"v_exp_f32 v{52+r}, v{52+r}")
                for r in range(4):
                    a(f"v_add_f32 v{52+r}, 1.0, v{52+r}")
                for r in range(4):
                    a(f"v_rcp_f32 v{52+r}, v{52+r}")
                for r in range(4):
                    a(f"v_mul_f32 v{c+r}, v{c+r}, v{52+r}")
                o = 56 + 2 * (j & 1)
                a(f"v_cvt_pk_bf16_f32 v{o}, v{c}, v{c+1}")
                a(f"v_cvt_pk_bf16_f32 v{o+1}, v{c+2}, v{c+3}")
                a(f"v_add_u32 v{60+(j&1)}, {j*16*7168}, v25")
                a(f"buffer_store_dwordx2 v[{o}:{o+1}], v{60+(j&1)}, s[28:31], 0 offen offset:{32*i}")
    a("s_endpgm")
    a.label("g1_loader")
    a("s_sub_u32 s16, s16, 4")
    a("v_lshrrev_b32 v3, 4, v1")
    a("v_and_b32 v4, 15, v1")
    a("v_lshlrev_b32 v5, 1, v3")
    a("v_xor_b32 v5, v5, v4")
    a("v_xor_b32 v6, 8, v5")
    a("s_lshl_b32 s17, s16, 4")
    a("v_add_u32 v3, s17, v3")
    a("s_lshl_b32 s18, s14, 8")
    a(f"s_lshl_b32 s19, s15, {19 if blk else 8}")
    a("s_movk_i32 s36, 7168")
    VA, VB = 8, 12
    for q in range(4):
        c16 = 5 if q < 2 else 6
        a(f"v_add_u32 v7, {4*q}, v3")
        a(f"v_mul_lo_u32 v{VA+q}, v7, s36")
        a(f"v_lshl_add_u32 v{VA+q}, v{c16}, 4, v{VA+q}")
        a(f"v_add_u32 v{VA+q}, s18, v{VA+q}")
        a(f"v_lshlrev_b32 v{VB+q}, {8 if blk else 11}, v7")
        a(f"v_lshl_add_u32 v{VB+q}, v{c16}, 4, v{VB+q}")
        a(f"v_add_u32 v{VB+q}, s19, v{VB+q}")
        if q:
            a(f"v_subrev_u32 v{VA+q}, {1024*q}, v{VA+q}")
            a(f"v_subrev_u32 v{VB+q}, {1024*q}, v{VB+q}")
    a("s_lshl_b32 s37, s16, 12")
    a("s_mov_b32 s38, 0")
    a("s_mov_b32 s39, 0")
    a("s_mov_b32 s40, s37")
    def issue():
        a("s_mov_b32 m0, s40")
        a("s_nop 0")
        for q in range(4):
            if only == 2: a(f"buffer_load_dwordx4 v{VB+q}, s[24:27], s39 offen offset:{1024*q} lds")
            else: a(f"buffer_load_dwordx4 v{VA+q}, s[20:23], s38 offen offset:{1024*q} lds")
        a("s_add_u32 m0, s40, 0x4000")
        a("s_nop 0")
        for q in range(4):
            if only == 1: a(f"buffer_load_dwordx4 v{VA+q}, s[20:23], s38 offen offset:{1024*q} lds")
            else: a(f"buffer_load_dwordx4 v{VB+q}, s[24:27], s39 offen offset:{1024*q} lds")
        a(f"s_add_u32 s38, s38, {64*7168}")
        a(f"s_add_u32 s39, s39, {64*256 if blk else 64*2048}")
        a(f"s_add_u32 s40, s40, {SLOT}")
        a(f"s_add_u32 s41, s37, {SLOT*NST}")
        a("s_cmp_eq_u32 s40, s41")
        a("s_cselect_b32 s40, s37, s40")
    for st in range(NST):
        issue()
    a(f"s_waitcnt vmcnt({8*(NST-1)})")
    a("s_barrier")
    a("s_mov_b32 s42, 0")
    a.label("g1_lloop")
    a(f"s_waitcnt vmcnt({8*(NST-2)})")
    a("s_barrier")
    issue()
    a("s_add_u32 s42, s42, 1")
    a(f"s_cmp_lt_u32 s42, {NK-NST}")
    a("s_cbranch_scc1 g1_lloop")
    for j in range(NST):
        if j <= NST - 2:
            a(f"s_waitcnt vmcnt({8*(NST-2-j)})")
        a("s_barrier")
    a.label("g1_done")
    a("s_endpgm")
    return kernel_desc(name, 192, 48), SLOT * NST

def build(opts):
    a = Asm()
    a.lines.append('.amdgcn_target "amdgcn-amd-amdhsa--gfx950"')
    a.lines.append(".text")
    descs = []
    launches = []
    descs.append(gen_prep(a))
    launches.append("; @launch kernel=prep_kernel grid=(768,1,1) block=(256,1,1) lds=0")
    d, lds = gen_gemm1(a, NST=opts.get("nst", 4), compute=opts.get("compute", True), epilogue=opts.get("epilogue", True), nwg=opts.get("nwg", 224), only=opts.get("only", 0), blk=opts.get("blk", 0))
    descs.append(d)
    launches.append(f"; @launch kernel=gemm1_kernel grid=(224,1,1) block=(512,1,1) lds={lds}")
    txt = HEADER + "\n".join(launches) + "\n" + a.text() + '.section .rodata,"a"\n.p2align 6\n' + ".p2align 6\n".join(descs)
    return txt

if __name__ == "__main__":
    opts = {}
    for arg in sys.argv[2:]:
        k, v = arg.split("=")
        opts[k] = int(v)
    open(sys.argv[1], "w").write(build(opts))
```

```python
import sys, struct
from asmlib import *
from gen import *

fb = lambda x: struct.unpack("<I", struct.pack("<f", x))[0]

XB = 4608
KCP = 4160
def gen_conv(a):
    name = "conv_kernel"
    kernel_header(a, name)
    a(f"s_cmp_ge_u32 s2, {D}")
    a("s_cbranch_scc1 conv_done")
    a("s_load_dwordx4 s[4:7], s[0:1], 32")
    a("s_load_dwordx2 s[8:9], s[0:1], 104")
    a("s_lshl_b32 s3, s2, 12")
    a("v_lshlrev_b32 v1, 6, v0")
    a("s_waitcnt lgkmcnt(0)")
    a("s_add_u32 s12, s4, s3"); a("s_addc_u32 s13, s5, 0"); a("s_movk_i32 s14, 4096"); a("s_mov_b32 s15, 0x00020000")
    a("s_add_u32 s16, s8, s3"); a("s_addc_u32 s17, s9, 0")
    a(f"s_add_u32 s20, s16, {WS_Y2T}"); a("s_addc_u32 s21, s17, 0"); a("s_movk_i32 s22, 4096"); a("s_mov_b32 s23, 0x00020000")
    a(f"s_add_u32 s16, s16, {WS_KVT}"); a("s_addc_u32 s17, s17, 0"); a("s_movk_i32 s18, 4096"); a("s_mov_b32 s19, 0x00020000")
    srd(a, 24, 6, D * 2)
    for i in range(4):
        a(f"buffer_load_dwordx4 v[{16+4*i}:{19+4*i}], v1, s[16:19], 0 offen offset:{16*i}")
    a("v_subrev_u32 v2, 32, v1")
    for i in range(4):
        a(f"v_add_u32 v3, {16*i}, v2")
        a(f"buffer_load_dwordx4 v[{32+4*i}:{35+4*i}], v3, s[12:15], 0 offen")
    a("v_add_u32 v3, 64, v2")
    a("buffer_load_dwordx2 v[48:49], v3, s[12:15], 0 offen")
    a("v_mov_b32 v3, 4064")
    a("buffer_load_dwordx4 v[52:55], v3, s[12:15], 0 offen")
    a("buffer_load_dwordx4 v[56:59], v3, s[12:15], 0 offen offset:16")
    a("v_mov_b32 v60, 0"); a("v_mov_b32 v61, 0")
    a("s_lshl_b32 s28, s2, 1")
    a("v_mov_b32 v4, s28")
    a("buffer_load_ushort v5, v4, s[24:27], 0 offen")
    for i in range(4): a(f"v_mov_b32 v{8+i}, 0")
    a("v_lshlrev_b32 v6, 4, v0")
    a("v_cmp_gt_u32 vcc, 30, v0")
    a("s_and_saveexec_b64 s[30:31], vcc")
    a("ds_write_b128 v6, v[8:11]")
    a("s_mov_b64 exec, s[30:31]")
    a("s_waitcnt vmcnt(0)")
    for gI in range(4):
        for i in range(4):
            a(f"v_alignbit_b32 v{64+4*gI+3-i}, v{16+4*gI+i}, v{16+4*gI+i}, 16")
    a("v_add_u32 v6, 480, v1")
    for gI in range(4):
        a(f"ds_write_b128 v6, v[{64+4*gI}:{67+4*gI}] offset:{16*gI}")
    a(f"v_add_u32 v6, {XB}, v1")
    for r in range(4):
        if r == 0:
            src = 32
        else:
            src = 80 if (r & 1) else 96
            for m in range(16):
                if r & 1:
                    a(f"v_alignbit_b32 v{src+m}, v{32+m+(r>>1)+1}, v{32+m+(r>>1)}, 16")
                else:
                    a(f"v_mov_b32 v{src+m}, v{32+m+1}")
        for q in range(4):
            a(f"ds_write_b128 v6, v[{src+4*q}:{src+4*q+3}] offset:{r*KCP+16*q}")
        if r:
            a("s_nop 1")
    a("v_cmp_eq_u32 vcc, 0, v0")
    a("s_and_saveexec_b64 s[30:31], vcc")
    a(f"v_mov_b32 v6, {XB+4096}")
    for r in range(4):
        if r == 0:
            src = 52
        else:
            src = 112 if (r & 1) else 120
            for m in range(8):
                if r & 1:
                    a(f"v_alignbit_b32 v{src+m}, v{52+m+(r>>1)+1}, v{52+m+(r>>1)}, 16")
                else:
                    a(f"v_mov_b32 v{src+m}, v{52+m+1}")
        for q in range(2):
            a(f"ds_write_b128 v6, v[{src+4*q}:{src+4*q+3}] offset:{r*KCP+16*q}")
        if r:
            a("s_nop 1")
    a("s_mov_b64 exec, s[30:31]")
    a("v_and_b32 v8, 15, v0")
    a("v_lshrrev_b32 v9, 4, v0")
    a("v_add_u32 v10, 1, v8")
    a("v_and_b32 v10, 3, v10")
    a("v_add_u32 v11, 25, v8")
    a("v_sub_u32 v11, v11, v10")
    a("v_lshlrev_b32 v12, 3, v9")
    a("v_sub_u32 v11, v11, v12")
    a("v_lshlrev_b32 v11, 1, v11")
    a(f"s_movk_i32 s28, {KCP}")
    a("v_mul_lo_u32 v10, v10, s28")
    a("v_add_u32 v11, v11, v10")
    a(f"v_add_u32 v11, {XB}, v11")
    a("v_lshlrev_b32 v12, 5, v8")
    a("v_lshl_add_u32 v12, v9, 4, v12")
    ACC = 16
    FA = [64, 128]; FB = [96, 160]
    for i in range(32): a(f"v_mov_b32 v{ACC+i}, 0")
    a("s_waitcnt lgkmcnt(0)")
    def reads(buf, rho):
        L = []
        for P in range(8):
            L.append(f"ds_read_b64 v[{FA[buf]+4*P}:{FA[buf]+4*P+1}], v11 offset:{512*P+64*rho}")
            L.append(f"ds_read_b64 v[{FA[buf]+4*P+2}:{FA[buf]+4*P+3}], v11 offset:{512*P+64*rho+8}")
            L.append(f"ds_read_b128 v[{FB[buf]+4*P}:{FB[buf]+4*P+3}], v12 offset:{512*P-64*rho+448}")
        return L
    def mf(buf):
        L = []
        for P in range(8):
            for Dl in range(8 - P):
                T = P + Dl
                L.append(f"v_mfma_f32_16x16x32_bf16 v[{ACC+4*T}:{ACC+4*T+3}], v[{FA[buf]+4*P}:{FA[buf]+4*P+3}], v[{FB[buf]+4*Dl}:{FB[buf]+4*Dl+3}], v[{ACC+4*T}:{ACC+4*T+3}]")
        return L
    for r in reads(0, 0): a(r)
    for rho in range(8):
        a("s_waitcnt lgkmcnt(0)")
        R = reads((rho + 1) & 1, rho + 1) if rho < 7 else []
        for m in mf(rho & 1):
            a(m)
            if R: a(R.pop(0))
    a("v_lshlrev_b32 v5, 16, v5")
    a("v_and_b32 v10, 1, v9")
    a("v_lshlrev_b32 v10, 3, v10")
    a("v_lshrrev_b32 v13, 1, v9")
    a("v_lshlrev_b32 v13, 4, v13")
    a("v_lshl_add_u32 v13, v8, 5, v13")
    a("v_sub_u32 v13, v13, v10")
    a("v_add_u32 v13, 488, v13")
    a("v_lshlrev_b32 v14, 5, v8")
    a("v_lshl_add_u32 v14, v9, 3, v14")
    for T in range(8):
        a(f"ds_read_b64 v[{64+2*T}:{65+2*T}], v13 offset:{512*T}")
    a("s_nop 7")
    a("s_waitcnt lgkmcnt(0)")
    for T in range(8):
        c = ACC + 4 * T
        a(f"v_and_b32 v80, 0xffff0000, v{65+2*T}")
        a(f"v_lshlrev_b32 v81, 16, v{65+2*T}")
        a(f"v_and_b32 v82, 0xffff0000, v{64+2*T}")
        a(f"v_lshlrev_b32 v83, 16, v{64+2*T}")
        for r in range(4): a(f"v_mul_f32 v{80+r}, v{80+r}, v5")
        rnd2(a, 80, 81, 84); rnd2(a, 82, 83, 84)
        rnd2(a, c, c + 1, 84); rnd2(a, c + 2, c + 3, 84)
        for r in range(4): a(f"v_add_f32 v{c+r}, v{c+r}, v{80+r}")
        o = 86 + 2 * (T & 1)
        a(f"v_cvt_pk_bf16_f32 v{o}, v{c}, v{c+1}")
        a(f"v_cvt_pk_bf16_f32 v{o+1}, v{c+2}, v{c+3}")
        a(f"buffer_store_dwordx2 v[{o}:{o+1}], v14, s[20:23], 0 offen offset:{512*T}")
    a.label("conv_done")
    a("s_endpgm")
    return kernel_desc(name, 192, 40), XB + 4 * KCP

def gen_gemm2(a, NST=6):
    name = "gemm2_kernel"
    NK = F // 64
    SLOT = 24576
    kernel_header(a, name)
    a("s_cmp_ge_u32 s2, 256")
    a("s_cbranch_scc1 g2_done")
    a("s_load_dwordx4 s[4:7], s[0:1], 72")
    a("s_load_dwordx2 s[8:9], s[0:1], 104")
    a("s_load_dwordx2 s[44:45], s[0:1], 0")
    a("s_load_dwordx2 s[46:47], s[0:1], 88")
    a("s_and_b32 s10, s2, 7")
    a("s_lshr_b32 s11, s2, 3")
    a("s_and_b32 s12, s10, 1")
    a("s_lshl_b32 s12, s12, 2")
    a("s_and_b32 s13, s11, 3")
    a("s_add_u32 s14, s12, s13")
    a("s_lshr_b32 s12, s10, 1")
    a("s_lshl_b32 s12, s12, 3")
    a("s_lshr_b32 s13, s11, 2")
    a("s_add_u32 s15, s12, s13")
    a("v_and_b32 v1, 63, v0")
    a("v_lshrrev_b32 v2, 6, v0")
    a("s_nop 0")
    a("v_readfirstlane_b32 s16, v2")
    a("s_waitcnt lgkmcnt(0)")
    srd(a, 20, 8, D * F * 2, WS_U)
    srd(a, 24, 4, F * S * 2)
    a("s_cmp_ge_u32 s16, 4")
    a("s_cbranch_scc1 g2_loader")
    srd(a, 28, 46, S * D * 2)
    srd(a, 32, 44, S * D * 2)
    srd(a, 48, 8, S * 8, WS_STATS)
    srd(a, 52, 8, D * S * 2, WS_Y2T)
    srd(a, 56, 6, S * 2)
    a("s_and_b32 s17, s16, 1")
    a("s_lshr_b32 s18, s16, 1")
    a("v_lshrrev_b32 v3, 4, v1")
    a("v_bfe_u32 v4, v1, 2, 2")
    a("v_and_b32 v5, 3, v1")
    a("v_and_b32 v6, 15, v1")
    a("v_lshrrev_b32 v7, 1, v6")
    a("v_xor_b32 v7, v7, v3")
    a("s_lshl_b32 s19, s17, 13")
    a("v_lshlrev_b32 v8, 7, v6")
    a("v_add_u32 v8, s19, v8")
    a("v_xor_b32 v9, 4, v7")
    a("v_lshl_add_u32 v9, v9, 4, v8")
    a("v_lshl_add_u32 v8, v7, 4, v8")
    a("v_lshrrev_b32 v7, 1, v4")
    a("v_and_b32 v10, 1, v3")
    a("v_lshl_or_b32 v7, v10, 1, v7")
    a("v_lshl_add_u32 v12, v3, 3, v4")
    a("v_lshlrev_b32 v12, 7, v12")
    a("v_lshl_add_u32 v12, v5, 3, v12")
    a("v_add_u32 v12, 0x4000, v12")
    a("s_lshl_b32 s19, s18, 1")
    for j in range(2):
        a(f"s_add_u32 s36, s19, {j}")
        a(f"v_xor_b32 v{10+j}, s36, v7")
        a(f"v_lshl_add_u32 v{10+j}, v{10+j}, 5, v12")
    for i in range(4): a(f"v_mov_b32 v{12+i}, v{8+i}")
    FA = [64, 88]; FB = [80, 104]
    ACC = 128
    for i in range(32): a(f"v_mov_b32 v{ACC+i}, 0")
    a("s_mov_b32 s39, 0")
    a("s_mov_b32 s40, 0")
    a("s_barrier")
    def reads(buf, ks):
        L = []
        for j in range(2):
            for hh in range(2):
                L.append(f"ds_read_b64_tr_b16 v[{FB[buf]+4*j+2*hh}:{FB[buf]+4*j+2*hh+1}], v{14+j} offset:{ks*4096+hh*512}")
        for i in range(4):
            L.append(f"ds_read_b128 v[{FA[buf]+4*i}:{FA[buf]+4*i+3}], v{12+ks} offset:{2048*i}")
        return L
    def mfmas(buf):
        L = []
        for i in range(4):
            for j in range(2):
                c = ACC + 8 * i + 4 * j
                L.append(f"v_mfma_f32_16x16x32_bf16 v[{c}:{c+3}], v[{FA[buf]+4*i}:{FA[buf]+4*i+3}], v[{FB[buf]+4*j}:{FB[buf]+4*j+3}], v[{c}:{c+3}]")
        return L
    def interleave(M, R):
        R = list(R)
        for m in M:
            a(m)
            for _ in range(2):
                if R: a(R.pop(0))
        for r in R: a(r)
    for r in reads(0, 0): a(r)
    a.label("g2_cloop")
    a("s_waitcnt lgkmcnt(0)")
    interleave(mfmas(0), reads(1, 1))
    a("s_waitcnt lgkmcnt(0)")
    a("s_barrier")
    a(f"s_add_u32 s39, s39, {SLOT}")
    a(f"s_cmp_eq_u32 s39, {SLOT*NST}")
    a("s_cselect_b32 s39, 0, s39")
    M = mfmas(1)
    a(M[0])
    for i in range(4): a(f"v_add_u32 v{12+i}, s39, v{8+i}")
    interleave(M[1:], reads(0, 0))
    a("s_add_u32 s40, s40, 1")
    a(f"s_cmp_lt_u32 s40, {NK}")
    a("s_cbranch_scc1 g2_cloop")
    a("s_waitcnt lgkmcnt(0)")
    a("s_lshl_b32 s41, s15, 6")
    a("s_lshl_b32 s42, s18, 5")
    a("s_add_u32 s41, s41, s42")
    a("v_add_u32 v16, s41, v6")
    a("s_lshl_b32 s41, s14, 7")
    a("s_lshl_b32 s42, s17, 6")
    a("s_add_u32 s41, s41, s42")
    a("v_lshl_add_u32 v17, v3, 2, s41")
    a("v_lshlrev_b32 v18, 11, v16")
    a("v_lshl_add_u32 v18, v17, 1, v18")
    a("v_lshlrev_b32 v19, 12, v17")
    a("v_lshl_add_u32 v19, v16, 1, v19")
    a("v_lshlrev_b32 v20, 3, v16")
    a("v_lshlrev_b32 v21, 1, v16")
    for j in range(2):
        a(f"buffer_load_dwordx2 v[{24+2*j}:{25+2*j}], v20, s[48:51], 0 offen offset:{128*j}")
        a(f"buffer_load_ushort v{28+j}, v21, s[56:59], 0 offen offset:{32*j}")
    for j in range(2):
        a(f"v_add_u32 v22, {j*16*2048}, v18")
        for i in range(4):
            a(f"buffer_load_dwordx2 v[{32+4*i+2*j}:{33+4*i+2*j}], v22, s[32:35], 0 offen offset:{32*i}")
    for i in range(4):
        for r in range(4):
            a(f"v_add_u32 v22, {(16*i+r)*4096}, v19")
            for j in range(2):
                a(f"buffer_load_ushort v{64+8*i+4*j+r}, v22, s[52:55], 0 offen offset:{32*j}")
    a("s_waitcnt vmcnt(0)")
    for j in range(2):
        a(f"v_lshlrev_b32 v{28+j}, 16, v{28+j}")
        a(f"v_rcp_f32 v{30+j}, v{25+2*j}")
    for j in range(2):
        m, sd, rc, b2 = 24 + 2 * j, 25 + 2 * j, 30 + j, 28 + j
        a(f"v_add_u32 v22, {j*16*2048}, v18")
        for i in range(4):
            c = ACC + 8 * i + 4 * j
            xr = 32 + 4 * i + 2 * j
            X, T, Q = 96, 100, 104
            a(f"v_lshlrev_b32 v{X}, 16, v{xr}")
            a(f"v_and_b32 v{X+1}, 0xffff0000, v{xr}")
            a(f"v_lshlrev_b32 v{X+2}, 16, v{xr+1}")
            a(f"v_and_b32 v{X+3}, 0xffff0000, v{xr+1}")
            for r in range(4): a(f"v_sub_f32 v{T+r}, v{X+r}, v{m}")
            rnd2(a, T, T + 1, 108); rnd2(a, T + 2, T + 3, 108)
            for r in range(4):
                a(f"v_mul_f32 v{Q+r}, v{T+r}, v{rc}")
                a(f"v_fma_f32 v{T+r}, -v{Q+r}, v{sd}, v{T+r}")
                a(f"v_fmac_f32 v{Q+r}, v{T+r}, v{rc}")
            rnd2(a, Q, Q + 1, 108); rnd2(a, Q + 2, Q + 3, 108)
            for r in range(4):
                a(f"v_lshlrev_b32 v{T+r}, 16, v{64+8*i+4*j+r}")
                a(f"v_mul_f32 v{Q+r}, v{Q+r}, v{T+r}")
            rnd2(a, Q, Q + 1, 108); rnd2(a, Q + 2, Q + 3, 108)
            for r in range(4): a(f"v_add_f32 v{X+r}, v{X+r}, v{Q+r}")
            rnd2(a, X, X + 1, 108); rnd2(a, X + 2, X + 3, 108)
            rnd2(a, c, c + 1, 108); rnd2(a, c + 2, c + 3, 108)
            for r in range(4): a(f"v_add_f32 v{c+r}, v{c+r}, v{b2}")
            rnd2(a, c, c + 1, 108); rnd2(a, c + 2, c + 3, 108)
            for r in range(4): a(f"v_add_f32 v{X+r}, v{X+r}, v{c+r}")
            o = 110 + 2 * (i & 1)
            a(f"v_cvt_pk_bf16_f32 v{o}, v{X}, v{X+1}")
            a(f"v_cvt_pk_bf16_f32 v{o+1}, v{X+2}, v{X+3}")
            a(f"buffer_store_dwordx2 v[{o}:{o+1}], v22, s[28:31], 0 offen offset:{32*i}")
    a("s_endpgm")
    a.label("g2_loader")
    a("s_sub_u32 s16, s16, 4")
    a("v_lshrrev_b32 v3, 3, v1")
    a("v_lshrrev_b32 v4, 4, v1")
    a("v_and_b32 v5, 7, v1")
    a("v_xor_b32 v6, v5, v4")
    a("v_xor_b32 v7, 4, v6")
    a("s_lshl_b32 s17, s14, 7")
    a("s_lshl_b32 s18, s16, 5")
    a("s_add_u32 s17, s17, s18")
    a("v_add_u32 v8, s17, v3")
    a("s_movk_i32 s36, 7168")
    VA = 12
    for q in range(4):
        a(f"v_add_u32 v9, {8*q}, v8")
        a(f"v_mul_lo_u32 v{VA+q}, v9, s36")
        a(f"v_lshl_add_u32 v{VA+q}, v{6+(q&1)}, 4, v{VA+q}")
        if q: a(f"v_subrev_u32 v{VA+q}, {1024*q}, v{VA+q}")
    VB = 16
    a("v_and_b32 v6, 1, v4")
    a("v_lshlrev_b32 v6, 1, v6")
    a("v_xor_b32 v6, v6, v5")
    a("v_xor_b32 v7, 4, v6")
    a("s_lshl_b32 s17, s16, 4")
    a("v_add_u32 v8, s17, v3")
    a("s_lshl_b32 s18, s15, 7")
    for q in range(2):
        a(f"v_add_u32 v9, {8*q}, v8")
        a(f"v_lshlrev_b32 v{VB+q}, 12, v9")
        a(f"v_lshl_add_u32 v{VB+q}, v{6+q}, 4, v{VB+q}")
        a(f"v_add_u32 v{VB+q}, s18, v{VB+q}")
        if q: a(f"v_subrev_u32 v{VB+q}, {1024*q}, v{VB+q}")
    a("s_lshl_b32 s37, s16, 12")
    a("s_lshl_b32 s43, s16, 11")
    a("s_add_u32 s43, s43, 0x4000")
    a("s_mov_b32 s38, 0")
    a("s_mov_b32 s39, 0")
    a("s_mov_b32 s40, 0")
    def issue():
        a("s_add_u32 m0, s40, s37")
        a("s_nop 0")
        for q in range(4):
            a(f"buffer_load_dwordx4 v{VA+q}, s[20:23], s38 offen offset:{1024*q} lds")
        a("s_add_u32 m0, s40, s43")
        a("s_nop 0")
        for q in range(2):
            a(f"buffer_load_dwordx4 v{VB+q}, s[24:27], s39 offen offset:{1024*q} lds")
        a("s_add_u32 s38, s38, 128")
        a(f"s_add_u32 s39, s39, {64*4096}")
        a(f"s_add_u32 s40, s40, {SLOT}")
        a(f"s_cmp_eq_u32 s40, {SLOT*NST}")
        a("s_cselect_b32 s40, 0, s40")
    for st in range(NST): issue()
    a(f"s_waitcnt vmcnt({6*(NST-1)})")
    a("s_barrier")
    a("s_mov_b32 s42, 0")
    a.label("g2_lloop")
    a(f"s_waitcnt vmcnt({6*(NST-2)})")
    a("s_barrier")
    issue()
    a("s_add_u32 s42, s42, 1")
    a(f"s_cmp_lt_u32 s42, {NK-NST}")
    a("s_cbranch_scc1 g2_lloop")
    for j in range(NST):
        if j <= NST - 2:
            a(f"s_waitcnt vmcnt({6*(NST-2-j)})")
        a("s_barrier")
    a.label("g2_done")
    a("s_endpgm")
    return kernel_desc(name, 160, 64), SLOT * NST

def build(opts):
    a = Asm()
    a.lines.append('.amdgcn_target "amdgcn-amd-amdhsa--gfx950"')
    a.lines.append(".text")
    descs = []; launches = []
    descs.append(gen_prep(a))
    launches.append("; @launch kernel=prep_kernel grid=(768,1,1) block=(256,1,1) lds=0")
    d, lds = gen_conv(a)
    descs.append(d)
    launches.append(f"; @launch kernel=conv_kernel grid=(1024,1,1) block=(64,1,1) lds={lds}")
    d, lds = gen_gemm1(a, NST=opts.get("nst", 4))
    descs.append(d)
    launches.append(f"; @launch kernel=gemm1_kernel grid=(224,1,1) block=(512,1,1) lds={lds}")
    d, lds = gen_gemm2(a, NST=opts.get("nst2", 6))
    descs.append(d)
    launches.append(f"; @launch kernel=gemm2_kernel grid=(256,1,1) block=(512,1,1) lds={lds}")
    txt = HEADER + "\n".join(launches) + "\n" + a.text() + '.section .rodata,"a"\n.p2align 6\n' + ".p2align 6\n".join(descs)
    return txt

if __name__ == "__main__":
    opts = {}
    for arg in sys.argv[2:]:
        k, v = arg.split("=")
        opts[k] = int(v)
    open(sys.argv[1], "w").write(build(opts))
```

```python
import sys
from asmlib import *

S, D, F = 2048, 1024, 3584
MB = 1 << 20
WS_H, WS_STATS, WS_KVT, WS_Y2T, WS_U = 0, 4 * MB, 8 * MB, 12 * MB, 16 * MB

HEADER = open("parallel_sum__ssm_conv_h3__mixer_token_mlp__prompt.s.ref").read().split("; Override launch")[0]

def rnd2(a, x, y, t):
    a(f"v_cvt_pk_bf16_f32 v{t}, v{x}, v{y}")
    a(f"v_lshlrev_b32 v{x}, 16, v{t}")
    a(f"v_and_b32 v{y}, 0xffff0000, v{t}")

def wave_sum(a, v, sdst):
    for sh in (1, 2, 4, 8):
        a("s_nop 1")
        a(f"v_add_f32_dpp v{v}, v{v}, v{v} row_shr:{sh} row_mask:0xf bank_mask:0xf bound_ctrl:0")
    a("s_nop 1")
    a(f"v_add_f32_dpp v{v}, v{v}, v{v} row_bcast:15 row_mask:0xa bank_mask:0xf")
    a("s_nop 1")
    a(f"v_add_f32_dpp v{v}, v{v}, v{v} row_bcast:31 row_mask:0xc bank_mask:0xf")
    a("s_nop 1")
    a(f"v_readlane_b32 s{sdst}, v{v}, 63")
    a("s_nop 3")

def gen_prep(a, npf=256, rev=0, pfw2=1, r1=2048):
    name = "prep_kernel"
    kernel_header(a, name)
    a(f"s_cmp_ge_u32 s2, {768+npf}")
    a("s_cbranch_scc1 prep_done")
    if npf:
        a(f"s_cmp_lt_u32 s2, {npf}")
        a("s_cbranch_scc1 prep_pf")
        a(f"s_sub_u32 s2, s2, {npf}")
    a("s_load_dwordx4 s[4:7], s[0:1], 0")
    a("s_load_dwordx4 s[8:11], s[0:1], 16")
    a("s_load_dwordx2 s[12:13], s[0:1], 104")
    a("s_cmp_ge_u32 s2, 512")
    a("s_cbranch_scc1 prep_kv")
    a("v_and_b32 v1, 63, v0")
    a("v_lshrrev_b32 v2, 6, v0")
    a("s_lshl_b32 s3, s2, 2")
    a("v_add_u32 v2, s3, v2")
    a("v_lshlrev_b32 v3, 11, v2")
    a("v_lshl_add_u32 v3, v1, 4, v3")
    a("s_waitcnt lgkmcnt(0)")
    srd(a, 16, 4, S * D * 2)
    srd(a, 20, 12, S * D * 2, WS_H)
    srd(a, 24, 12, S * 8, WS_STATS)
    a("buffer_load_dwordx4 v[4:7], v3, s[16:19], 0 offen")
    a("buffer_load_dwordx4 v[8:11], v3, s[16:19], 0 offen offset:1024")
    a("s_waitcnt vmcnt(0)")
    X = 16
    for i in range(8):
        a(f"v_lshlrev_b32 v{X+2*i}, 16, v{4+i}")
        a(f"v_and_b32 v{X+2*i+1}, 0xffff0000, v{4+i}")
    a("s_mov_b32 s30, 0x3a800000")
    a("s_mov_b32 s31, 0x3727c5ac")
    def ln_pass(save):
        T = 32
        a(f"v_add_f32 v12, v{X}, v{X+1}")
        for i in range(2, 16):
            a(f"v_add_f32 v12, v12, v{X+i}")
        wave_sum(a, 12, 28)
        a("v_mov_b32 v13, s28")
        a("v_mul_f32 v13, s30, v13")
        for i in range(16):
            a(f"v_sub_f32 v{T+i}, v{X+i}, v13")
        a(f"v_mul_f32 v12, v{T}, v{T}")
        for i in range(1, 16):
            a(f"v_fmac_f32 v12, v{T+i}, v{T+i}")
        wave_sum(a, 12, 28)
        a("v_mov_b32 v14, s28")
        a("v_mul_f32 v14, s30, v14")
        rnd2(a, 13, 14, 15)
        a("v_add_f32 v14, s31, v14")
        a("v_cvt_pk_bf16_f32 v15, v14, v14")
        a("v_lshlrev_b32 v14, 16, v15")
        a("v_sqrt_f32 v14, v14")
        a("s_nop 0")
        a("v_cvt_pk_bf16_f32 v15, v14, v14")
        a("v_lshlrev_b32 v14, 16, v15")
        a("v_rcp_f32 v15, v14")
        if save:
            a("v_lshlrev_b32 v48, 3, v2")
            a("v_cmp_eq_u32 vcc, 0, v1")
            a("s_and_saveexec_b64 s[26:27], vcc")
            a("v_mov_b32 v50, v13")
            a("v_mov_b32 v51, v14")
            a("buffer_store_dwordx2 v[50:51], v48, s[24:27], 0 offen")
            a("s_mov_b64 exec, s[26:27]")
        for i in range(16):
            a(f"v_sub_f32 v{X+i}, v{X+i}, v13")
        for i in range(0, 16, 2):
            rnd2(a, X + i, X + i + 1, 12)
        for i in range(16):
            a(f"v_mul_f32 v{T+i}, v{X+i}, v15")
            a(f"v_fma_f32 v{X+i}, -v{T+i}, v14, v{X+i}")
            a(f"v_fmac_f32 v{T+i}, v{X+i}, v15")
        for i in range(0, 16, 2):
            a(f"v_cvt_pk_bf16_f32 v{4+i//2}, v{T+i}, v{T+i+1}")
            a(f"v_lshlrev_b32 v{X+i}, 16, v{4+i//2}")
            a(f"v_and_b32 v{X+i+1}, 0xffff0000, v{4+i//2}")
    a.lines = [l.replace("s[24:27], 0 offen", "s[40:43], 0 offen") for l in a.lines]
    srd(a, 40, 12, S * 8, WS_STATS)
    ln_pass(True)
    ln_pass(False)
    a.lines = [l.replace("s[24:27], 0 offen", "s[40:43], 0 offen") for l in a.lines]
    a("buffer_store_dwordx4 v[4:7], v3, s[20:23], 0 offen")
    a("buffer_store_dwordx4 v[8:11], v3, s[20:23], 0 offen offset:1024")
    a("s_endpgm")
    a.label("prep_kv")
    a("s_sub_u32 s3, s2, 512")
    a("s_and_b32 s14, s3, 15")
    a("s_lshr_b32 s15, s3, 4")
    a("v_and_b32 v1, 7, v0")
    a("v_lshrrev_b32 v2, 3, v0")
    a("s_lshl_b32 s14, s14, 7")
    a("s_lshl_b32 s15, s15, 6")
    a("v_lshl_add_u32 v2, v2, 2, s14")
    a("v_lshl_add_u32 v1, v1, 3, s15")
    a("v_lshlrev_b32 v3, 11, v2")
    a("v_lshl_add_u32 v3, v1, 1, v3")
    a("s_waitcnt lgkmcnt(0)")
    srd(a, 16, 6, S * D * 2)
    srd(a, 20, 8, S * D * 2)
    srd(a, 24, 10, D * 8)
    srd(a, 28, 12, D * S * 2, WS_KVT)
    KO = 4
    for i in range(7):
        a(f"v_add_u32 v{KO+i}, {(i-3)*2048 & 0xffffffff:#x}, v3")
    KR = 16
    VR = 44
    WR = 60
    for i in range(7):
        a(f"buffer_load_dwordx4 v[{KR+4*i}:{KR+4*i+3}], v{KO+i}, s[16:19], 0 offen nt")
    for i in range(4):
        a(f"buffer_load_dwordx4 v[{VR+4*i}:{VR+4*i+3}], v{KO+3+i}, s[20:23], 0 offen nt")
    a("v_lshlrev_b32 v11, 3, v1")
    for i in range(4):
        a(f"buffer_load_dwordx4 v[{WR+4*i}:{WR+4*i+3}], v11, s[24:27], 0 offen offset:{16*i}")
    a("v_lshlrev_b32 v12, 12, v1")
    if rev:
        a("v_xor_b32 v13, 4, v2")
        a("v_lshl_add_u32 v12, v13, 1, v12")
    else:
        a("v_lshl_add_u32 v12, v2, 1, v12")
    a("s_waitcnt vmcnt(0)")
    KF = 80
    VF = 88
    WF = 92
    P = 96
    for j in range(8):
        dw, hi = j >> 1, j & 1
        def unp(dst, src):
            if hi: a(f"v_and_b32 v{dst}, 0xffff0000, v{src}")
            else: a(f"v_lshlrev_b32 v{dst}, 16, v{src}")
        for i in range(7): unp(KF + i, KR + 4 * i + dw)
        for i in range(4): unp(VF + i, VR + 4 * i + dw)
        a(f"v_lshlrev_b32 v{WF}, 16, v{WR+2*j}")
        a(f"v_and_b32 v{WF+1}, 0xffff0000, v{WR+2*j}")
        a(f"v_lshlrev_b32 v{WF+2}, 16, v{WR+2*j+1}")
        a(f"v_and_b32 v{WF+3}, 0xffff0000, v{WR+2*j+1}")
        for t in range(4):
            for r in range(4):
                a(f"v_mul_f32 v{P+4*t+r}, v{KF+r+t}, v{WF+3-t}")
            rnd2(a, P + 4 * t, P + 4 * t + 1, 13)
            rnd2(a, P + 4 * t + 2, P + 4 * t + 3, 13)
        for t in range(1, 4):
            for r in range(4):
                a(f"v_add_f32 v{P+r}, v{P+r}, v{P+4*t+r}")
            rnd2(a, P, P + 1, 13)
            rnd2(a, P + 2, P + 3, 13)
        for r in range(4):
            a(f"v_mul_f32 v{P+r}, v{P+r}, v{VF+r}")
        o = 112 + 2 * (j & 1)
        if rev:
            a(f"v_cvt_pk_bf16_f32 v{o}, v{P+3}, v{P+2}")
            a(f"v_cvt_pk_bf16_f32 v{o+1}, v{P+1}, v{P}")
        else:
            a(f"v_cvt_pk_bf16_f32 v{o}, v{P}, v{P+1}")
            a(f"v_cvt_pk_bf16_f32 v{o+1}, v{P+2}, v{P+3}")
        a(f"buffer_store_dwordx2 v[{o}:{o+1}], v12, s[28:31], 0 offen")
        a("v_add_u32 v12, 0x1000, v12")
    a("s_endpgm")
    if npf:
        a.label("prep_pf")
        a("s_load_dwordx2 s[4:5], s[0:1], 56")
        a(f"s_load_dwordx2 s[6:7], s[0:1], {32 if pfw2 == 2 else 72}")
        per = r1 * F * 2 // npf
        assert per % 4096 == 0
        a(f"s_mul_i32 s3, s2, {per}")
        a("v_lshlrev_b32 v1, 4, v0")
        a("v_add_u32 v1, s3, v1")
        a("s_waitcnt lgkmcnt(0)")
        srd(a, 8, 4, S * F * 2)
        srd(a, 12, 6, D * S * 2 if pfw2 == 2 else S * F * 2)
        n = per // 4096
        if pfw2 == 2:
            a(f"s_mul_i32 s3, s2, {D*S*2//npf}")
            a("v_lshlrev_b32 v2, 4, v0")
            a("v_add_u32 v2, s3, v2")
            for i in range(D * S * 2 // npf // 4096):
                a(f"s_mov_b32 s16, {4096*i}")
                a(f"buffer_load_dwordx4 v[{8+8*(i%8)}:{11+8*(i%8)}], v2, s[12:15], s16 offen")
        for i in range(n):
            a(f"s_mov_b32 s16, {4096*i}")
            a(f"buffer_load_dwordx4 v[{4+8*(i%8)}:{7+8*(i%8)}], v1, s[8:11], s16 offen")
            if pfw2 == 1: a(f"buffer_load_dwordx4 v[{8+8*(i%8)}:{11+8*(i%8)}], v1, s[12:15], s16 offen")
    a.label("prep_done")
    a("s_endpgm")
    return kernel_desc(name, 120, 48)

def gen_gemm1(a, NST=4, compute=True, epilogue=True, nwg=224, only=0, blk=0):
    name = "gemm1_kernel"
    NK = S // 64
    SLOT = 32768
    kernel_header(a, name)
    a(f"s_cmp_ge_u32 s2, {nwg}")
    a("s_cbranch_scc1 g1_done")
    a("s_load_dwordx4 s[4:7], s[0:1], 56")
    a("s_load_dwordx2 s[8:9], s[0:1], 104")
    a("s_and_b32 s10, s2, 7")
    a("s_lshr_b32 s11, s2, 3")
    a("s_mul_i32 s12, s11, 37")
    a("s_lshr_b32 s12, s12, 8")
    a("s_mul_i32 s13, s12, 7")
    a("s_sub_u32 s13, s11, s13")
    a("s_and_b32 s14, s10, 3")
    a("s_mul_i32 s14, s14, 7")
    a("s_add_u32 s14, s14, s13")
    a("s_lshr_b32 s15, s10, 2")
    a("s_lshl_b32 s15, s15, 2")
    a("s_add_u32 s15, s15, s12")
    if blk == 2: a("s_mov_b32 s15, 0")
    if blk == 3:
        a("s_mov_b32 s15, 0"); a("s_mov_b32 s14, 0"); blk = 0
    a("v_and_b32 v1, 63, v0")
    a("v_lshrrev_b32 v2, 6, v0")
    a("s_nop 0")
    a("v_readfirstlane_b32 s16, v2")
    a("s_waitcnt lgkmcnt(0)")
    srd(a, 20, 4, S * F * 2)
    srd(a, 24, 8, S * D * 2, WS_H)
    srd(a, 28, 8, D * F * 2, WS_U)
    srd(a, 32, 6, F * 2)
    a("s_cmp_ge_u32 s16, 4")
    a("s_cbranch_scc1 g1_loader")
    a("s_and_b32 s17, s16, 1")
    a("s_lshr_b32 s18, s16, 1")
    a("v_lshrrev_b32 v3, 4, v1")
    a("v_bfe_u32 v4, v1, 2, 2")
    a("v_and_b32 v5, 3, v1")
    a("v_and_b32 v6, 1, v3")
    a("v_lshl_or_b32 v6, v6, 2, v4")
    a("v_lshl_add_u32 v7, v3, 3, v4")
    a("v_lshlrev_b32 v7, 8, v7")
    a("v_lshl_add_u32 v7, v5, 3, v7")
    AC, BC = 8, 12
    AA, BA = 16, 20
    a("s_lshl_b32 s19, s17, 2")
    a("s_lshl_b32 s36, s18, 2")
    for i in range(4):
        a(f"s_add_u32 s37, s19, {i}")
        a(f"v_xor_b32 v{AC+i}, s37, v6")
        a(f"v_lshl_add_u32 v{AC+i}, v{AC+i}, 5, v7")
        a(f"s_add_u32 s37, s36, {i}")
        a(f"v_xor_b32 v{BC+i}, s37, v6")
        a(f"v_lshl_add_u32 v{BC+i}, v{BC+i}, 5, v7")
        a(f"v_add_u32 v{BC+i}, 0x4000, v{BC+i}")
        a(f"v_mov_b32 v{AA+i}, v{AC+i}")
        a(f"v_mov_b32 v{BA+i}, v{BC+i}")
    a("s_lshl_b32 s37, s14, 7")
    a("s_lshl_b32 s38, s17, 6")
    a("s_add_u32 s37, s37, s38")
    a("v_lshl_add_u32 v24, v3, 2, s37")
    a("v_lshlrev_b32 v24, 1, v24")
    BI = 40
    for i in range(4):
        a(f"buffer_load_dwordx2 v[{BI+2*i}:{BI+2*i+1}], v24, s[32:35], 0 offen offset:{32*i}")
    FA = [64, 96]; FB = [80, 112]
    ACC = 128
    for i in range(64):
        a(f"v_mov_b32 v{ACC+i}, 0")
    a("s_mov_b32 s39, 0")
    a("s_mov_b32 s40, 0")
    a("s_barrier")
    def reads(buf, ks):
        L = []
        for i in range(4):
            for hh in range(2):
                L.append(f"ds_read_b64_tr_b16 v[{FA[buf]+4*i+2*hh}:{FA[buf]+4*i+2*hh+1}], v{AA+i} offset:{ks*8192+hh*1024}")
            for hh in range(2):
                L.append(f"ds_read_b64_tr_b16 v[{FB[buf]+4*i+2*hh}:{FB[buf]+4*i+2*hh+1}], v{BA+i} offset:{ks*8192+hh*1024}")
        return L
    def mfmas(buf):
        L = []
        for i in range(4):
            for j in range(4):
                c = ACC + 16 * i + 4 * j
                L.append(f"v_mfma_f32_16x16x32_bf16 v[{c}:{c+3}], v[{FA[buf]+4*i}:{FA[buf]+4*i+3}], v[{FB[buf]+4*j}:{FB[buf]+4*j+3}], v[{c}:{c+3}]")
        return L
    def interleave(M, R):
        R = list(R)
        for m in M:
            a(m)
            for _ in range(2):
                if R: a(R.pop(0))
        for r in R: a(r)
    if compute:
        for r in reads(0, 0): a(r)
    a.label("g1_cloop")
    if compute:
        a("s_waitcnt lgkmcnt(0)")
        interleave(mfmas(0), reads(1, 1))
        a("s_waitcnt lgkmcnt(0)")
    a("s_barrier")
    a(f"s_add_u32 s39, s39, {SLOT}")
    a(f"s_cmp_eq_u32 s39, {SLOT*NST}")
    a("s_cselect_b32 s39, 0, s39")
    upd = []
    for i in range(4):
        upd.append(f"v_add_u32 v{AA+i}, s39, v{AC+i}")
        upd.append(f"v_add_u32 v{BA+i}, s39, v{BC+i}")
    if compute:
        M = mfmas(1)
        a(M[0])
        for u in upd: a(u)
        interleave(M[1:], reads(0, 0))
    a("s_add_u32 s40, s40, 1")
    a(f"s_cmp_lt_u32 s40, {NK}")
    a("s_cbranch_scc1 g1_cloop")
    a("s_waitcnt lgkmcnt(0) vmcnt(0)")
    if epilogue:
        a("s_nop 7")
        a("s_lshl_b32 s41, s15, 7")
        a("s_lshl_b32 s42, s18, 6")
        a("s_add_u32 s41, s41, s42")
        a("v_and_b32 v25, 15, v1")
        a("v_add_u32 v25, s41, v25")
        a("s_movk_i32 s42, 7168")
        a("v_mul_lo_u32 v25, v25, s42")
        a("v_add_u32 v25, v25, v24")
        c1 = -2.0 * 0.7978845608028654 * 1.4426950408889634
        c2 = c1 * 0.044715
        import struct
        fb = lambda x: struct.unpack("<I", struct.pack("<f", x))[0]
        a(f"s_mov_b32 s43, {fb(c1):#x}")
        a(f"s_mov_b32 s44, {fb(c2):#x}")
        a("v_mov_b32 v26, s43")
        for i in range(4):
            a(f"v_lshlrev_b32 v48, 16, v{BI+2*i}")
            a(f"v_and_b32 v49, 0xffff0000, v{BI+2*i}")
            a(f"v_lshlrev_b32 v50, 16, v{BI+2*i+1}")
            a(f"v_and_b32 v51, 0xffff0000, v{BI+2*i+1}")
            for j in range(4):
                c = ACC + 16 * i + 4 * j
                rnd2(a, c, c + 1, 27)
                rnd2(a, c + 2, c + 3, 27)
                for r in range(4):
                    a(f"v_add_f32 v{c+r}, v{c+r}, v{48+r}")
                rnd2(a, c, c + 1, 27)
                rnd2(a, c + 2, c + 3, 27)
                for r in range(4):
                    a(f"v_mul_f32 v{52+r}, v{c+r}, v{c+r}")
                for r in range(4):
                    a(f"v_fma_f32 v{52+r}, v{52+r}, s44, v26")
                for r in range(4):
                    a(f"v_mul_f32 v{52+r}, v{52+r}, v{c+r}")
                for r in range(4):
                    a(f"v_exp_f32 v{52+r}, v{52+r}")
                for r in range(4):
                    a(f"v_add_f32 v{52+r}, 1.0, v{52+r}")
                for r in range(4):
                    a(f"v_rcp_f32 v{52+r}, v{52+r}")
                for r in range(4):
                    a(f"v_mul_f32 v{c+r}, v{c+r}, v{52+r}")
                o = 56 + 2 * (j & 1)
                a(f"v_cvt_pk_bf16_f32 v{o}, v{c}, v{c+1}")
                a(f"v_cvt_pk_bf16_f32 v{o+1}, v{c+2}, v{c+3}")
                a(f"v_add_u32 v{60+(j&1)}, {j*16*7168}, v25")
                a(f"buffer_store_dwordx2 v[{o}:{o+1}], v{60+(j&1)}, s[28:31], 0 offen offset:{32*i}")
    a("s_endpgm")
    a.label("g1_loader")
    a("s_sub_u32 s16, s16, 4")
    a("v_lshrrev_b32 v3, 4, v1")
    a("v_and_b32 v4, 15, v1")
    a("v_lshlrev_b32 v5, 1, v3")
    a("v_xor_b32 v5, v5, v4")
    a("v_xor_b32 v6, 8, v5")
    a("s_lshl_b32 s17, s16, 4")
    a("v_add_u32 v3, s17, v3")
    a("s_lshl_b32 s18, s14, 8")
    a(f"s_lshl_b32 s19, s15, {19 if blk else 8}")
    a("s_movk_i32 s36, 7168")
    VA, VB = 8, 12
    for q in range(4):
        c16 = 5 if q < 2 else 6
        a(f"v_add_u32 v7, {4*q}, v3")
        a(f"v_mul_lo_u32 v{VA+q}, v7, s36")
        a(f"v_lshl_add_u32 v{VA+q}, v{c16}, 4, v{VA+q}")
        a(f"v_add_u32 v{VA+q}, s18, v{VA+q}")
        a(f"v_lshlrev_b32 v{VB+q}, {8 if blk else 11}, v7")
        a(f"v_lshl_add_u32 v{VB+q}, v{c16}, 4, v{VB+q}")
        a(f"v_add_u32 v{VB+q}, s19, v{VB+q}")
        if q:
            a(f"v_subrev_u32 v{VA+q}, {1024*q}, v{VA+q}")
            a(f"v_subrev_u32 v{VB+q}, {1024*q}, v{VB+q}")
    a("s_lshl_b32 s37, s16, 12")
    a("s_mov_b32 s38, 0")
    a("s_mov_b32 s39, 0")
    a("s_mov_b32 s40, s37")
    def issue():
        a("s_mov_b32 m0, s40")
        a("s_nop 0")
        for q in range(4):
            if only == 2: a(f"buffer_load_dwordx4 v{VB+q}, s[24:27], s39 offen offset:{1024*q} lds")
            else: a(f"buffer_load_dwordx4 v{VA+q}, s[20:23], s38 offen offset:{1024*q} lds")
        a("s_add_u32 m0, s40, 0x4000")
        a("s_nop 0")
        for q in range(4):
            if only == 1: a(f"buffer_load_dwordx4 v{VA+q}, s[20:23], s38 offen offset:{1024*q} lds")
            else: a(f"buffer_load_dwordx4 v{VB+q}, s[24:27], s39 offen offset:{1024*q} lds")
        a(f"s_add_u32 s38, s38, {64*7168}")
        a(f"s_add_u32 s39, s39, {64*256 if blk else 64*2048}")
        a(f"s_add_u32 s40, s40, {SLOT}")
        a(f"s_add_u32 s41, s37, {SLOT*NST}")
        a("s_cmp_eq_u32 s40, s41")
        a("s_cselect_b32 s40, s37, s40")
    for st in range(NST):
        issue()
    a(f"s_waitcnt vmcnt({8*(NST-1)})")
    a("s_barrier")
    a("s_mov_b32 s42, 0")
    a.label("g1_lloop")
    a(f"s_waitcnt vmcnt({8*(NST-2)})")
    a("s_barrier")
    issue()
    a("s_add_u32 s42, s42, 1")
    a(f"s_cmp_lt_u32 s42, {NK-NST}")
    a("s_cbranch_scc1 g1_lloop")
    for j in range(NST):
        if j <= NST - 2:
            a(f"s_waitcnt vmcnt({8*(NST-2-j)})")
        a("s_barrier")
    a.label("g1_done")
    a("s_endpgm")
    return kernel_desc(name, 192, 48), SLOT * NST

def build(opts):
    a = Asm()
    a.lines.append('.amdgcn_target "amdgcn-amd-amdhsa--gfx950"')
    a.lines.append(".text")
    descs = []
    launches = []
    descs.append(gen_prep(a, 0))
    launches.append("; @launch kernel=prep_kernel grid=(768,1,1) block=(256,1,1) lds=0")
    d, lds = gen_gemm1(a, NST=opts.get("nst", 4), compute=opts.get("compute", True), epilogue=opts.get("epilogue", True), nwg=opts.get("nwg", 224), only=opts.get("only", 0), blk=opts.get("blk", 0))
    descs.append(d)
    launches.append(f"; @launch kernel=gemm1_kernel grid=(224,1,1) block=(512,1,1) lds={lds}")
    txt = HEADER + "\n".join(launches) + "\n" + a.text() + '.section .rodata,"a"\n.p2align 6\n' + ".p2align 6\n".join(descs)
    return txt

if __name__ == "__main__":
    opts = {}
    for arg in sys.argv[2:]:
        k, v = arg.split("=")
        opts[k] = int(v)
    open(sys.argv[1], "w").write(build(opts))
```

```python
import sys, struct
from asmlib import *
from gen import *

fb = lambda x: struct.unpack("<I", struct.pack("<f", x))[0]

XB = 4608
KCP = 4160
def gen_conv(a):
    name = "conv_kernel"
    kernel_header(a, name)
    a(f"s_cmp_ge_u32 s2, {D}")
    a("s_cbranch_scc1 conv_done")
    a("s_load_dwordx4 s[4:7], s[0:1], 32")
    a("s_load_dwordx2 s[8:9], s[0:1], 104")
    a("s_lshl_b32 s3, s2, 12")
    a("v_lshlrev_b32 v1, 6, v0")
    a("s_waitcnt lgkmcnt(0)")
    a("s_add_u32 s12, s4, s3"); a("s_addc_u32 s13, s5, 0"); a("s_movk_i32 s14, 4096"); a("s_mov_b32 s15, 0x00020000")
    a("s_add_u32 s16, s8, s3"); a("s_addc_u32 s17, s9, 0")
    a(f"s_add_u32 s20, s16, {WS_Y2T}"); a("s_addc_u32 s21, s17, 0"); a("s_movk_i32 s22, 4096"); a("s_mov_b32 s23, 0x00020000")
    a(f"s_add_u32 s16, s16, {WS_KVT}"); a("s_addc_u32 s17, s17, 0"); a("s_movk_i32 s18, 4096"); a("s_mov_b32 s19, 0x00020000")
    srd(a, 24, 6, D * 2)
    for i in range(4):
        a(f"buffer_load_dwordx4 v[{16+4*i}:{19+4*i}], v1, s[16:19], 0 offen offset:{16*i}")
    a("v_subrev_u32 v2, 32, v1")
    for i in range(4):
        a(f"v_add_u32 v3, {16*i}, v2")
        a(f"buffer_load_dwordx4 v[{32+4*i}:{35+4*i}], v3, s[12:15], 0 offen")
    a("v_add_u32 v3, 64, v2")
    a("buffer_load_dwordx2 v[48:49], v3, s[12:15], 0 offen")
    a("v_mov_b32 v3, 4064")
    a("buffer_load_dwordx4 v[52:55], v3, s[12:15], 0 offen")
    a("buffer_load_dwordx4 v[56:59], v3, s[12:15], 0 offen offset:16")
    a("v_mov_b32 v60, 0"); a("v_mov_b32 v61, 0")
    a("s_lshl_b32 s28, s2, 1")
    a("v_mov_b32 v4, s28")
    a("buffer_load_ushort v5, v4, s[24:27], 0 offen")
    for i in range(4): a(f"v_mov_b32 v{8+i}, 0")
    a("v_lshlrev_b32 v6, 4, v0")
    a("v_cmp_gt_u32 vcc, 30, v0")
    a("s_and_saveexec_b64 s[30:31], vcc")
    a("ds_write_b128 v6, v[8:11]")
    a("s_mov_b64 exec, s[30:31]")
    a("s_waitcnt vmcnt(0)")
    for gI in range(4):
        for i in range(4):
            a(f"v_alignbit_b32 v{64+4*gI+3-i}, v{16+4*gI+i}, v{16+4*gI+i}, 16")
    a("v_add_u32 v6, 480, v1")
    for gI in range(4):
        a(f"ds_write_b128 v6, v[{64+4*gI}:{67+4*gI}] offset:{16*gI}")
    a(f"v_add_u32 v6, {XB}, v1")
    for r in range(4):
        if r == 0:
            src = 32
        else:
            src = 80 if (r & 1) else 96
            for m in range(16):
                if r & 1:
                    a(f"v_alignbit_b32 v{src+m}, v{32+m+(r>>1)+1}, v{32+m+(r>>1)}, 16")
                else:
                    a(f"v_mov_b32 v{src+m}, v{32+m+1}")
        for q in range(4):
            a(f"ds_write_b128 v6, v[{src+4*q}:{src+4*q+3}] offset:{r*KCP+16*q}")
        if r:
            a("s_nop 1")
    a("v_cmp_eq_u32 vcc, 0, v0")
    a("s_and_saveexec_b64 s[30:31], vcc")
    a(f"v_mov_b32 v6, {XB+4096}")
    for r in range(4):
        if r == 0:
            src = 52
        else:
            src = 112 if (r & 1) else 120
            for m in range(8):
                if r & 1:
                    a(f"v_alignbit_b32 v{src+m}, v{52+m+(r>>1)+1}, v{52+m+(r>>1)}, 16")
                else:
                    a(f"v_mov_b32 v{src+m}, v{52+m+1}")
        for q in range(2):
            a(f"ds_write_b128 v6, v[{src+4*q}:{src+4*q+3}] offset:{r*KCP+16*q}")
        if r:
            a("s_nop 1")
    a("s_mov_b64 exec, s[30:31]")
    a("v_and_b32 v8, 15, v0")
    a("v_lshrrev_b32 v9, 4, v0")
    a("v_add_u32 v10, 1, v8")
    a("v_and_b32 v10, 3, v10")
    a("v_add_u32 v11, 25, v8")
    a("v_sub_u32 v11, v11, v10")
    a("v_lshlrev_b32 v12, 3, v9")
    a("v_sub_u32 v11, v11, v12")
    a("v_lshlrev_b32 v11, 1, v11")
    a(f"s_movk_i32 s28, {KCP}")
    a("v_mul_lo_u32 v10, v10, s28")
    a("v_add_u32 v11, v11, v10")
    a(f"v_add_u32 v11, {XB}, v11")
    a("v_lshlrev_b32 v12, 5, v8")
    a("v_lshl_add_u32 v12, v9, 4, v12")
    ACC = 16
    FA = [64, 128]; FB = [96, 160]
    for i in range(32): a(f"v_mov_b32 v{ACC+i}, 0")
    a("s_waitcnt lgkmcnt(0)")
    def reads(buf, rho):
        L = []
        for P in range(8):
            L.append(f"ds_read_b64 v[{FA[buf]+4*P}:{FA[buf]+4*P+1}], v11 offset:{512*P+64*rho}")
            L.append(f"ds_read_b64 v[{FA[buf]+4*P+2}:{FA[buf]+4*P+3}], v11 offset:{512*P+64*rho+8}")
            L.append(f"ds_read_b128 v[{FB[buf]+4*P}:{FB[buf]+4*P+3}], v12 offset:{512*P-64*rho+448}")
        return L
    def mf(buf):
        L = []
        for P in range(8):
            for Dl in range(8 - P):
                T = P + Dl
                L.append(f"v_mfma_f32_16x16x32_bf16 v[{ACC+4*T}:{ACC+4*T+3}], v[{FA[buf]+4*P}:{FA[buf]+4*P+3}], v[{FB[buf]+4*Dl}:{FB[buf]+4*Dl+3}], v[{ACC+4*T}:{ACC+4*T+3}]")
        return L
    for r in reads(0, 0): a(r)
    for rho in range(8):
        a("s_waitcnt lgkmcnt(0)")
        R = reads((rho + 1) & 1, rho + 1) if rho < 7 else []
        for m in mf(rho & 1):
            a(m)
            if R: a(R.pop(0))
    a("v_lshlrev_b32 v5, 16, v5")
    a("v_and_b32 v10, 1, v9")
    a("v_lshlrev_b32 v10, 3, v10")
    a("v_lshrrev_b32 v13, 1, v9")
    a("v_lshlrev_b32 v13, 4, v13")
    a("v_lshl_add_u32 v13, v8, 5, v13")
    a("v_sub_u32 v13, v13, v10")
    a("v_add_u32 v13, 488, v13")
    a("v_lshlrev_b32 v14, 5, v8")
    a("v_lshl_add_u32 v14, v9, 3, v14")
    for T in range(8):
        a(f"ds_read_b64 v[{64+2*T}:{65+2*T}], v13 offset:{512*T}")
    a("s_nop 7")
    a("s_waitcnt lgkmcnt(0)")
    for T in range(8):
        c = ACC + 4 * T
        a(f"v_and_b32 v80, 0xffff0000, v{65+2*T}")
        a(f"v_lshlrev_b32 v81, 16, v{65+2*T}")
        a(f"v_and_b32 v82, 0xffff0000, v{64+2*T}")
        a(f"v_lshlrev_b32 v83, 16, v{64+2*T}")
        for r in range(4): a(f"v_mul_f32 v{80+r}, v{80+r}, v5")
        rnd2(a, 80, 81, 84); rnd2(a, 82, 83, 84)
        rnd2(a, c, c + 1, 84); rnd2(a, c + 2, c + 3, 84)
        for r in range(4): a(f"v_add_f32 v{c+r}, v{c+r}, v{80+r}")
        o = 86 + 2 * (T & 1)
        a(f"v_cvt_pk_bf16_f32 v{o}, v{c}, v{c+1}")
        a(f"v_cvt_pk_bf16_f32 v{o+1}, v{c+2}, v{c+3}")
        a(f"buffer_store_dwordx2 v[{o}:{o+1}], v14, s[20:23], 0 offen offset:{512*T}")
    a.label("conv_done")
    a("s_endpgm")
    return kernel_desc(name, 192, 40), XB + 4 * KCP

def gen_gemm2(a, NST=6, compute=1, only=0, PF=16):
    name = "gemm2_kernel"
    NK = F // 64
    SLOT = 24576
    kernel_header(a, name)
    a("s_cmp_ge_u32 s2, 256")
    a("s_cbranch_scc1 g2_done")
    a("s_load_dwordx4 s[4:7], s[0:1], 72")
    a("s_load_dwordx2 s[8:9], s[0:1], 104")
    a("s_load_dwordx2 s[44:45], s[0:1], 0")
    a("s_load_dwordx2 s[46:47], s[0:1], 88")
    a("s_and_b32 s10, s2, 7")
    a("s_lshr_b32 s11, s2, 3")
    a("s_and_b32 s12, s10, 1")
    a("s_lshl_b32 s12, s12, 2")
    a("s_and_b32 s13, s11, 3")
    a("s_add_u32 s14, s12, s13")
    a("s_lshr_b32 s12, s10, 1")
    a("s_lshl_b32 s12, s12, 3")
    a("s_lshr_b32 s13, s11, 2")
    a("s_add_u32 s15, s12, s13")
    a("v_and_b32 v1, 63, v0")
    a("v_lshrrev_b32 v2, 6, v0")
    a("s_nop 0")
    a("v_readfirstlane_b32 s16, v2")
    a("s_waitcnt lgkmcnt(0)")
    srd(a, 20, 8, D * F * 2, WS_U)
    srd(a, 24, 4, F * S * 2)
    a("s_cmp_ge_u32 s16, 4")
    a("s_cbranch_scc1 g2_loader")
    srd(a, 28, 46, S * D * 2)
    srd(a, 32, 44, S * D * 2)
    srd(a, 48, 8, S * 8, WS_STATS)
    srd(a, 52, 8, D * S * 2, WS_Y2T)
    srd(a, 56, 6, S * 2)
    a("s_and_b32 s17, s16, 1")
    a("s_lshr_b32 s18, s16, 1")
    a("v_lshrrev_b32 v3, 4, v1")
    a("v_bfe_u32 v4, v1, 2, 2")
    a("v_and_b32 v5, 3, v1")
    a("v_and_b32 v6, 15, v1")
    a("v_lshrrev_b32 v7, 1, v6")
    a("v_xor_b32 v7, v7, v3")
    a("s_lshl_b32 s19, s17, 13")
    a("v_lshlrev_b32 v8, 7, v6")
    a("v_add_u32 v8, s19, v8")
    a("v_xor_b32 v9, 4, v7")
    a("v_lshl_add_u32 v9, v9, 4, v8")
    a("v_lshl_add_u32 v8, v7, 4, v8")
    a("v_lshrrev_b32 v7, 1, v4")
    a("v_and_b32 v10, 1, v3")
    a("v_lshl_or_b32 v7, v10, 1, v7")
    a("v_lshl_add_u32 v12, v3, 3, v4")
    a("v_lshlrev_b32 v12, 7, v12")
    a("v_lshl_add_u32 v12, v5, 3, v12")
    a("v_add_u32 v12, 0x4000, v12")
    a("s_lshl_b32 s19, s18, 1")
    for j in range(2):
        a(f"s_add_u32 s36, s19, {j}")
        a(f"v_xor_b32 v{10+j}, s36, v7")
        a(f"v_lshl_add_u32 v{10+j}, v{10+j}, 5, v12")
    for i in range(4): a(f"v_mov_b32 v{12+i}, v{8+i}")
    FA = [64, 88]; FB = [80, 104]
    ACC = 128
    if PF:
        a("s_lshr_b32 s36, s11, 2")
        a("s_lshl_b32 s36, s36, 4")
        a("s_lshl_b32 s37, s14, 7")
        a("s_add_u32 s36, s36, s37")
        a("v_add_u32 v16, s36, v6")
        a("s_movk_i32 s37, 7168")
        a("v_mul_lo_u32 v16, v16, s37")
        a("v_lshl_add_u32 v16, v3, 7, v16")
        a(f"v_add_u32 v16, {PF*128}, v16")
        a("s_and_b32 s36, s11, 3")
        a("s_lshl_b32 s36, s36, 4")
        a("v_lshl_add_u32 v17, v3, 6, v6")
        a("v_add_u32 v17, s36, v17")
        a("v_lshlrev_b32 v17, 12, v17")
        a("s_lshl_b32 s37, s15, 7")
        a(f"s_add_u32 s37, s37, {PF*64*4096}")
        a("v_add_u32 v17, s37, v17")
        for t in range(0, PF // 16 + (1 if PF % 16 else 0)):
            a(f"s_lshl_b32 s36, s16, 2")
            a(f"s_add_u32 s36, s36, {16*t}")
            a(f"s_sub_u32 s36, s36, {PF}")
            a("s_lshl_b32 s37, s36, 7")
            a("s_lshl_b32 s38, s36, 18")
            a("v_add_u32 v18, s37, v16")
            a("v_add_u32 v19, s38, v17")
            a("buffer_load_dword v20, v18, s[20:23], 0 offen")
            a("buffer_load_dword v21, v19, s[24:27], 0 offen")
    for i in range(32): a(f"v_mov_b32 v{ACC+i}, 0")
    a("s_mov_b32 s39, 0")
    a("s_mov_b32 s40, 0")
    a("s_barrier")
    def reads(buf, ks):
        L = []
        for j in range(2):
            for hh in range(2):
                L.append(f"ds_read_b64_tr_b16 v[{FB[buf]+4*j+2*hh}:{FB[buf]+4*j+2*hh+1}], v{14+j} offset:{ks*4096+hh*512}")
        for i in range(4):
            L.append(f"ds_read_b128 v[{FA[buf]+4*i}:{FA[buf]+4*i+3}], v{12+ks} offset:{2048*i}")
        return L
    def mfmas(buf):
        L = []
        for i in range(4):
            for j in range(2):
                c = ACC + 8 * i + 4 * j
                L.append(f"v_mfma_f32_16x16x32_bf16 v[{c}:{c+3}], v[{FA[buf]+4*i}:{FA[buf]+4*i+3}], v[{FB[buf]+4*j}:{FB[buf]+4*j+3}], v[{c}:{c+3}]")
        return L
    def interleave(M, R):
        R = list(R)
        for m in M:
            a(m)
            for _ in range(2):
                if R: a(R.pop(0))
        for r in R: a(r)
    if compute:
        for r in reads(0, 0): a(r)
    a.label("g2_cloop")
    a("s_waitcnt lgkmcnt(0)")
    if compute: interleave(mfmas(0), reads(1, 1))
    a("s_waitcnt lgkmcnt(0)")
    a("s_barrier")
    a(f"s_add_u32 s39, s39, {SLOT}")
    a(f"s_cmp_eq_u32 s39, {SLOT*NST}")
    a("s_cselect_b32 s39, 0, s39")
    M = mfmas(1)
    if compute:
        a(M[0])
        for i in range(4): a(f"v_add_u32 v{12+i}, s39, v{8+i}")
        interleave(M[1:], reads(0, 0))
    if PF:
        a("s_and_b32 s36, s40, 15")
        a("s_lshl_b32 s37, s16, 2")
        a("s_cmp_lg_u32 s36, s37")
        a("s_cbranch_scc1 g2_notouch")
        a("s_lshl_b32 s37, s40, 7")
        a("s_lshl_b32 s38, s40, 18")
        a("buffer_load_dword v20, v16, s[20:23], s37 offen")
        a("buffer_load_dword v21, v17, s[24:27], s38 offen")
        a.label("g2_notouch")
    a("s_add_u32 s40, s40, 1")
    a(f"s_cmp_lt_u32 s40, {NK}")
    a("s_cbranch_scc1 g2_cloop")
    a("s_waitcnt lgkmcnt(0)")
    a("s_lshl_b32 s41, s15, 6")
    a("s_lshl_b32 s42, s18, 5")
    a("s_add_u32 s41, s41, s42")
    a("v_add_u32 v16, s41, v6")
    a("s_lshl_b32 s41, s14, 7")
    a("s_lshl_b32 s42, s17, 6")
    a("s_add_u32 s41, s41, s42")
    a("v_lshl_add_u32 v17, v3, 2, s41")
    a("v_lshlrev_b32 v18, 11, v16")
    a("v_lshl_add_u32 v18, v17, 1, v18")
    a("v_lshlrev_b32 v19, 12, v17")
    a("v_lshl_add_u32 v19, v16, 1, v19")
    a("v_lshlrev_b32 v20, 3, v16")
    a("v_lshlrev_b32 v21, 1, v16")
    for j in range(2):
        a(f"buffer_load_dwordx2 v[{24+2*j}:{25+2*j}], v20, s[48:51], 0 offen offset:{128*j}")
        a(f"buffer_load_ushort v{28+j}, v21, s[56:59], 0 offen offset:{32*j}")
    for j in range(2):
        a(f"v_add_u32 v22, {j*16*2048}, v18")
        for i in range(4):
            a(f"buffer_load_dwordx2 v[{32+4*i+2*j}:{33+4*i+2*j}], v22, s[32:35], 0 offen offset:{32*i}")
    for i in range(4):
        for r in range(4):
            a(f"v_add_u32 v22, {(16*i+r)*4096}, v19")
            for j in range(2):
                a(f"buffer_load_ushort v{64+8*i+4*j+r}, v22, s[52:55], 0 offen offset:{32*j}")
    a("s_waitcnt vmcnt(0)")
    for j in range(2):
        a(f"v_lshlrev_b32 v{28+j}, 16, v{28+j}")
        a(f"v_rcp_f32 v{30+j}, v{25+2*j}")
    for j in range(2):
        m, sd, rc, b2 = 24 + 2 * j, 25 + 2 * j, 30 + j, 28 + j
        a(f"v_add_u32 v22, {j*16*2048}, v18")
        for i in range(4):
            c = ACC + 8 * i + 4 * j
            xr = 32 + 4 * i + 2 * j
            X, T, Q = 96, 100, 104
            a(f"v_lshlrev_b32 v{X}, 16, v{xr}")
            a(f"v_and_b32 v{X+1}, 0xffff0000, v{xr}")
            a(f"v_lshlrev_b32 v{X+2}, 16, v{xr+1}")
            a(f"v_and_b32 v{X+3}, 0xffff0000, v{xr+1}")
            for r in range(4): a(f"v_sub_f32 v{T+r}, v{X+r}, v{m}")
            rnd2(a, T, T + 1, 108); rnd2(a, T + 2, T + 3, 108)
            for r in range(4):
                a(f"v_mul_f32 v{Q+r}, v{T+r}, v{rc}")
                a(f"v_fma_f32 v{T+r}, -v{Q+r}, v{sd}, v{T+r}")
                a(f"v_fmac_f32 v{Q+r}, v{T+r}, v{rc}")
            rnd2(a, Q, Q + 1, 108); rnd2(a, Q + 2, Q + 3, 108)
            for r in range(4):
                a(f"v_lshlrev_b32 v{T+r}, 16, v{64+8*i+4*j+r}")
                a(f"v_mul_f32 v{Q+r}, v{Q+r}, v{T+r}")
            rnd2(a, Q, Q + 1, 108); rnd2(a, Q + 2, Q + 3, 108)
            for r in range(4): a(f"v_add_f32 v{X+r}, v{X+r}, v{Q+r}")
            rnd2(a, X, X + 1, 108); rnd2(a, X + 2, X + 3, 108)
            rnd2(a, c, c + 1, 108); rnd2(a, c + 2, c + 3, 108)
            for r in range(4): a(f"v_add_f32 v{c+r}, v{c+r}, v{b2}")
            rnd2(a, c, c + 1, 108); rnd2(a, c + 2, c + 3, 108)
            for r in range(4): a(f"v_add_f32 v{X+r}, v{X+r}, v{c+r}")
            o = 110 + 2 * (i & 1)
            a(f"v_cvt_pk_bf16_f32 v{o}, v{X}, v{X+1}")
            a(f"v_cvt_pk_bf16_f32 v{o+1}, v{X+2}, v{X+3}")
            a(f"buffer_store_dwordx2 v[{o}:{o+1}], v22, s[28:31], 0 offen offset:{32*i}")
    a("s_endpgm")
    a.label("g2_loader")
    a("s_sub_u32 s16, s16, 4")
    a("v_lshrrev_b32 v3, 3, v1")
    a("v_lshrrev_b32 v4, 4, v1")
    a("v_and_b32 v5, 7, v1")
    a("v_xor_b32 v6, v5, v4")
    a("v_xor_b32 v7, 4, v6")
    a("s_lshl_b32 s17, s14, 7")
    a("s_lshl_b32 s18, s16, 5")
    a("s_add_u32 s17, s17, s18")
    a("v_add_u32 v8, s17, v3")
    a("s_movk_i32 s36, 7168")
    VA = 12
    for q in range(4):
        a(f"v_add_u32 v9, {8*q}, v8")
        a(f"v_mul_lo_u32 v{VA+q}, v9, s36")
        a(f"v_lshl_add_u32 v{VA+q}, v{6+(q&1)}, 4, v{VA+q}")
        if q: a(f"v_subrev_u32 v{VA+q}, {1024*q}, v{VA+q}")
    VB = 16
    a("v_and_b32 v6, 1, v4")
    a("v_lshlrev_b32 v6, 1, v6")
    a("v_xor_b32 v6, v6, v5")
    a("v_xor_b32 v7, 4, v6")
    a("s_lshl_b32 s17, s16, 4")
    a("v_add_u32 v8, s17, v3")
    a("s_lshl_b32 s18, s15, 7")
    for q in range(2):
        a(f"v_add_u32 v9, {8*q}, v8")
        a(f"v_lshlrev_b32 v{VB+q}, 12, v9")
        a(f"v_lshl_add_u32 v{VB+q}, v{6+q}, 4, v{VB+q}")
        a(f"v_add_u32 v{VB+q}, s18, v{VB+q}")
        if q: a(f"v_subrev_u32 v{VB+q}, {1024*q}, v{VB+q}")
    a("s_lshl_b32 s37, s16, 12")
    a("s_lshl_b32 s43, s16, 11")
    a("s_add_u32 s43, s43, 0x4000")
    a("s_mov_b32 s38, 0")
    a("s_mov_b32 s39, 0")
    a("s_mov_b32 s40, 0")
    def issue():
        a("s_add_u32 m0, s40, s37")
        a("s_nop 0")
        for q in range(4):
            if only == 2: a(f"buffer_load_dwordx4 v{VB+(q&1)}, s[24:27], s39 offen offset:{1024*(q&1)} lds")
            else: a(f"buffer_load_dwordx4 v{VA+q}, s[20:23], s38 offen offset:{1024*q} lds")
        a("s_add_u32 m0, s40, s43")
        a("s_nop 0")
        for q in range(2):
            if only == 1: a(f"buffer_load_dwordx4 v{VA+q}, s[20:23], s38 offen offset:{1024*q} lds")
            else: a(f"buffer_load_dwordx4 v{VB+q}, s[24:27], s39 offen offset:{1024*q} lds")
        a("s_add_u32 s38, s38, 128")
        a(f"s_add_u32 s39, s39, {64*4096}")
        a(f"s_add_u32 s40, s40, {SLOT}")
        a(f"s_cmp_eq_u32 s40, {SLOT*NST}")
        a("s_cselect_b32 s40, 0, s40")
    for st in range(NST): issue()
    a(f"s_waitcnt vmcnt({6*(NST-1)})")
    a("s_barrier")
    a("s_mov_b32 s42, 0")
    a.label("g2_lloop")
    a(f"s_waitcnt vmcnt({6*(NST-2)})")
    a("s_barrier")
    issue()
    a("s_add_u32 s42, s42, 1")
    a(f"s_cmp_lt_u32 s42, {NK-NST}")
    a("s_cbranch_scc1 g2_lloop")
    for j in range(NST):
        if j <= NST - 2:
            a(f"s_waitcnt vmcnt({6*(NST-2-j)})")
        a("s_barrier")
    a.label("g2_done")
    a("s_endpgm")
    return kernel_desc(name, 160, 64), SLOT * NST

def build(opts):
    a = Asm()
    a.lines.append('.amdgcn_target "amdgcn-amd-amdhsa--gfx950"')
    a.lines.append(".text")
    descs = []; launches = []
    npf = opts.get("npf", 256)
    descs.append(gen_prep(a, npf))
    launches.append(f"; @launch kernel=prep_kernel grid=({768+npf},1,1) block=(256,1,1) lds=0")
    d, lds = gen_conv(a)
    descs.append(d)
    launches.append(f"; @launch kernel=conv_kernel grid=(1024,1,1) block=(64,1,1) lds={lds}")
    d, lds = gen_gemm1(a, NST=opts.get("nst", 4))
    descs.append(d)
    launches.append(f"; @launch kernel=gemm1_kernel grid=(224,1,1) block=(512,1,1) lds={lds}")
    d, lds = gen_gemm2(a, NST=opts.get("nst2", 6), compute=opts.get("compute2", 1), only=opts.get("only2", 0), PF=opts.get("pf2", 16))
    descs.append(d)
    launches.append(f"; @launch kernel=gemm2_kernel grid=(256,1,1) block=(512,1,1) lds={lds}")
    txt = HEADER + "\n".join(launches) + "\n" + a.text() + '.section .rodata,"a"\n.p2align 6\n' + ".p2align 6\n".join(descs)
    return txt

if __name__ == "__main__":
    opts = {}
    for arg in sys.argv[2:]:
        k, v = arg.split("=")
        opts[k] = int(v)
    open(sys.argv[1], "w").write(build(opts))
```

```python
import sys, struct
from asmlib import *
from gen import rnd2, wave_sum, gen_prep, HEADER, S, D, F, MB, WS_H, WS_STATS, WS_KVT, WS_Y2T, WS_U
from gen2 import gen_conv

fb = lambda x: struct.unpack("<I", struct.pack("<f", x))[0]

def interleave(a, M, R, per=2):
    R = list(R)
    for m in M:
        a(m)
        for _ in range(per):
            if R: a(R.pop(0))
    for r in R: a(r)

def gelu_epi(a, accs, BI, vaddr, srd_u, tmp):
    B = tmp
    T = tmp + 8
    O = tmp + 16
    C1 = tmp + 24; ONE = tmp + 26
    a(f"v_mov_b32 v{C1}, s42"); a(f"v_mov_b32 v{C1+1}, s42")
    a(f"v_mov_b32 v{ONE}, 1.0"); a(f"v_mov_b32 v{ONE+1}, 1.0")
    for k in range(4):
        a(f"v_lshlrev_b32 v{B+2*k}, 16, v{BI+k}")
        a(f"v_and_b32 v{B+2*k+1}, 0xffff0000, v{BI+k}")
    for j in range(4):
        o = O + 4 * (j & 1)
        for ii in range(2):
            c = accs[ii][j]
            t = T + 4 * ii
            a(f"v_cvt_pk_bf16_f32 v{t}, v{c}, v{c+1}")
            a(f"v_cvt_pk_bf16_f32 v{t+1}, v{c+2}, v{c+3}")
            a(f"v_lshlrev_b32 v{c}, 16, v{t}")
            a(f"v_and_b32 v{c+1}, 0xffff0000, v{t}")
            a(f"v_lshlrev_b32 v{c+2}, 16, v{t+1}")
            a(f"v_and_b32 v{c+3}, 0xffff0000, v{t+1}")
            a(f"v_pk_add_f32 v[{c}:{c+1}], v[{c}:{c+1}], v[{B+4*ii}:{B+4*ii+1}]")
            a(f"v_pk_add_f32 v[{c+2}:{c+3}], v[{c+2}:{c+3}], v[{B+4*ii+2}:{B+4*ii+3}]")
            a(f"v_cvt_pk_bf16_f32 v{t}, v{c}, v{c+1}")
            a(f"v_cvt_pk_bf16_f32 v{t+1}, v{c+2}, v{c+3}")
            a(f"v_lshlrev_b32 v{c}, 16, v{t}")
            a(f"v_and_b32 v{c+1}, 0xffff0000, v{t}")
            a(f"v_lshlrev_b32 v{c+2}, 16, v{t+1}")
            a(f"v_and_b32 v{c+3}, 0xffff0000, v{t+1}")
            for p in range(2):
                a(f"v_pk_mul_f32 v[{t+2*p}:{t+2*p+1}], v[{c+2*p}:{c+2*p+1}], v[{c+2*p}:{c+2*p+1}]")
            for p in range(2):
                a(f"v_pk_fma_f32 v[{t+2*p}:{t+2*p+1}], v[{t+2*p}:{t+2*p+1}], s[44:45], v[{C1}:{C1+1}]")
            for p in range(2):
                a(f"v_pk_mul_f32 v[{t+2*p}:{t+2*p+1}], v[{t+2*p}:{t+2*p+1}], v[{c+2*p}:{c+2*p+1}]")
            for r in range(4):
                a(f"v_exp_f32 v{t+r}, v{t+r}")
            a("s_nop 0")
            for p in range(2):
                a(f"v_pk_add_f32 v[{t+2*p}:{t+2*p+1}], v[{t+2*p}:{t+2*p+1}], v[{ONE}:{ONE+1}]")
            for r in range(4):
                a(f"v_rcp_f32 v{t+r}, v{t+r}")
            a("s_nop 0")
            for p in range(2):
                a(f"v_pk_mul_f32 v[{c+2*p}:{c+2*p+1}], v[{c+2*p}:{c+2*p+1}], v[{t+2*p}:{t+2*p+1}]")
            a(f"v_cvt_pk_bf16_f32 v{o+2*ii}, v{c}, v{c+1}")
            a(f"v_cvt_pk_bf16_f32 v{o+2*ii+1}, v{c+2}, v{c+3}")
        a(f"buffer_store_dwordx4 v[{o}:{o+3}], v{vaddr}, {srd_u}, 0 offen offset:{1024*j}")

def gen_gemm1(a, NST=4):
    name = "gemm1_kernel"
    NK = S // 64
    SLOT = 32768
    kernel_header(a, name)
    a("s_cmp_ge_u32 s2, 224")
    a("s_cbranch_scc1 g1_done")
    a("s_load_dwordx4 s[4:7], s[0:1], 56")
    a("s_load_dwordx2 s[8:9], s[0:1], 104")
    a("s_and_b32 s10, s2, 7")
    a("s_lshr_b32 s11, s2, 3")
    a("s_mul_i32 s12, s11, 37")
    a("s_lshr_b32 s12, s12, 8")
    a("s_mul_i32 s13, s12, 7")
    a("s_sub_u32 s13, s11, s13")
    a("s_and_b32 s14, s10, 3")
    a("s_mul_i32 s14, s14, 7")
    a("s_add_u32 s14, s14, s13")
    a("s_lshr_b32 s15, s10, 2")
    a("s_lshl_b32 s15, s15, 2")
    a("s_add_u32 s15, s15, s12")
    a("v_and_b32 v1, 63, v0")
    a("v_lshrrev_b32 v2, 6, v0")
    a("s_nop 0")
    a("v_readfirstlane_b32 s16, v2")
    a("s_waitcnt lgkmcnt(0)")
    srd(a, 20, 4, S * F * 2)
    srd(a, 24, 8, S * D * 2, WS_H)
    srd(a, 28, 8, D * F * 2, WS_U)
    srd(a, 32, 6, F * 2)
    a("s_and_b32 s17, s16, 1")
    a("s_bfe_u32 s18, s16, 0x10001")
    a("s_lshr_b32 s19, s16, 2")
    a("v_lshrrev_b32 v3, 4, v1")
    a("s_lshl_b32 s37, s14, 7")
    a("s_lshl_b32 s38, s17, 6")
    a("s_add_u32 s37, s37, s38")
    a("s_lshl_b32 s38, s19, 5")
    a("s_add_u32 s37, s37, s38")
    a("v_lshl_add_u32 v24, v3, 2, s37")
    a("v_lshlrev_b32 v24, 1, v24")
    BI = 28
    for ii in range(2):
        a(f"buffer_load_dwordx2 v[{BI+2*ii}:{BI+2*ii+1}], v24, s[32:35], 0 offen offset:{32*ii}")
    a("s_mul_i32 s37, s15, 112")
    a("s_lshl_b32 s38, s14, 2")
    a("s_add_u32 s37, s37, s38")
    a("s_lshl_b32 s38, s17, 1")
    a("s_add_u32 s37, s37, s38")
    a("s_add_u32 s37, s37, s19")
    a("s_lshl_b32 s37, s37, 3")
    a("s_lshl_b32 s38, s18, 2")
    a("s_add_u32 s37, s37, s38")
    a("s_lshl_b32 s37, s37, 10")
    a("v_lshl_add_u32 v25, v1, 4, s37")
    a("s_and_b32 s37, s16, 3")
    a("s_lshl_b32 s37, s37, 13")
    a("v_lshl_add_u32 v26, v1, 4, s37")
    c1 = -2.0 * 0.7978845608028654 * 1.4426950408889634
    c2 = c1 * 0.044715
    a(f"s_mov_b32 s42, {fb(c1):#x}"); a(f"s_mov_b32 s43, {fb(c1):#x}")
    a(f"s_mov_b32 s44, {fb(c2):#x}"); a(f"s_mov_b32 s45, {fb(c2):#x}")
    a("s_cmp_ge_u32 s16, 4")
    a("s_cbranch_scc1 g1_loader")
    a("v_bfe_u32 v4, v1, 2, 2")
    a("v_and_b32 v5, 3, v1")
    a("v_and_b32 v6, 1, v3")
    a("v_lshl_or_b32 v6, v6, 2, v4")
    a("v_lshl_add_u32 v7, v3, 3, v4")
    a("v_lshlrev_b32 v7, 8, v7")
    a("v_lshl_add_u32 v7, v5, 3, v7")
    AC, BC = 8, 12
    AA, BA = 16, 20
    a("s_lshl_b32 s19, s17, 2")
    a("s_lshl_b32 s36, s18, 2")
    for i in range(4):
        a(f"s_add_u32 s37, s19, {i}")
        a(f"v_xor_b32 v{AC+i}, s37, v6")
        a(f"v_lshl_add_u32 v{AC+i}, v{AC+i}, 5, v7")
        a(f"s_add_u32 s37, s36, {i}")
        a(f"v_xor_b32 v{BC+i}, s37, v6")
        a(f"v_lshl_add_u32 v{BC+i}, v{BC+i}, 5, v7")
        a(f"v_add_u32 v{BC+i}, 0x4000, v{BC+i}")
        a(f"v_mov_b32 v{AA+i}, v{AC+i}")
        a(f"v_mov_b32 v{BA+i}, v{BC+i}")
    FA = [32, 64]; FB = [48, 80]
    ACC = 96
    for i in range(64):
        a(f"v_mov_b32 v{ACC+i}, 0")
    a("s_mov_b32 s39, 0")
    a("s_mov_b32 s40, 0")
    a("s_barrier")
    def reads(buf, ks):
        L = []
        for i in range(4):
            for hh in range(2):
                L.append(f"ds_read_b64_tr_b16 v[{FA[buf]+4*i+2*hh}:{FA[buf]+4*i+2*hh+1}], v{AA+i} offset:{ks*8192+hh*1024}")
            for hh in range(2):
                L.append(f"ds_read_b64_tr_b16 v[{FB[buf]+4*i+2*hh}:{FB[buf]+4*i+2*hh+1}], v{BA+i} offset:{ks*8192+hh*1024}")
        return L
    def mfmas(buf):
        L = []
        for i in range(4):
            for j in range(4):
                c = ACC + 16 * i + 4 * j
                L.append(f"v_mfma_f32_16x16x32_bf16 v[{c}:{c+3}], v[{FA[buf]+4*i}:{FA[buf]+4*i+3}], v[{FB[buf]+4*j}:{FB[buf]+4*j+3}], v[{c}:{c+3}]")
        return L
    for r in reads(0, 0): a(r)
    a.label("g1_cloop")
    a("s_waitcnt lgkmcnt(0)")
    interleave(a, mfmas(0), reads(1, 1))
    a("s_waitcnt lgkmcnt(0)")
    a("s_barrier")
    a(f"s_add_u32 s39, s39, {SLOT}")
    a(f"s_cmp_eq_u32 s39, {SLOT*NST}")
    a("s_cselect_b32 s39, 0, s39")
    M = mfmas(1)
    a(M[0])
    for i in range(4):
        a(f"v_add_u32 v{AA+i}, s39, v{AC+i}")
        a(f"v_add_u32 v{BA+i}, s39, v{BC+i}")
    interleave(a, M[1:], reads(0, 0))
    a("s_add_u32 s40, s40, 1")
    a(f"s_cmp_lt_u32 s40, {NK}")
    a("s_cbranch_scc1 g1_cloop")
    a("s_waitcnt lgkmcnt(0)")
    a("s_nop 7")
    for q in range(8):
        a(f"ds_write_b128 v26, v[{ACC+32+4*q}:{ACC+32+4*q+3}] offset:{1024*q}")
    a("s_waitcnt lgkmcnt(0) vmcnt(0)")
    a("s_barrier")
    gelu_epi(a, [[ACC + 16 * ii + 4 * j for j in range(4)] for ii in range(2)], BI, 25, "s[28:31]", 32)
    a("s_endpgm")
    a.label("g1_loader")
    a("s_sub_u32 s16, s16, 4")
    a("v_and_b32 v4, 15, v1")
    a("v_lshlrev_b32 v5, 1, v3")
    a("v_xor_b32 v5, v5, v4")
    a("v_xor_b32 v6, 8, v5")
    a("s_lshl_b32 s17, s16, 4")
    a("v_add_u32 v3, s17, v3")
    a("s_lshl_b32 s18, s14, 8")
    a("s_lshl_b32 s19, s15, 8")
    a("s_movk_i32 s36, 7168")
    VA, VB = 8, 12
    for q in range(4):
        c16 = 5 if q < 2 else 6
        a(f"v_add_u32 v7, {4*q}, v3")
        a(f"v_mul_lo_u32 v{VA+q}, v7, s36")
        a(f"v_lshl_add_u32 v{VA+q}, v{c16}, 4, v{VA+q}")
        a(f"v_add_u32 v{VA+q}, s18, v{VA+q}")
        a(f"v_lshlrev_b32 v{VB+q}, 11, v7")
        a(f"v_lshl_add_u32 v{VB+q}, v{c16}, 4, v{VB+q}")
        a(f"v_add_u32 v{VB+q}, s19, v{VB+q}")
        if q:
            a(f"v_subrev_u32 v{VA+q}, {1024*q}, v{VA+q}")
            a(f"v_subrev_u32 v{VB+q}, {1024*q}, v{VB+q}")
    a("s_lshl_b32 s37, s16, 12")
    a("s_mov_b32 s38, 0")
    a("s_mov_b32 s39, 0")
    a("s_mov_b32 s40, s37")
    def issue():
        a("s_mov_b32 m0, s40")
        a("s_nop 0")
        for q in range(4):
            a(f"buffer_load_dwordx4 v{VA+q}, s[20:23], s38 offen offset:{1024*q} lds")
        a("s_add_u32 m0, s40, 0x4000")
        a("s_nop 0")
        for q in range(4):
            a(f"buffer_load_dwordx4 v{VB+q}, s[24:27], s39 offen offset:{1024*q} lds")
        a(f"s_add_u32 s38, s38, {64*7168}")
        a(f"s_add_u32 s39, s39, {64*2048}")
        a(f"s_add_u32 s40, s40, {SLOT}")
        a(f"s_add_u32 s41, s37, {SLOT*NST}")
        a("s_cmp_eq_u32 s40, s41")
        a("s_cselect_b32 s40, s37, s40")
    for st in range(NST):
        issue()
    a(f"s_waitcnt vmcnt({8*(NST-1)})")
    a("s_barrier")
    a("s_mov_b32 s46, 0")
    a.label("g1_lloop")
    a(f"s_waitcnt vmcnt({8*(NST-2)})")
    a("s_barrier")
    issue()
    a("s_add_u32 s46, s46, 1")
    a(f"s_cmp_lt_u32 s46, {NK-NST}")
    a("s_cbranch_scc1 g1_lloop")
    for j in range(NST):
        if j <= NST - 2:
            a(f"s_waitcnt vmcnt({8*(NST-2-j)})")
        a("s_barrier")
    a("s_barrier")
    for q in range(8):
        a(f"ds_read_b128 v[{64+4*q}:{64+4*q+3}], v26 offset:{1024*q}")
    a("s_waitcnt lgkmcnt(0)")
    gelu_epi(a, [[64 + 16 * ii + 4 * j for j in range(4)] for ii in range(2)], BI, 25, "s[28:31]", 32)
    a.label("g1_done")
    a("s_endpgm")
    return kernel_desc(name, 160, 48), SLOT * NST

def gen_gemm2(a, NST=6, XAIT=8, compute=1, same=0, VP=0, MAPD=2, STAMP=0, G=1, NT2=0, R2=3584):
    if VP: NST = 2
    name = "gemm2_kernel"
    NK = F // 64
    SLOT = 24576
    kernel_header(a, name)
    a("s_cmp_ge_u32 s2, 256")
    a("s_cbranch_scc1 g2_done")
    a("s_load_dwordx4 s[4:7], s[0:1], 72")
    a("s_load_dwordx2 s[8:9], s[0:1], 104")
    a("s_load_dwordx2 s[44:45], s[0:1], 0")
    a("s_load_dwordx2 s[46:47], s[0:1], 88")
    a("s_and_b32 s10, s2, 7")
    a("s_lshr_b32 s11, s2, 3")
    ld = MAPD
    a(f"s_and_b32 s12, s10, {(1<<(3-ld))-1}")
    a(f"s_lshl_b32 s12, s12, {ld}")
    a(f"s_and_b32 s13, s11, {(1<<ld)-1}")
    a("s_add_u32 s14, s12, s13")
    a(f"s_lshr_b32 s12, s10, {3-ld}")
    a(f"s_lshl_b32 s12, s12, {5-ld}")
    a(f"s_lshr_b32 s13, s11, {ld}")
    a("s_add_u32 s15, s12, s13")
    if same & 1: a("s_mov_b32 s14, 0")
    if same & 2: a("s_mov_b32 s15, 0")
    a("v_and_b32 v1, 63, v0")
    a("v_lshrrev_b32 v2, 6, v0")
    a("s_nop 0")
    a("v_readfirstlane_b32 s16, v2")
    a("s_waitcnt lgkmcnt(0)")
    srd(a, 20, 8, D * F * 2, WS_U)
    srd(a, 24, 4, F * S * 2)
    a("s_cmp_ge_u32 s16, 4")
    a("s_cbranch_scc1 g2_loader")
    srd(a, 28, 46, S * D * 2)
    srd(a, 32, 44, S * D * 2)
    srd(a, 48, 8, S * 8, WS_STATS)
    srd(a, 52, 8, D * S * 2, WS_Y2T)
    srd(a, 56, 6, S * 2)
    a("s_and_b32 s17, s16, 1")
    a("s_lshr_b32 s18, s16, 1")
    a("v_lshrrev_b32 v3, 4, v1")
    a("v_bfe_u32 v4, v1, 2, 2")
    a("v_and_b32 v5, 3, v1")
    a("v_and_b32 v6, 15, v1")
    a("s_lshl_b32 s41, s15, 6")
    a("s_lshl_b32 s42, s18, 5")
    a("s_add_u32 s41, s41, s42")
    a("v_add_u32 v16, s41, v6")
    a("s_lshl_b32 s41, s14, 7")
    a("s_lshl_b32 s42, s17, 6")
    a("s_add_u32 s41, s41, s42")
    a("v_lshl_add_u32 v17, v3, 2, s41")
    a("v_lshlrev_b32 v18, 11, v16")
    a("v_lshl_add_u32 v18, v17, 1, v18")
    a("v_lshlrev_b32 v19, 12, v17")
    a("v_lshl_add_u32 v19, v16, 1, v19")
    a("v_lshlrev_b32 v20, 3, v16")
    a("v_lshlrev_b32 v21, 1, v16")
    XR = 112
    YR = 128
    for j in range(2):
        a(f"buffer_load_dwordx2 v[{24+2*j}:{25+2*j}], v20, s[48:51], 0 offen offset:{128*j}")
        a(f"buffer_load_ushort v{28+j}, v21, s[56:59], 0 offen offset:{32*j}")
    for j in range(2):
        a(f"v_add_u32 v22, {j*16*2048}, v18")
        for i in range(4):
            a(f"buffer_load_dwordx2 v[{XR+4*i+2*j}:{XR+1+4*i+2*j}], v22, s[32:35], 0 offen offset:{32*i}")
    for i in range(4):
        for r in range(4):
            a(f"v_add_u32 v22, {(16*i+r)*4096}, v19")
            for j in range(2):
                a(f"buffer_load_ushort v{YR+8*i+4*j+r}, v22, s[52:55], 0 offen offset:{32*j}")
    if R2 < F:
        tot = (F - R2) * S * 2
        perw = (tot // 256 + 127) // 128 * 128
        a(f"s_mul_i32 s37, s2, {perw}")
        a(f"s_add_u32 s37, s37, {R2*S*2}")
        a("v_lshl_add_u32 v23, v0, 7, s37")
        for t in range((perw + 32767) // 32768):
            a(f"s_mov_b32 s37, {32768*t}")
            a("buffer_load_dword v2, v23, s[24:27], s37 offen")
    a("s_lshl_b32 s19, s17, 12")
    a("v_lshl_add_u32 v8, v1, 4, s19")
    a("v_lshrrev_b32 v7, 1, v4")
    a("v_and_b32 v10, 1, v3")
    a("v_lshl_or_b32 v7, v10, 1, v7")
    a("v_lshl_add_u32 v12, v3, 2, v4")
    a("v_lshlrev_b32 v12, 7, v12")
    a("v_lshl_add_u32 v12, v5, 3, v12")
    a("v_add_u32 v12, 0x4000, v12")
    a("s_lshl_b32 s19, s18, 1")
    for j in range(2):
        a(f"s_add_u32 s36, s19, {j}")
        a(f"v_xor_b32 v{9+j}, s36, v7")
        a(f"v_lshl_add_u32 v{9+j}, v{9+j}, 5, v12")
    for i in range(3): a(f"v_mov_b32 v{12+i}, v{8+i}")
    FA = [32, 56]; FB = [48, 72]
    ACC = 80
    for i in range(32): a(f"v_mov_b32 v{ACC+i}, 0")
    a("s_mov_b32 s39, 0")
    a("s_mov_b32 s40, 0")
    a("s_barrier")
    def reads(buf, ks):
        L = []
        for j in range(2):
            for hh in range(2):
                L.append(f"ds_read_b64_tr_b16 v[{FB[buf]+4*j+2*hh}:{FB[buf]+4*j+2*hh+1}], v{13+j} offset:{ks*4096+hh*2048}")
        for i in range(4):
            L.append(f"ds_read_b128 v[{FA[buf]+4*i}:{FA[buf]+4*i+3}], v12 offset:{ks*8192+1024*i}")
        return L
    def mfmas(buf):
        L = []
        for i in range(4):
            for j in range(2):
                c = ACC + 8 * i + 4 * j
                L.append(f"v_mfma_f32_16x16x32_bf16 v[{c}:{c+3}], v[{FA[buf]+4*i}:{FA[buf]+4*i+3}], v[{FB[buf]+4*j}:{FB[buf]+4*j+3}], v[{c}:{c+3}]")
        return L
    if compute:
        for r in reads(0, 0): a(r)
    a.label("g2_cloop")
    for gi in range(G):
        a("s_waitcnt lgkmcnt(0)")
        if compute: interleave(a, mfmas(0), reads(1, 1))
        if gi == G - 1:
            a("s_waitcnt lgkmcnt(0)")
            a("s_barrier")
        a(f"s_add_u32 s39, s39, {SLOT}")
        a(f"s_cmp_eq_u32 s39, {SLOT*NST}")
        a("s_cselect_b32 s39, 0, s39")
        M = mfmas(1)
        if compute:
            if gi != G - 1: a("s_waitcnt lgkmcnt(0)")
            a(M[0])
            for i in range(3): a(f"v_add_u32 v{12+i}, s39, v{8+i}")
            interleave(a, M[1:], reads(0, 0))
    a(f"s_cmp_lg_u32 s40, {XAIT//G}")
    a("s_cbranch_scc1 g2_noxa")
    a("s_waitcnt vmcnt(0)")
    for j in range(2):
        a(f"v_lshlrev_b32 v{28+j}, 16, v{28+j}")
        a(f"v_rcp_f32 v{30+j}, v{25+2*j}")
    for j in range(2):
        m, sd, rc = 24 + 2 * j, 25 + 2 * j, 30 + j
        for i in range(4):
            xr = XR + 4 * i + 2 * j
            X, T, Q, t = 160, 164, 168, 172
            a(f"v_lshlrev_b32 v{X}, 16, v{xr}")
            a(f"v_and_b32 v{X+1}, 0xffff0000, v{xr}")
            a(f"v_lshlrev_b32 v{X+2}, 16, v{xr+1}")
            a(f"v_and_b32 v{X+3}, 0xffff0000, v{xr+1}")
            for r in range(4): a(f"v_sub_f32 v{T+r}, v{X+r}, v{m}")
            rnd2(a, T, T + 1, t); rnd2(a, T + 2, T + 3, t)
            for r in range(4):
                a(f"v_mul_f32 v{Q+r}, v{T+r}, v{rc}")
                a(f"v_fma_f32 v{T+r}, -v{Q+r}, v{sd}, v{T+r}")
                a(f"v_fmac_f32 v{Q+r}, v{T+r}, v{rc}")
            rnd2(a, Q, Q + 1, t); rnd2(a, Q + 2, Q + 3, t)
            for r in range(4):
                a(f"v_lshlrev_b32 v{T+r}, 16, v{YR+8*i+4*j+r}")
                a(f"v_mul_f32 v{Q+r}, v{Q+r}, v{T+r}")
            rnd2(a, Q, Q + 1, t); rnd2(a, Q + 2, Q + 3, t)
            for r in range(4): a(f"v_add_f32 v{X+r}, v{X+r}, v{Q+r}")
            a(f"v_cvt_pk_bf16_f32 v{xr}, v{X}, v{X+1}")
            a(f"v_cvt_pk_bf16_f32 v{xr+1}, v{X+2}, v{X+3}")
    a.label("g2_noxa")
    a("s_add_u32 s40, s40, 1")
    a(f"s_cmp_lt_u32 s40, {NK//G}")
    a("s_cbranch_scc1 g2_cloop")
    a("s_waitcnt lgkmcnt(0)")
    a("s_nop 7")
    a("v_lshlrev_b32 v22, 3, v3")
    a("v_lshl_add_u32 v22, v3, 4, v22")
    a("v_add_u32 v18, v18, v22")
    for j in range(2):
        b2 = 28 + j
        O = 128 + 8 * j
        for i in range(4):
            c = ACC + 8 * i + 4 * j
            xr = XR + 4 * i + 2 * j
            X, t = 160, 172
            rnd2(a, c, c + 1, t); rnd2(a, c + 2, c + 3, t)
            for r in range(4): a(f"v_add_f32 v{c+r}, v{c+r}, v{b2}")
            rnd2(a, c, c + 1, t); rnd2(a, c + 2, c + 3, t)
            a(f"v_lshlrev_b32 v{X}, 16, v{xr}")
            a(f"v_and_b32 v{X+1}, 0xffff0000, v{xr}")
            a(f"v_lshlrev_b32 v{X+2}, 16, v{xr+1}")
            a(f"v_and_b32 v{X+3}, 0xffff0000, v{xr+1}")
            for r in range(4): a(f"v_add_f32 v{X+r}, v{X+r}, v{c+r}")
            a(f"v_cvt_pk_bf16_f32 v{O+2*i}, v{X}, v{X+1}")
            a(f"v_cvt_pk_bf16_f32 v{O+2*i+1}, v{X+2}, v{X+3}")
        a("s_nop 1")
        for k in range(2):
            a(f"v_permlane32_swap_b32 v{O+k}, v{O+4+k}")
            a(f"v_permlane32_swap_b32 v{O+2+k}, v{O+6+k}")
        a("s_nop 1")
        for k in range(2):
            a(f"v_permlane16_swap_b32 v{O+k}, v{O+2+k}")
            a(f"v_permlane16_swap_b32 v{O+4+k}, v{O+6+k}")
        a(f"v_add_u32 v22, {j*16*2048}, v18")
        a(f"buffer_store_dwordx4 v[{O}:{O+3}], v22, s[28:31], 0 offen")
        a(f"buffer_store_dwordx4 v[{O+4}:{O+7}], v22, s[28:31], 0 offen offset:16")
    a("s_endpgm")
    a.label("g2_loader")
    a("s_sub_u32 s16, s16, 4")
    a("v_lshrrev_b32 v3, 3, v1")
    a("v_bfe_u32 v4, v1, 4, 2")
    a("v_and_b32 v5, 7, v1")
    a(f"s_mul_i32 s17, s14, {112*8192}")
    a("s_lshl_b32 s18, s16, 12")
    a("s_add_u32 s17, s17, s18")
    a("v_lshl_add_u32 v12, v1, 4, s17")
    VB = 16
    a("v_lshlrev_b32 v6, 1, v4")
    a("v_xor_b32 v6, v6, v5")
    a("s_lshl_b32 s17, s16, 4")
    a("v_add_u32 v8, s17, v3")
    a("s_lshl_b32 s18, s15, 7")
    for q in range(2):
        a(f"v_add_u32 v9, {8*q}, v8")
        a(f"v_lshlrev_b32 v{VB+q}, 12, v9")
        a(f"v_lshl_add_u32 v{VB+q}, v6, 4, v{VB+q}")
        a(f"v_add_u32 v{VB+q}, s18, v{VB+q}")
        if q: a(f"v_subrev_u32 v{VB+q}, {1024*q}, v{VB+q}")
    if VP:
        a("s_lshl_b32 s37, s16, 12")
        a("v_lshl_add_u32 v20, v1, 4, s37")
        a("s_lshl_b32 s43, s16, 11")
        a("s_add_u32 s43, s43, 0x4000")
        a("v_lshl_add_u32 v21, v1, 4, s43")
        for q in range(2):
            if q: a(f"v_add_u32 v{VB+q}, {1024*q}, v{VB+q}")
        QB = 24
        def ld(s):
            p = s % VP
            a(f"s_mov_b32 s38, {s*0x4000}")
            a(f"s_mov_b32 s39, {s*64*4096}")
            for q in range(4):
                a(f"buffer_load_dwordx4 v[{QB+24*p+4*q}:{QB+24*p+4*q+3}], v12, s[20:23], s38 offen offset:{1024*q}")
            for q in range(2):
                a(f"buffer_load_dwordx4 v[{QB+24*p+16+4*q}:{QB+24*p+16+4*q+3}], v{VB+q}, s[24:27], s39 offen")
        def wr(s):
            p = s % VP
            younger = min(s + VP - 1, NK - 1) - s
            a(f"s_waitcnt vmcnt({6*younger})")
            so = (s % 2) * SLOT
            for q in range(4):
                a(f"ds_write_b128 v20, v[{QB+24*p+4*q}:{QB+24*p+4*q+3}] offset:{so+1024*q}")
            for q in range(2):
                a(f"ds_write_b128 v21, v[{QB+24*p+16+4*q}:{QB+24*p+16+4*q+3}] offset:{so+1024*q}")
            a("s_waitcnt lgkmcnt(0)")
            if s + VP < NK: ld(s + VP)
        for s in range(VP): ld(s)
        wr(0)
        a("s_barrier")
        for s in range(NK):
            if s + 1 < NK: wr(s + 1)
            a("s_barrier")
    else:
        a("s_lshl_b32 s37, s16, 12")
        a("s_lshl_b32 s43, s16, 11")
        a("s_add_u32 s43, s43, 0x4000")
        a("s_mov_b32 s38, 0")
        a("s_mov_b32 s39, 0")
        a("s_mov_b32 s40, 0")
        def issue():
            a("s_add_u32 m0, s40, s37")
            a("s_nop 0")
            for q in range(4):
                a(f"buffer_load_dwordx4 v12, s[20:23], s38 offen offset:{1024*q} lds")
            a("s_add_u32 m0, s40, s43")
            a("s_nop 0")
            for q in range(2):
                a(f"buffer_load_dwordx4 v{VB+q}, s[24:27], s39 offen offset:{1024*q} {'nt ' if NT2 else ''}lds")
            a("s_add_u32 s38, s38, 0x4000")
            a(f"s_add_u32 s39, s39, {64*4096}")
            a(f"s_add_u32 s40, s40, {SLOT}")
            a(f"s_cmp_eq_u32 s40, {SLOT*NST}")
            a("s_cselect_b32 s40, 0, s40")
        for st in range(NST): issue()
        a(f"s_waitcnt vmcnt({6*(NST-G)})")
        a("s_barrier")
        a("s_mov_b32 s42, 0")
        NG = NK // G
        NFULL = (NK - NST) // G
        assert (NK - NST) % G == 0
        a.label("g2_lloop")
        a(f"s_waitcnt vmcnt({6*(NST-2*G)})")
        a("s_barrier")
        for gi in range(G): issue()
        a("s_add_u32 s42, s42, 1")
        a(f"s_cmp_lt_u32 s42, {NFULL}")
        a("s_cbranch_scc1 g2_lloop")
        rem = NST - G
        for j in range(NG - NFULL):
            rem -= G
            if rem >= 0:
                a(f"s_waitcnt vmcnt({6*rem})")
            a("s_barrier")
    a.label("g2_done")
    a("s_endpgm")
    return kernel_desc(name, max(176, 24 + 24 * VP), 64), SLOT * NST

def build(opts):
    a = Asm()
    a.lines.append('.amdgcn_target "amdgcn-amd-amdhsa--gfx950"')
    a.lines.append(".text")
    descs = []; launches = []
    npf = opts.get("npf", 256)
    descs.append(gen_prep(a, npf))
    launches.append(f"; @launch kernel=prep_kernel grid=({768+npf},1,1) block=(256,1,1) lds=0")
    d, lds = gen_conv(a)
    descs.append(d)
    launches.append(f"; @launch kernel=conv_kernel grid=(1024,1,1) block=(64,1,1) lds={lds}")
    d, lds = gen_gemm1(a, NST=opts.get("nst", 4))
    descs.append(d)
    launches.append(f"; @launch kernel=gemm1_kernel grid=(224,1,1) block=(512,1,1) lds={lds}")
    d, lds = gen_gemm2(a, NST=opts.get("nst2", 6), compute=opts.get("compute2", 1), same=opts.get("same2", 0), VP=opts.get("vp2", 0), MAPD=opts.get("mapd", 2), STAMP=opts.get("stamp", 0), G=opts.get("g2", 1))
    descs.append(d)
    launches.append(f"; @launch kernel=gemm2_kernel grid=(256,1,1) block=(512,1,1) lds={lds}")
    txt = HEADER + "\n".join(launches) + "\n" + a.text() + '.section .rodata,"a"\n.p2align 6\n' + ".p2align 6\n".join(descs)
    return txt

if __name__ == "__main__":
    opts = {}
    for arg in sys.argv[2:]:
        k, v = arg.split("=")
        opts[k] = int(v)
    open(sys.argv[1], "w").write(build(opts))
```

```python
import sys, struct
from asmlib import *
from gen import rnd2, wave_sum, gen_prep, HEADER, S, D, F, MB, WS_H, WS_STATS, WS_KVT, WS_Y2T, WS_U
from gen3 import gelu_epi, gen_gemm2, interleave, fb

KOFF = 4608
KCP2 = 4160
CONV_LDS = KOFF + 2 * KCP2

def conv_setup(a, ring_bytes):
    a("s_lshl_b32 s64, s2, 2")
    a("s_add_u32 s64, s64, s16")
    a("s_lshl_b32 s65, s64, 12")
    a("s_add_u32 s48, s68, s65"); a("s_addc_u32 s49, s69, 0"); a("s_movk_i32 s50, 4096"); a("s_mov_b32 s51, 0x00020000")
    a("s_add_u32 s52, s8, s65"); a("s_addc_u32 s53, s9, 0")
    a(f"s_add_u32 s56, s52, {WS_Y2T}"); a("s_addc_u32 s57, s53, 0"); a("s_movk_i32 s58, 4096"); a("s_mov_b32 s59, 0x00020000")
    a(f"s_add_u32 s52, s52, {WS_KVT}"); a("s_addc_u32 s53, s53, 0"); a("s_movk_i32 s54, 4096"); a("s_mov_b32 s55, 0x00020000")
    srd(a, 60, 70, D * 2)
    a(f"s_mul_i32 s66, s16, {CONV_LDS}")
    a(f"s_add_u32 s66, s66, {ring_bytes}")
    a("v_lshlrev_b32 v21, 4, v1")
    a("s_add_u32 m0, s66, 480")
    a("s_nop 0")
    for q in range(4):
        a(f"buffer_load_dwordx4 v21, s[52:55], 0 offen offset:{1024*q} lds")
    a("v_lshlrev_b32 v22, 6, v1")
    a("v_subrev_u32 v22, 32, v22")
    for i in range(4):
        a(f"v_add_u32 v23, {16*i}, v22")
        a(f"buffer_load_dwordx4 v[{64+4*i}:{67+4*i}], v23, s[48:51], 0 offen")
    a("v_add_u32 v23, 64, v22")
    a("buffer_load_dword v80, v23, s[48:51], 0 offen")
    a("v_mov_b32 v23, 4064")
    a("buffer_load_dwordx4 v[84:87], v23, s[48:51], 0 offen")
    a("buffer_load_dwordx4 v[88:91], v23, s[48:51], 0 offen offset:16")
    a("v_mov_b32 v92, 0")
    a("s_lshl_b32 s65, s64, 1")
    a("v_mov_b32 v22, s65")
    a("buffer_load_ushort v20, v22, s[60:63], 0 offen")
    for i in range(4): a(f"v_mov_b32 v{32+i}, 0")
    a("v_add_u32 v22, s66, v21")
    a("v_cmp_gt_u32 vcc, 30, v1")
    a("s_and_saveexec_b64 s[72:73], vcc")
    a("ds_write_b128 v22, v[32:35]")
    a("s_mov_b64 exec, s[72:73]")
    a("v_and_b32 v22, 15, v1")
    a("v_lshrrev_b32 v23, 4, v1")
    a("v_add_u32 v16, 1, v22")
    a("v_and_b32 v16, 1, v16")
    a("v_lshlrev_b32 v17, 3, v23")
    a("v_sub_u32 v17, v22, v17")
    a("v_sub_u32 v17, v17, v16")
    a("v_lshlrev_b32 v17, 1, v17")
    a(f"v_mul_u32_u24 v16, {KCP2}, v16")
    a("v_add_u32 v16, v16, v17")
    a("v_add_u32 v16, s66, v16")
    a(f"v_add_u32 v192, {KOFF+50}, v16")
    for i in range(1, 4): a(f"v_add_u32 v{192+i}, {KOFF+50+1024*i}, v16")
    a("v_lshlrev_b32 v17, 5, v22")
    a("v_lshl_add_u32 v17, v23, 4, v17")
    a("v_add_u32 v17, s66, v17")
    a("v_and_b32 v18, 1, v23")
    a("v_lshlrev_b32 v18, 3, v18")
    a("v_lshrrev_b32 v19, 1, v23")
    a("v_lshlrev_b32 v19, 4, v19")
    a("v_lshl_add_u32 v19, v22, 5, v19")
    a("v_sub_u32 v18, v19, v18")
    a("v_add_u32 v18, s66, v18")
    a("v_add_u32 v18, 488, v18")
    a("v_lshlrev_b32 v19, 5, v22")
    a("v_lshl_add_u32 v19, v23, 3, v19")

CACC = 32
CFA = [64, 128]; CFB = [96, 160]
def conv_flat():
    L = []
    for i in range(32): L.append(f"v_mov_b32 v{CACC+i}, 0")
    def reads(buf, rho):
        R = []
        for P in range(8):
            off = 512 * P + 64 * rho
            bi, o4 = off // 1024, (off % 1024) // 4
            R.append(f"ds_read2_b32 v[{CFA[buf]+4*P}:{CFA[buf]+4*P+1}], v{192+bi} offset0:{o4} offset1:{o4+1}")
            R.append(f"ds_read2_b32 v[{CFA[buf]+4*P+2}:{CFA[buf]+4*P+3}], v{192+bi} offset0:{o4+2} offset1:{o4+3}")
            R.append(f"ds_read_b128 v[{CFB[buf]+4*P}:{CFB[buf]+4*P+3}], v17 offset:{512*P-64*rho+448}")
        return R
    def mf(buf):
        M = []
        for P in range(8):
            for Dl in range(8 - P):
                T = P + Dl
                M.append(f"v_mfma_f32_16x16x32_bf16 v[{CACC+4*T}:{CACC+4*T+3}], v[{CFA[buf]+4*P}:{CFA[buf]+4*P+3}], v[{CFB[buf]+4*Dl}:{CFB[buf]+4*Dl+3}], v[{CACC+4*T}:{CACC+4*T+3}]")
        return M
    L.append("v_lshlrev_b32 v21, 6, v1")
    L.append("v_add_u32 v21, s66, v21")
    for m in range(16):
        L.append(f"v_alignbit_b32 v{96+m}, v{64+m+1}, v{64+m}, 16")
    for q in range(4):
        L.append(f"ds_write_b128 v21, v[{64+4*q}:{67+4*q}] offset:{KOFF+16*q}")
        L.append(f"ds_write_b128 v21, v[{96+4*q}:{99+4*q}] offset:{KOFF+KCP2+16*q}")
    for m in range(8):
        L.append(f"v_alignbit_b32 v{112+m}, v{84+m+1}, v{84+m}, 16")
    L.append("v_cmp_eq_u32 vcc, 0, v1")
    L.append("s_and_saveexec_b64 s[72:73], vcc")
    for q in range(2):
        L.append(f"ds_write_b128 v21, v[{84+4*q}:{87+4*q}] offset:{KOFF+4096+16*q}")
        L.append(f"ds_write_b128 v21, v[{112+4*q}:{115+4*q}] offset:{KOFF+KCP2+4096+16*q}")
    L.append("s_mov_b64 exec, s[72:73]")
    L.append("s_waitcnt lgkmcnt(0)")
    NB = len(L)
    L += reads(0, 0)
    for rho in range(8):
        L.append("s_waitcnt lgkmcnt(0)")
        R = reads((rho + 1) & 1, rho + 1) if rho < 7 else []
        for m in mf(rho & 1):
            L.append(m)
            if R: L.append(R.pop(0))
    return L, NB

def conv_epilogue(a):
    a("v_lshlrev_b32 v20, 16, v20")
    for T in range(8):
        a(f"ds_read_b64 v[{64+2*T}:{65+2*T}], v18 offset:{512*T}")
    a("s_nop 7")
    a("s_waitcnt lgkmcnt(0)")
    for T in range(8):
        c = CACC + 4 * T
        a(f"v_and_b32 v80, 0xffff0000, v{65+2*T}")
        a(f"v_lshlrev_b32 v81, 16, v{65+2*T}")
        a(f"v_and_b32 v82, 0xffff0000, v{64+2*T}")
        a(f"v_lshlrev_b32 v83, 16, v{64+2*T}")
        for r in range(4): a(f"v_mul_f32 v{80+r}, v{80+r}, v20")
        rnd2(a, 80, 81, 84); rnd2(a, 82, 83, 84)
        rnd2(a, c, c + 1, 84); rnd2(a, c + 2, c + 3, 84)
        for r in range(4): a(f"v_add_f32 v{c+r}, v{c+r}, v{80+r}")
        o = 86 + 2 * (T & 1)
        a(f"v_cvt_pk_bf16_f32 v{o}, v{c}, v{c+1}")
        a(f"v_cvt_pk_bf16_f32 v{o+1}, v{c+2}, v{c+3}")
        a(f"buffer_store_dwordx2 v[{o}:{o+1}], v19, s[56:59], 0 offen offset:{512*T}")

def gen_gemm1(a, NST=3, CSPAN=26, PFON=1, CONVON=1, NT1=0, PRIO=0, STAMP=0, R1=2048, R2=3584):
    name = "gemm1_kernel"
    NK = S // 64
    SLOT = 32768
    RING = SLOT * NST
    kernel_header(a, name)
    a("s_cmp_ge_u32 s2, 256")
    a("s_cbranch_scc1 g1_done")
    a("s_load_dwordx4 s[4:7], s[0:1], 56")
    a("s_load_dwordx2 s[8:9], s[0:1], 104")
    a("s_load_dwordx4 s[68:71], s[0:1], 32")
    a("s_load_dwordx2 s[74:75], s[0:1], 72")
    a("s_and_b32 s10, s2, 7")
    a("s_lshr_b32 s11, s2, 3")
    a("s_mul_i32 s12, s11, 37")
    a("s_lshr_b32 s12, s12, 8")
    a("s_mul_i32 s13, s12, 7")
    a("s_sub_u32 s13, s11, s13")
    a("s_and_b32 s14, s10, 3")
    a("s_mul_i32 s14, s14, 7")
    a("s_add_u32 s14, s14, s13")
    a("s_lshr_b32 s15, s10, 2")
    a("s_lshl_b32 s15, s15, 2")
    a("s_add_u32 s15, s15, s12")
    a("v_and_b32 v1, 63, v0")
    a("v_lshrrev_b32 v2, 6, v0")
    a("s_nop 0")
    a("v_readfirstlane_b32 s16, v2")
    if STAMP: a("s_memrealtime s[76:77]")
    a("s_waitcnt lgkmcnt(0)")
    a("s_cmp_ge_u32 s2, 224")
    a("s_cbranch_scc1 g1_extra")
    srd(a, 20, 4, S * F * 2)
    srd(a, 24, 8, S * D * 2, WS_H)
    srd(a, 28, 8, D * F * 2, WS_U)
    srd(a, 32, 6, F * 2)
    a("s_and_b32 s17, s16, 1")
    a("s_bfe_u32 s18, s16, 0x10001")
    a("s_lshr_b32 s19, s16, 2")
    a("v_lshrrev_b32 v3, 4, v1")
    a("s_lshl_b32 s37, s14, 7")
    a("s_lshl_b32 s38, s17, 6")
    a("s_add_u32 s37, s37, s38")
    a("s_lshl_b32 s38, s19, 5")
    a("s_add_u32 s37, s37, s38")
    a("v_lshl_add_u32 v24, v3, 2, s37")
    a("v_lshlrev_b32 v24, 1, v24")
    BI = 28
    for ii in range(2):
        a(f"buffer_load_dwordx2 v[{BI+2*ii}:{BI+2*ii+1}], v24, s[32:35], 0 offen offset:{32*ii}")
    a("s_mul_i32 s37, s15, 112")
    a("s_lshl_b32 s38, s14, 2")
    a("s_add_u32 s37, s37, s38")
    a("s_lshl_b32 s38, s17, 1")
    a("s_add_u32 s37, s37, s38")
    a("s_add_u32 s37, s37, s19")
    a("s_lshl_b32 s37, s37, 3")
    a("s_lshl_b32 s38, s18, 2")
    a("s_add_u32 s37, s37, s38")
    a("s_lshl_b32 s37, s37, 10")
    a("v_lshl_add_u32 v25, v1, 4, s37")
    a("s_and_b32 s37, s16, 3")
    a("s_lshl_b32 s37, s37, 13")
    a("v_lshl_add_u32 v26, v1, 4, s37")
    c1 = -2.0 * 0.7978845608028654 * 1.4426950408889634
    c2 = c1 * 0.044715
    a(f"s_mov_b32 s42, {fb(c1):#x}"); a(f"s_mov_b32 s43, {fb(c1):#x}")
    a(f"s_mov_b32 s44, {fb(c2):#x}"); a(f"s_mov_b32 s45, {fb(c2):#x}")
    a("s_cmp_ge_u32 s16, 4")
    a("s_cbranch_scc1 g1_loader")
    a("v_bfe_u32 v4, v1, 2, 2")
    a("v_and_b32 v5, 3, v1")
    a("v_and_b32 v6, 1, v3")
    a("v_lshl_or_b32 v6, v6, 2, v4")
    a("v_lshl_add_u32 v7, v3, 3, v4")
    a("v_lshlrev_b32 v7, 8, v7")
    a("v_lshl_add_u32 v7, v5, 3, v7")
    AC, BC = 8, 12
    AA, BA = 16, 20
    a("s_lshl_b32 s19, s17, 2")
    a("s_lshl_b32 s36, s18, 2")
    for i in range(4):
        a(f"s_add_u32 s37, s19, {i}")
        a(f"v_xor_b32 v{AC+i}, s37, v6")
        a(f"v_lshl_add_u32 v{AC+i}, v{AC+i}, 5, v7")
        a(f"s_add_u32 s37, s36, {i}")
        a(f"v_xor_b32 v{BC+i}, s37, v6")
        a(f"v_lshl_add_u32 v{BC+i}, v{BC+i}, 5, v7")
        a(f"v_add_u32 v{BC+i}, 0x4000, v{BC+i}")
        a(f"v_mov_b32 v{AA+i}, v{AC+i}")
        a(f"v_mov_b32 v{BA+i}, v{BC+i}")
    if R1 < S:
        tot = (S - R1) * F * 2
        perw = (tot // 224 + 127) // 128 * 128
        a(f"s_mul_i32 s37, s2, {perw}")
        a(f"s_add_u32 s37, s37, {R1*F*2}")
        a("v_lshl_add_u32 v27, v0, 7, s37")
        for t in range((perw + 32767) // 32768):
            a(f"s_mov_b32 s37, {32768*t}")
            a("buffer_load_dword v2, v27, s[20:23], s37 offen")
    FA = [32, 64]; FB = [48, 80]
    ACC = 96
    for i in range(64):
        a(f"v_mov_b32 v{ACC+i}, 0")
    a("s_mov_b32 s39, 0")
    a("s_mov_b32 s40, 0")
    if PRIO: a("s_setprio 2")
    def stamp():
        if not STAMP: return
        a("s_memrealtime s[78:79]")
        a("s_waitcnt lgkmcnt(0)")
        a("v_mov_b32 v27, s78")
        a("buffer_store_dword v27, v2, s[48:51], 0 offen")
        a("v_add_u32 v2, 4, v2")
    if STAMP:
        srd(a, 48, 8, 1 << 20, 64 * MB)
        a("s_lshl_b32 s52, s2, 2")
        a("s_add_u32 s52, s52, s16")
        a("s_lshl_b32 s52, s52, 8")
        a("v_mov_b32 v2, s52")
        a("v_mov_b32 v27, s76")
        a("buffer_store_dword v27, v2, s[48:51], 0 offen")
        a("v_add_u32 v2, 4, v2")
    a("s_barrier")
    stamp()
    def reads(buf, ks):
        L = []
        for i in range(4):
            for hh in range(2):
                L.append(f"ds_read_b64_tr_b16 v[{FA[buf]+4*i+2*hh}:{FA[buf]+4*i+2*hh+1}], v{AA+i} offset:{ks*8192+hh*1024}")
            for hh in range(2):
                L.append(f"ds_read_b64_tr_b16 v[{FB[buf]+4*i+2*hh}:{FB[buf]+4*i+2*hh+1}], v{BA+i} offset:{ks*8192+hh*1024}")
        return L
    def mfmas(buf):
        L = []
        for i in range(4):
            for j in range(4):
                c = ACC + 16 * i + 4 * j
                L.append(f"v_mfma_f32_16x16x32_bf16 v[{c}:{c+3}], v[{FA[buf]+4*i}:{FA[buf]+4*i+3}], v[{FB[buf]+4*j}:{FB[buf]+4*j+3}], v[{c}:{c+3}]")
        return L
    for r in reads(0, 0): a(r)
    a.label("g1_cloop")
    a("s_waitcnt lgkmcnt(0)")
    interleave(a, mfmas(0), reads(1, 1))
    a("s_waitcnt lgkmcnt(0)")
    a("s_barrier")
    a(f"s_add_u32 s39, s39, {SLOT}")
    a(f"s_cmp_eq_u32 s39, {SLOT*NST}")
    a("s_cselect_b32 s39, 0, s39")
    M = mfmas(1)
    a(M[0])
    for i in range(4):
        a(f"v_add_u32 v{AA+i}, s39, v{AC+i}")
        a(f"v_add_u32 v{BA+i}, s39, v{BC+i}")
    interleave(a, M[1:], reads(0, 0))
    stamp()
    a("s_add_u32 s40, s40, 1")
    a(f"s_cmp_lt_u32 s40, {NK}")
    a("s_cbranch_scc1 g1_cloop")
    a("s_waitcnt lgkmcnt(0)")
    a("s_nop 7")
    for q in range(8):
        a(f"ds_write_b128 v26, v[{ACC+32+4*q}:{ACC+32+4*q+3}] offset:{1024*q}")
    a("s_waitcnt lgkmcnt(0) vmcnt(0)")
    a("s_barrier")
    stamp()
    gelu_epi(a, [[ACC + 16 * ii + 4 * j for j in range(4)] for ii in range(2)], BI, 25, "s[28:31]", 32)
    stamp()
    a("s_waitcnt vmcnt(0)")
    stamp()
    a("s_endpgm")
    a.label("g1_loader")
    a("s_sub_u32 s16, s16, 4")
    a("v_and_b32 v4, 15, v1")
    a("v_lshlrev_b32 v5, 1, v3")
    a("v_xor_b32 v5, v5, v4")
    a("v_xor_b32 v6, 8, v5")
    a("s_lshl_b32 s17, s16, 4")
    a("v_add_u32 v3, s17, v3")
    a("s_lshl_b32 s18, s14, 8")
    a("s_lshl_b32 s19, s15, 8")
    a("s_movk_i32 s36, 7168")
    VA, VB = 8, 12
    for q in range(4):
        c16 = 5 if q < 2 else 6
        a(f"v_add_u32 v7, {4*q}, v3")
        a(f"v_mul_lo_u32 v{VA+q}, v7, s36")
        a(f"v_lshl_add_u32 v{VA+q}, v{c16}, 4, v{VA+q}")
        a(f"v_add_u32 v{VA+q}, s18, v{VA+q}")
        a(f"v_lshlrev_b32 v{VB+q}, 11, v7")
        a(f"v_lshl_add_u32 v{VB+q}, v{c16}, 4, v{VB+q}")
        a(f"v_add_u32 v{VB+q}, s19, v{VB+q}")
        if q:
            a(f"v_subrev_u32 v{VA+q}, {1024*q}, v{VA+q}")
            a(f"v_subrev_u32 v{VB+q}, {1024*q}, v{VB+q}")
    a("s_lshl_b32 s37, s16, 12")
    outst = []
    def issue(s):
        slot = (s % NST) * SLOT
        a(f"s_add_u32 m0, s37, {slot}")
        a(f"s_mov_b32 s38, {s*64*7168}")
        a(f"s_mov_b32 s39, {s*64*2048}")
        for q in range(4):
            a(f"buffer_load_dwordx4 v{VA+q}, s[20:23], s38 offen offset:{1024*q} {'nt ' if NT1 else ''}lds")
        a(f"s_add_u32 m0, s37, {slot+0x4000}")
        a("s_nop 0")
        for q in range(4):
            a(f"buffer_load_dwordx4 v{VB+q}, s[24:27], s39 offen offset:{1024*q} lds")
        outst.extend([s] * 8)
    def wait_stage(s):
        cand = [i for i, t in enumerate(outst) if t == s]
        if not cand: return
        idx = max(cand)
        n = len(outst) - 1 - idx
        a(f"s_waitcnt vmcnt({n})")
        del outst[:idx + 1]
    issue(0)
    conv_setup(a, RING)
    outst.extend(["c"] * 12)
    for st in range(1, NST): issue(st)
    flat, NB = conv_flat() if CONVON else (["s_nop 0"], 1)
    build, flat = flat[:NB], flat[NB:]
    wait_stage("c")
    for ins in build: a(ins)
    a("s_barrier")
    per = (len(flat) + CSPAN - 1) // CSPAN
    epi = Asm(); conv_epilogue(epi)
    epi = [l.strip() for l in epi.lines]
    nst_epi = sum("buffer_store" in l for l in epi)
    cuts = [i + 1 for i, l in enumerate(epi) if "buffer_store" in l]
    pieces = [epi[:cuts[1]], epi[cuts[1]:cuts[3]], epi[cuts[3]:cuts[5]], epi[cuts[5]:]]
    for s in range(NK):
        if s + 1 < NK: wait_stage(s + 1)
        a("s_barrier")
        if PRIO: a("s_setprio 3")
        if s + NST < NK: issue(s + NST)
        if PRIO: a("s_setprio 0")
        if flat:
            chunk, flat = flat[:per], flat[per:]
        elif pieces:
            chunk = pieces.pop(0)
            outst.extend(["y"] * 2)
        else:
            chunk = []
        for ins in chunk: a(ins)
    assert not flat and not pieces
    a("s_barrier")
    for q in range(8):
        a(f"ds_read_b128 v[{64+4*q}:{64+4*q+3}], v26 offset:{1024*q}")
    a("s_waitcnt lgkmcnt(0)")
    gelu_epi(a, [[64 + 16 * ii + 4 * j for j in range(4)] for ii in range(2)], BI, 25, "s[28:31]", 32)
    a("s_endpgm")
    a.label("g1_extra")
    a("s_cmp_lt_u32 s16, 4")
    a("s_cbranch_scc1 g1_pf")
    a("s_sub_u32 s16, s16, 4")
    conv_setup(a, RING)
    a("s_waitcnt vmcnt(0)")
    for ins in conv_flat()[0]: a(ins)
    conv_epilogue(a)
    a("s_add_u32 s16, s16, 4")
    a.label("g1_pf")
    if not PFON: a("s_endpgm")
    per = R2 * S * 2 // 32
    u = per // 32
    assert u % 2048 == 0
    srd(a, 20, 74, F * S * 2)
    a("s_sub_u32 s17, s2, 224")
    a(f"s_mul_i32 s17, s17, {per}")
    a(f"s_mul_i32 s18, s16, {5*u}")
    a("s_sub_u32 s19, s16, 4")
    a(f"s_mul_i32 s19, s19, {3*u}")
    a(f"s_add_u32 s19, s19, {20*u}")
    a("s_cmp_lt_u32 s16, 4")
    a("s_cselect_b32 s18, s18, s19")
    a(f"s_mov_b32 s36, {5*u}")
    a(f"s_cselect_b32 s19, s36, {3*u}")
    a("s_add_u32 s17, s17, s18")
    a("v_lshl_add_u32 v4, v1, 4, s17")
    a("s_mov_b32 s18, 0")
    a.label("g1_pfl")
    for k in range(2):
        a(f"buffer_load_dwordx4 v[{8+4*k}:{11+4*k}], v4, s[20:23], s18 offen")
        a("s_add_u32 s18, s18, 1024")
    a("s_cmp_lt_u32 s18, s19")
    a("s_cbranch_scc1 g1_pfl")
    a.label("g1_done")
    a("s_endpgm")
    return kernel_desc(name, 196, 80), RING + 4 * CONV_LDS

def build(opts):
    a = Asm()
    a.lines.append('.amdgcn_target "amdgcn-amd-amdhsa--gfx950"')
    a.lines.append(".text")
    descs = []; launches = []
    npf = opts.get("npf", 256)
    descs.append(gen_prep(a, npf, rev=1, pfw2=2, r1=opts.get("r1", 2048)))
    launches.append(f"; @launch kernel=prep_kernel grid=({768+npf},1,1) block=(256,1,1) lds=0")
    d, lds = gen_gemm1(a, NST=opts.get("nst", 3), CSPAN=opts.get("cspan", 26), PFON=opts.get("pfon", 1), CONVON=opts.get("convon", 1), NT1=opts.get("nt1", 0), PRIO=opts.get("prio", 0), STAMP=opts.get("stamp", 0), R1=opts.get("r1", 2048), R2=opts.get("r2", 3584))
    descs.append(d)
    launches.append(f"; @launch kernel=gemm1_kernel grid=(256,1,1) block=(512,1,1) lds={lds}")
    d, lds = gen_gemm2(a, NST=opts.get("nst2", 6), NT2=opts.get("nt2", 0), MAPD=opts.get("mapd", 2), R2=opts.get("r2", 3584))
    descs.append(d)
    launches.append(f"; @launch kernel=gemm2_kernel grid=(256,1,1) block=(512,1,1) lds={lds}")
    txt = HEADER + "\n".join(launches) + "\n" + a.text() + '.section .rodata,"a"\n.p2align 6\n' + ".p2align 6\n".join(descs)
    return txt

if __name__ == "__main__":
    opts = {}
    for arg in sys.argv[2:]:
        k, v = arg.split("=")
        opts[k] = int(v)
    open(sys.argv[1], "w").write(build(opts))
```

```python
import sys, struct
from asmlib import *
from gen import rnd2, wave_sum, gen_prep, HEADER, S, D, F, MB, WS_H, WS_STATS, WS_KVT, WS_Y2T, WS_U
from gen2 import gen_conv

fb = lambda x: struct.unpack("<I", struct.pack("<f", x))[0]

def interleave(a, M, R, per=2):
    R = list(R)
    for m in M:
        a(m)
        for _ in range(per):
            if R: a(R.pop(0))
    for r in R: a(r)

def gelu_epi(a, accs, BI, vaddr, srd_u, tmp):
    B = tmp
    T = tmp + 8
    O = tmp + 16
    C1 = tmp + 24; ONE = tmp + 26
    a(f"v_mov_b32 v{C1}, s42"); a(f"v_mov_b32 v{C1+1}, s42")
    a(f"v_mov_b32 v{ONE}, 1.0"); a(f"v_mov_b32 v{ONE+1}, 1.0")
    for k in range(4):
        a(f"v_lshlrev_b32 v{B+2*k}, 16, v{BI+k}")
        a(f"v_and_b32 v{B+2*k+1}, 0xffff0000, v{BI+k}")
    for j in range(4):
        o = O + 4 * (j & 1)
        for ii in range(2):
            c = accs[ii][j]
            t = T + 4 * ii
            a(f"v_cvt_pk_bf16_f32 v{t}, v{c}, v{c+1}")
            a(f"v_cvt_pk_bf16_f32 v{t+1}, v{c+2}, v{c+3}")
            a(f"v_lshlrev_b32 v{c}, 16, v{t}")
            a(f"v_and_b32 v{c+1}, 0xffff0000, v{t}")
            a(f"v_lshlrev_b32 v{c+2}, 16, v{t+1}")
            a(f"v_and_b32 v{c+3}, 0xffff0000, v{t+1}")
            a(f"v_pk_add_f32 v[{c}:{c+1}], v[{c}:{c+1}], v[{B+4*ii}:{B+4*ii+1}]")
            a(f"v_pk_add_f32 v[{c+2}:{c+3}], v[{c+2}:{c+3}], v[{B+4*ii+2}:{B+4*ii+3}]")
            a(f"v_cvt_pk_bf16_f32 v{t}, v{c}, v{c+1}")
            a(f"v_cvt_pk_bf16_f32 v{t+1}, v{c+2}, v{c+3}")
            a(f"v_lshlrev_b32 v{c}, 16, v{t}")
            a(f"v_and_b32 v{c+1}, 0xffff0000, v{t}")
            a(f"v_lshlrev_b32 v{c+2}, 16, v{t+1}")
            a(f"v_and_b32 v{c+3}, 0xffff0000, v{t+1}")
            for p in range(2):
                a(f"v_pk_mul_f32 v[{t+2*p}:{t+2*p+1}], v[{c+2*p}:{c+2*p+1}], v[{c+2*p}:{c+2*p+1}]")
            for p in range(2):
                a(f"v_pk_fma_f32 v[{t+2*p}:{t+2*p+1}], v[{t+2*p}:{t+2*p+1}], s[44:45], v[{C1}:{C1+1}]")
            for p in range(2):
                a(f"v_pk_mul_f32 v[{t+2*p}:{t+2*p+1}], v[{t+2*p}:{t+2*p+1}], v[{c+2*p}:{c+2*p+1}]")
            for r in range(4):
                a(f"v_exp_f32 v{t+r}, v{t+r}")
            a("s_nop 0")
            for p in range(2):
                a(f"v_pk_add_f32 v[{t+2*p}:{t+2*p+1}], v[{t+2*p}:{t+2*p+1}], v[{ONE}:{ONE+1}]")
            for r in range(4):
                a(f"v_rcp_f32 v{t+r}, v{t+r}")
            a("s_nop 0")
            for p in range(2):
                a(f"v_pk_mul_f32 v[{c+2*p}:{c+2*p+1}], v[{c+2*p}:{c+2*p+1}], v[{t+2*p}:{t+2*p+1}]")
            a(f"v_cvt_pk_bf16_f32 v{o+2*ii}, v{c}, v{c+1}")
            a(f"v_cvt_pk_bf16_f32 v{o+2*ii+1}, v{c+2}, v{c+3}")
        a(f"buffer_store_dwordx4 v[{o}:{o+3}], v{vaddr}, {srd_u}, 0 offen offset:{1024*j}")

def gen_gemm1(a, NST=4):
    name = "gemm1_kernel"
    NK = S // 64
    SLOT = 32768
    kernel_header(a, name)
    a("s_cmp_ge_u32 s2, 224")
    a("s_cbranch_scc1 g1_done")
    a("s_load_dwordx4 s[4:7], s[0:1], 56")
    a("s_load_dwordx2 s[8:9], s[0:1], 104")
    a("s_and_b32 s10, s2, 7")
    a("s_lshr_b32 s11, s2, 3")
    a("s_mul_i32 s12, s11, 37")
    a("s_lshr_b32 s12, s12, 8")
    a("s_mul_i32 s13, s12, 7")
    a("s_sub_u32 s13, s11, s13")
    a("s_and_b32 s14, s10, 3")
    a("s_mul_i32 s14, s14, 7")
    a("s_add_u32 s14, s14, s13")
    a("s_lshr_b32 s15, s10, 2")
    a("s_lshl_b32 s15, s15, 2")
    a("s_add_u32 s15, s15, s12")
    a("v_and_b32 v1, 63, v0")
    a("v_lshrrev_b32 v2, 6, v0")
    a("s_nop 0")
    a("v_readfirstlane_b32 s16, v2")
    a("s_waitcnt lgkmcnt(0)")
    srd(a, 20, 4, S * F * 2)
    srd(a, 24, 8, S * D * 2, WS_H)
    srd(a, 28, 8, D * F * 2, WS_U)
    srd(a, 32, 6, F * 2)
    a("s_and_b32 s17, s16, 1")
    a("s_bfe_u32 s18, s16, 0x10001")
    a("s_lshr_b32 s19, s16, 2")
    a("v_lshrrev_b32 v3, 4, v1")
    a("s_lshl_b32 s37, s14, 7")
    a("s_lshl_b32 s38, s17, 6")
    a("s_add_u32 s37, s37, s38")
    a("s_lshl_b32 s38, s19, 5")
    a("s_add_u32 s37, s37, s38")
    a("v_lshl_add_u32 v24, v3, 2, s37")
    a("v_lshlrev_b32 v24, 1, v24")
    BI = 28
    for ii in range(2):
        a(f"buffer_load_dwordx2 v[{BI+2*ii}:{BI+2*ii+1}], v24, s[32:35], 0 offen offset:{32*ii}")
    a("s_mul_i32 s37, s15, 112")
    a("s_lshl_b32 s38, s14, 2")
    a("s_add_u32 s37, s37, s38")
    a("s_lshl_b32 s38, s17, 1")
    a("s_add_u32 s37, s37, s38")
    a("s_add_u32 s37, s37, s19")
    a("s_lshl_b32 s37, s37, 3")
    a("s_lshl_b32 s38, s18, 2")
    a("s_add_u32 s37, s37, s38")
    a("s_lshl_b32 s37, s37, 10")
    a("v_lshl_add_u32 v25, v1, 4, s37")
    a("s_and_b32 s37, s16, 3")
    a("s_lshl_b32 s37, s37, 13")
    a("v_lshl_add_u32 v26, v1, 4, s37")
    c1 = -2.0 * 0.7978845608028654 * 1.4426950408889634
    c2 = c1 * 0.044715
    a(f"s_mov_b32 s42, {fb(c1):#x}"); a(f"s_mov_b32 s43, {fb(c1):#x}")
    a(f"s_mov_b32 s44, {fb(c2):#x}"); a(f"s_mov_b32 s45, {fb(c2):#x}")
    a("s_cmp_ge_u32 s16, 4")
    a("s_cbranch_scc1 g1_loader")
    a("v_bfe_u32 v4, v1, 2, 2")
    a("v_and_b32 v5, 3, v1")
    a("v_and_b32 v6, 1, v3")
    a("v_lshl_or_b32 v6, v6, 2, v4")
    a("v_lshl_add_u32 v7, v3, 3, v4")
    a("v_lshlrev_b32 v7, 8, v7")
    a("v_lshl_add_u32 v7, v5, 3, v7")
    AC, BC = 8, 12
    AA, BA = 16, 20
    a("s_lshl_b32 s19, s17, 2")
    a("s_lshl_b32 s36, s18, 2")
    for i in range(4):
        a(f"s_add_u32 s37, s19, {i}")
        a(f"v_xor_b32 v{AC+i}, s37, v6")
        a(f"v_lshl_add_u32 v{AC+i}, v{AC+i}, 5, v7")
        a(f"s_add_u32 s37, s36, {i}")
        a(f"v_xor_b32 v{BC+i}, s37, v6")
        a(f"v_lshl_add_u32 v{BC+i}, v{BC+i}, 5, v7")
        a(f"v_add_u32 v{BC+i}, 0x4000, v{BC+i}")
        a(f"v_mov_b32 v{AA+i}, v{AC+i}")
        a(f"v_mov_b32 v{BA+i}, v{BC+i}")
    FA = [32, 64]; FB = [48, 80]
    ACC = 96
    for i in range(64):
        a(f"v_mov_b32 v{ACC+i}, 0")
    a("s_mov_b32 s39, 0")
    a("s_mov_b32 s40, 0")
    a("s_barrier")
    def reads(buf, ks):
        L = []
        for i in range(4):
            for hh in range(2):
                L.append(f"ds_read_b64_tr_b16 v[{FA[buf]+4*i+2*hh}:{FA[buf]+4*i+2*hh+1}], v{AA+i} offset:{ks*8192+hh*1024}")
            for hh in range(2):
                L.append(f"ds_read_b64_tr_b16 v[{FB[buf]+4*i+2*hh}:{FB[buf]+4*i+2*hh+1}], v{BA+i} offset:{ks*8192+hh*1024}")
        return L
    def mfmas(buf):
        L = []
        for i in range(4):
            for j in range(4):
                c = ACC + 16 * i + 4 * j
                L.append(f"v_mfma_f32_16x16x32_bf16 v[{c}:{c+3}], v[{FA[buf]+4*i}:{FA[buf]+4*i+3}], v[{FB[buf]+4*j}:{FB[buf]+4*j+3}], v[{c}:{c+3}]")
        return L
    for r in reads(0, 0): a(r)
    a.label("g1_cloop")
    a("s_waitcnt lgkmcnt(0)")
    interleave(a, mfmas(0), reads(1, 1))
    a("s_waitcnt lgkmcnt(0)")
    a("s_barrier")
    a(f"s_add_u32 s39, s39, {SLOT}")
    a(f"s_cmp_eq_u32 s39, {SLOT*NST}")
    a("s_cselect_b32 s39, 0, s39")
    M = mfmas(1)
    a(M[0])
    for i in range(4):
        a(f"v_add_u32 v{AA+i}, s39, v{AC+i}")
        a(f"v_add_u32 v{BA+i}, s39, v{BC+i}")
    interleave(a, M[1:], reads(0, 0))
    a("s_add_u32 s40, s40, 1")
    a(f"s_cmp_lt_u32 s40, {NK}")
    a("s_cbranch_scc1 g1_cloop")
    a("s_waitcnt lgkmcnt(0)")
    a("s_nop 7")
    for q in range(8):
        a(f"ds_write_b128 v26, v[{ACC+32+4*q}:{ACC+32+4*q+3}] offset:{1024*q}")
    a("s_waitcnt lgkmcnt(0) vmcnt(0)")
    a("s_barrier")
    gelu_epi(a, [[ACC + 16 * ii + 4 * j for j in range(4)] for ii in range(2)], BI, 25, "s[28:31]", 32)
    a("s_endpgm")
    a.label("g1_loader")
    a("s_sub_u32 s16, s16, 4")
    a("v_and_b32 v4, 15, v1")
    a("v_lshlrev_b32 v5, 1, v3")
    a("v_xor_b32 v5, v5, v4")
    a("v_xor_b32 v6, 8, v5")
    a("s_lshl_b32 s17, s16, 4")
    a("v_add_u32 v3, s17, v3")
    a("s_lshl_b32 s18, s14, 8")
    a("s_lshl_b32 s19, s15, 8")
    a("s_movk_i32 s36, 7168")
    VA, VB = 8, 12
    for q in range(4):
        c16 = 5 if q < 2 else 6
        a(f"v_add_u32 v7, {4*q}, v3")
        a(f"v_mul_lo_u32 v{VA+q}, v7, s36")
        a(f"v_lshl_add_u32 v{VA+q}, v{c16}, 4, v{VA+q}")
        a(f"v_add_u32 v{VA+q}, s18, v{VA+q}")
        a(f"v_lshlrev_b32 v{VB+q}, 11, v7")
        a(f"v_lshl_add_u32 v{VB+q}, v{c16}, 4, v{VB+q}")
        a(f"v_add_u32 v{VB+q}, s19, v{VB+q}")
        if q:
            a(f"v_subrev_u32 v{VA+q}, {1024*q}, v{VA+q}")
            a(f"v_subrev_u32 v{VB+q}, {1024*q}, v{VB+q}")
    a("s_lshl_b32 s37, s16, 12")
    a("s_mov_b32 s38, 0")
    a("s_mov_b32 s39, 0")
    a("s_mov_b32 s40, s37")
    def issue():
        a("s_mov_b32 m0, s40")
        a("s_nop 0")
        for q in range(4):
            a(f"buffer_load_dwordx4 v{VA+q}, s[20:23], s38 offen offset:{1024*q} lds")
        a("s_add_u32 m0, s40, 0x4000")
        a("s_nop 0")
        for q in range(4):
            a(f"buffer_load_dwordx4 v{VB+q}, s[24:27], s39 offen offset:{1024*q} lds")
        a(f"s_add_u32 s38, s38, {64*7168}")
        a(f"s_add_u32 s39, s39, {64*2048}")
        a(f"s_add_u32 s40, s40, {SLOT}")
        a(f"s_add_u32 s41, s37, {SLOT*NST}")
        a("s_cmp_eq_u32 s40, s41")
        a("s_cselect_b32 s40, s37, s40")
    for st in range(NST):
        issue()
    a(f"s_waitcnt vmcnt({8*(NST-1)})")
    a("s_barrier")
    a("s_mov_b32 s46, 0")
    a.label("g1_lloop")
    a(f"s_waitcnt vmcnt({8*(NST-2)})")
    a("s_barrier")
    issue()
    a("s_add_u32 s46, s46, 1")
    a(f"s_cmp_lt_u32 s46, {NK-NST}")
    a("s_cbranch_scc1 g1_lloop")
    for j in range(NST):
        if j <= NST - 2:
            a(f"s_waitcnt vmcnt({8*(NST-2-j)})")
        a("s_barrier")
    a("s_barrier")
    for q in range(8):
        a(f"ds_read_b128 v[{64+4*q}:{64+4*q+3}], v26 offset:{1024*q}")
    a("s_waitcnt lgkmcnt(0)")
    gelu_epi(a, [[64 + 16 * ii + 4 * j for j in range(4)] for ii in range(2)], BI, 25, "s[28:31]", 32)
    a.label("g1_done")
    a("s_endpgm")
    return kernel_desc(name, 160, 48), SLOT * NST

def gen_gemm2(a, NST=6, XAIT=8, compute=1, same=0, VP=0, MAPD=2, STAMP=0, G=1, NT2=0, R2=3584, TP2=0):
    if VP: NST = 2
    if TP2: XAIT = 15
    name = "gemm2_kernel"
    NK = F // 64
    SLOT = 24576
    kernel_header(a, name)
    a("s_cmp_ge_u32 s2, 256")
    a("s_cbranch_scc1 g2_done")
    a("s_load_dwordx4 s[4:7], s[0:1], 72")
    a("s_load_dwordx2 s[8:9], s[0:1], 104")
    a("s_load_dwordx2 s[44:45], s[0:1], 0")
    a("s_load_dwordx2 s[46:47], s[0:1], 88")
    a("s_and_b32 s10, s2, 7")
    a("s_lshr_b32 s11, s2, 3")
    ld = MAPD
    a(f"s_and_b32 s12, s10, {(1<<(3-ld))-1}")
    a(f"s_lshl_b32 s12, s12, {ld}")
    a(f"s_and_b32 s13, s11, {(1<<ld)-1}")
    a("s_add_u32 s14, s12, s13")
    a(f"s_lshr_b32 s12, s10, {3-ld}")
    a(f"s_lshl_b32 s12, s12, {5-ld}")
    a(f"s_lshr_b32 s13, s11, {ld}")
    a("s_add_u32 s15, s12, s13")
    if same & 1: a("s_mov_b32 s14, 0")
    if same & 2: a("s_mov_b32 s15, 0")
    a("v_and_b32 v1, 63, v0")
    a("v_lshrrev_b32 v2, 6, v0")
    a("s_nop 0")
    a("v_readfirstlane_b32 s16, v2")
    if STAMP == 5: a("s_memrealtime s[60:61]")
    a("s_waitcnt lgkmcnt(0)")
    def cst():
        if STAMP != 5: return
        a("s_memrealtime s[60:61]")
        a("s_waitcnt lgkmcnt(0)")
        a("v_mov_b32 v175, s60")
        a("buffer_store_dword v175, v174, s[64:67], 0 offen")
        a("v_add_u32 v174, 4, v174")
    if STAMP == 5:
        srd(a, 64, 8, 1 << 20, 64 * MB)
        a("s_lshl_b32 s62, s2, 2")
        a("s_add_u32 s62, s62, s16")
        a("s_lshl_b32 s62, s62, 8")
        a("v_mov_b32 v174, s62")
        a("v_mov_b32 v175, s60")
        a("buffer_store_dword v175, v174, s[64:67], 0 offen")
        a("v_add_u32 v174, 4, v174")
    srd(a, 20, 8, D * F * 2, WS_U)
    srd(a, 24, 4, F * S * 2)
    a("s_cmp_ge_u32 s16, 4")
    a("s_cbranch_scc1 g2_loader")
    srd(a, 28, 46, S * D * 2)
    srd(a, 32, 44, S * D * 2)
    srd(a, 48, 8, S * 8, WS_STATS)
    srd(a, 52, 8, D * S * 2, WS_Y2T)
    srd(a, 56, 6, S * 2)
    a("s_and_b32 s17, s16, 1")
    a("s_lshr_b32 s18, s16, 1")
    a("v_lshrrev_b32 v3, 4, v1")
    a("v_bfe_u32 v4, v1, 2, 2")
    a("v_and_b32 v5, 3, v1")
    a("v_and_b32 v6, 15, v1")
    a("s_lshl_b32 s41, s15, 6")
    a("s_lshl_b32 s42, s18, 5")
    a("s_add_u32 s41, s41, s42")
    a("v_add_u32 v16, s41, v6")
    a("s_lshl_b32 s41, s14, 7")
    a("s_lshl_b32 s42, s17, 6")
    a("s_add_u32 s41, s41, s42")
    a("v_lshl_add_u32 v17, v3, 2, s41")
    a("v_lshlrev_b32 v18, 11, v16")
    a("v_lshl_add_u32 v18, v17, 1, v18")
    a("v_lshlrev_b32 v19, 12, v17")
    a("v_lshl_add_u32 v19, v16, 1, v19")
    a("v_lshlrev_b32 v20, 3, v16")
    a("v_lshlrev_b32 v21, 1, v16")
    XR = 112
    YR = 128
    _real_a = a
    a = Asm()
    for j in range(2):
        a(f"buffer_load_dwordx2 v[{24+2*j}:{25+2*j}], v20, s[48:51], 0 offen offset:{128*j}")
        a(f"buffer_load_ushort v{28+j}, v21, s[56:59], 0 offen offset:{32*j}")
    for j in range(2):
        a(f"v_add_u32 v22, {j*16*2048}, v18")
        for i in range(4):
            a(f"buffer_load_dwordx2 v[{XR+4*i+2*j}:{XR+1+4*i+2*j}], v22, s[32:35], 0 offen offset:{32*i}")
    for i in range(4):
        for r in range(4):
            a(f"v_add_u32 v22, {(16*i+r)*4096}, v19")
            for j in range(2):
                a(f"buffer_load_ushort v{YR+8*i+4*j+r}, v22, s[52:55], 0 offen offset:{32*j}")
    if R2 < F:
        tot = (F - R2) * S * 2
        perw = (tot // 256 + 127) // 128 * 128
        a(f"s_mul_i32 s37, s2, {perw}")
        a(f"s_add_u32 s37, s37, {R2*S*2}")
        a("v_lshl_add_u32 v23, v0, 7, s37")
        for t in range((perw + 32767) // 32768):
            a(f"s_mov_b32 s37, {32768*t}")
            a("buffer_load_dword v2, v23, s[24:27], s37 offen")
    if TP2:
        a("v_lshrrev_b32 v23, 3, v1")
        a("v_lshlrev_b32 v23, 6, v23")
        a("v_and_b32 v2, 7, v1")
        a("v_add_u32 v23, v23, v2")
        a("s_lshl_b32 s37, s14, 3")
        a(f"s_add_u32 s37, s37, {TP2*64}")
        a("v_add_u32 v23, s37, v23")
        a("v_lshlrev_b32 v23, 12, v23")
        a("s_lshl_b32 s37, s15, 7")
        a("v_add_u32 v23, s37, v23")
        for t in range((TP2 + 31) // 32):
            a("s_lshl_b32 s37, s16, 3")
            a(f"s_add_u32 s37, s37, {32*t - TP2 & 0xffffffff}")
            a("s_lshl_b32 s37, s37, 18")
            a("v_add_u32 v7, s37, v23")
            a("buffer_load_dword v2, v7, s[24:27], 0 offen nt")
    LOADS = [l.strip() for l in a.lines]
    a = _real_a
    a("s_lshl_b32 s19, s17, 12")
    a("v_lshl_add_u32 v8, v1, 4, s19")
    a("v_lshrrev_b32 v7, 1, v4")
    a("v_and_b32 v10, 1, v3")
    a("v_lshl_or_b32 v7, v10, 1, v7")
    a("v_lshl_add_u32 v12, v3, 2, v4")
    a("v_lshlrev_b32 v12, 7, v12")
    a("v_lshl_add_u32 v12, v5, 3, v12")
    a("v_add_u32 v12, 0x4000, v12")
    a("s_lshl_b32 s19, s18, 1")
    for j in range(2):
        a(f"s_add_u32 s36, s19, {j}")
        a(f"v_xor_b32 v{9+j}, s36, v7")
        a(f"v_lshl_add_u32 v{9+j}, v{9+j}, 5, v12")
    for i in range(3): a(f"v_mov_b32 v{12+i}, v{8+i}")
    FA = [32, 56]; FB = [48, 72]
    ACC = 80
    for i in range(32): a(f"v_mov_b32 v{ACC+i}, 0")
    a("s_mov_b32 s39, 0")
    a("s_mov_b32 s40, 0")
    a("s_barrier")
    cst()
    def reads(buf, ks):
        L = []
        for j in range(2):
            for hh in range(2):
                L.append(f"ds_read_b64_tr_b16 v[{FB[buf]+4*j+2*hh}:{FB[buf]+4*j+2*hh+1}], v{13+j} offset:{ks*4096+hh*2048}")
        for i in range(4):
            L.append(f"ds_read_b128 v[{FA[buf]+4*i}:{FA[buf]+4*i+3}], v12 offset:{ks*8192+1024*i}")
        return L
    def mfmas(buf):
        L = []
        for i in range(4):
            for j in range(2):
                c = ACC + 8 * i + 4 * j
                L.append(f"v_mfma_f32_16x16x32_bf16 v[{c}:{c+3}], v[{FA[buf]+4*i}:{FA[buf]+4*i+3}], v[{FB[buf]+4*j}:{FB[buf]+4*j+3}], v[{c}:{c+3}]")
        return L
    if compute:
        for r in reads(0, 0): a(r)
    a.label("g2_cloop")
    for gi in range(G):
        a("s_waitcnt lgkmcnt(0)")
        if compute: interleave(a, mfmas(0), reads(1, 1))
        if gi == G - 1:
            a("s_waitcnt lgkmcnt(0)")
            a("s_barrier")
        a(f"s_add_u32 s39, s39, {SLOT}")
        a(f"s_cmp_eq_u32 s39, {SLOT*NST}")
        a("s_cselect_b32 s39, 0, s39")
        M = mfmas(1)
        if compute:
            if gi != G - 1: a("s_waitcnt lgkmcnt(0)")
            a(M[0])
            for i in range(3): a(f"v_add_u32 v{12+i}, s39, v{8+i}")
            interleave(a, M[1:], reads(0, 0))
    XA0 = 14
    blocks = {}
    nl = sum("buffer_load" in l for l in LOADS)
    per = (nl + 6) // 7
    cur, cnt, k = [], 0, 0
    for l in LOADS:
        cur.append(l)
        if "buffer_load" in l:
            cnt += 1
            if cnt == per:
                blocks[k] = cur; cur, cnt, k = [], 0, k + 1
    if cur: blocks[k] = cur
    _real_a = a
    for j in range(2):
        m, sd, rc = 24 + 2 * j, 25 + 2 * j, 30 + j
        for i in range(4):
            a = Asm()
            if i == 0 and j == 0:
                a("s_waitcnt vmcnt(0)")
                for jj in range(2):
                    a(f"v_lshlrev_b32 v{28+jj}, 16, v{28+jj}")
                    a(f"v_rcp_f32 v{30+jj}, v{25+2*jj}")
            xr = XR + 4 * i + 2 * j
            X, T, Q, t = 160, 164, 168, 172
            a(f"v_lshlrev_b32 v{X}, 16, v{xr}")
            a(f"v_and_b32 v{X+1}, 0xffff0000, v{xr}")
            a(f"v_lshlrev_b32 v{X+2}, 16, v{xr+1}")
            a(f"v_and_b32 v{X+3}, 0xffff0000, v{xr+1}")
            for r in range(4): a(f"v_sub_f32 v{T+r}, v{X+r}, v{m}")
            rnd2(a, T, T + 1, t); rnd2(a, T + 2, T + 3, t)
            for r in range(4):
                a(f"v_mul_f32 v{Q+r}, v{T+r}, v{rc}")
                a(f"v_fma_f32 v{T+r}, -v{Q+r}, v{sd}, v{T+r}")
                a(f"v_fmac_f32 v{Q+r}, v{T+r}, v{rc}")
            rnd2(a, Q, Q + 1, t); rnd2(a, Q + 2, Q + 3, t)
            for r in range(4):
                a(f"v_lshlrev_b32 v{T+r}, 16, v{YR+8*i+4*j+r}")
                a(f"v_mul_f32 v{Q+r}, v{Q+r}, v{T+r}")
            rnd2(a, Q, Q + 1, t); rnd2(a, Q + 2, Q + 3, t)
            for r in range(4): a(f"v_add_f32 v{X+r}, v{X+r}, v{Q+r}")
            a(f"v_cvt_pk_bf16_f32 v{xr}, v{X}, v{X+1}")
            a(f"v_cvt_pk_bf16_f32 v{xr+1}, v{X+2}, v{X+3}")
            blocks[XA0 + 4 * j + i] = [l.strip() for l in a.lines]
    a = _real_a
    a(f"s_cmp_gt_u32 s40, {max(blocks)}")
    a("s_cbranch_scc1 g2_noxa")
    for k in sorted(blocks):
        a(f"s_cmp_lg_u32 s40, {k}")
        a(f"s_cbranch_scc1 g2_blk{k}")
        for l in blocks[k]: a(l)
        a("s_branch g2_noxa")
        a.label(f"g2_blk{k}")
    a.label("g2_noxa")
    cst()
    a("s_add_u32 s40, s40, 1")
    a(f"s_cmp_lt_u32 s40, {NK//G}")
    a("s_cbranch_scc1 g2_cloop")
    a("s_waitcnt lgkmcnt(0)")
    a("s_nop 7")
    a("v_lshlrev_b32 v22, 3, v3")
    a("v_lshl_add_u32 v22, v3, 4, v22")
    a("v_add_u32 v18, v18, v22")
    for j in range(2):
        b2 = 28 + j
        O = 128 + 8 * j
        for i in range(4):
            c = ACC + 8 * i + 4 * j
            xr = XR + 4 * i + 2 * j
            X, t = 160, 172
            rnd2(a, c, c + 1, t); rnd2(a, c + 2, c + 3, t)
            for r in range(4): a(f"v_add_f32 v{c+r}, v{c+r}, v{b2}")
            rnd2(a, c, c + 1, t); rnd2(a, c + 2, c + 3, t)
            a(f"v_lshlrev_b32 v{X}, 16, v{xr}")
            a(f"v_and_b32 v{X+1}, 0xffff0000, v{xr}")
            a(f"v_lshlrev_b32 v{X+2}, 16, v{xr+1}")
            a(f"v_and_b32 v{X+3}, 0xffff0000, v{xr+1}")
            for r in range(4): a(f"v_add_f32 v{X+r}, v{X+r}, v{c+r}")
            a(f"v_cvt_pk_bf16_f32 v{O+2*i}, v{X}, v{X+1}")
            a(f"v_cvt_pk_bf16_f32 v{O+2*i+1}, v{X+2}, v{X+3}")
        a("s_nop 1")
        for k in range(2):
            a(f"v_permlane32_swap_b32 v{O+k}, v{O+4+k}")
            a(f"v_permlane32_swap_b32 v{O+2+k}, v{O+6+k}")
        a("s_nop 1")
        for k in range(2):
            a(f"v_permlane16_swap_b32 v{O+k}, v{O+2+k}")
            a(f"v_permlane16_swap_b32 v{O+4+k}, v{O+6+k}")
        a(f"v_add_u32 v22, {j*16*2048}, v18")
        a(f"buffer_store_dwordx4 v[{O}:{O+3}], v22, s[28:31], 0 offen")
        a(f"buffer_store_dwordx4 v[{O+4}:{O+7}], v22, s[28:31], 0 offen offset:16")
    cst()
    a("s_waitcnt vmcnt(0)")
    cst()
    a("s_endpgm")
    a.label("g2_loader")
    a("s_sub_u32 s16, s16, 4")
    a("v_lshrrev_b32 v3, 3, v1")
    a("v_bfe_u32 v4, v1, 4, 2")
    a("v_and_b32 v5, 7, v1")
    a(f"s_mul_i32 s17, s14, {112*8192}")
    a("s_lshl_b32 s18, s16, 12")
    a("s_add_u32 s17, s17, s18")
    a("v_lshl_add_u32 v12, v1, 4, s17")
    VB = 16
    a("v_lshlrev_b32 v6, 1, v4")
    a("v_xor_b32 v6, v6, v5")
    a("s_lshl_b32 s17, s16, 4")
    a("v_add_u32 v8, s17, v3")
    a("s_lshl_b32 s18, s15, 7")
    for q in range(2):
        a(f"v_add_u32 v9, {8*q}, v8")
        a(f"v_lshlrev_b32 v{VB+q}, 12, v9")
        a(f"v_lshl_add_u32 v{VB+q}, v6, 4, v{VB+q}")
        a(f"v_add_u32 v{VB+q}, s18, v{VB+q}")
        if q: a(f"v_subrev_u32 v{VB+q}, {1024*q}, v{VB+q}")
    if VP:
        a("s_lshl_b32 s37, s16, 12")
        a("v_lshl_add_u32 v20, v1, 4, s37")
        a("s_lshl_b32 s43, s16, 11")
        a("s_add_u32 s43, s43, 0x4000")
        a("v_lshl_add_u32 v21, v1, 4, s43")
        for q in range(2):
            if q: a(f"v_add_u32 v{VB+q}, {1024*q}, v{VB+q}")
        QB = 24
        def ld(s):
            p = s % VP
            a(f"s_mov_b32 s38, {s*0x4000}")
            a(f"s_mov_b32 s39, {s*64*4096}")
            for q in range(4):
                a(f"buffer_load_dwordx4 v[{QB+24*p+4*q}:{QB+24*p+4*q+3}], v12, s[20:23], s38 offen offset:{1024*q}")
            for q in range(2):
                a(f"buffer_load_dwordx4 v[{QB+24*p+16+4*q}:{QB+24*p+16+4*q+3}], v{VB+q}, s[24:27], s39 offen")
        def wr(s):
            p = s % VP
            younger = min(s + VP - 1, NK - 1) - s
            a(f"s_waitcnt vmcnt({6*younger})")
            so = (s % 2) * SLOT
            for q in range(4):
                a(f"ds_write_b128 v20, v[{QB+24*p+4*q}:{QB+24*p+4*q+3}] offset:{so+1024*q}")
            for q in range(2):
                a(f"ds_write_b128 v21, v[{QB+24*p+16+4*q}:{QB+24*p+16+4*q+3}] offset:{so+1024*q}")
            a("s_waitcnt lgkmcnt(0)")
            if s + VP < NK: ld(s + VP)
        for s in range(VP): ld(s)
        wr(0)
        a("s_barrier")
        for s in range(NK):
            if s + 1 < NK: wr(s + 1)
            a("s_barrier")
    else:
        a("s_lshl_b32 s37, s16, 12")
        a("s_lshl_b32 s43, s16, 11")
        a("s_add_u32 s43, s43, 0x4000")
        a("s_mov_b32 s38, 0")
        a("s_mov_b32 s39, 0")
        a("s_mov_b32 s40, 0")
        def issue():
            a("s_add_u32 m0, s40, s37")
            a("s_nop 0")
            for q in range(4):
                a(f"buffer_load_dwordx4 v12, s[20:23], s38 offen offset:{1024*q} lds")
            a("s_add_u32 m0, s40, s43")
            a("s_nop 0")
            for q in range(2):
                a(f"buffer_load_dwordx4 v{VB+q}, s[24:27], s39 offen offset:{1024*q} {'nt ' if NT2 else ''}lds")
            a("s_add_u32 s38, s38, 0x4000")
            a(f"s_add_u32 s39, s39, {64*4096}")
            a(f"s_add_u32 s40, s40, {SLOT}")
            a(f"s_cmp_eq_u32 s40, {SLOT*NST}")
            a("s_cselect_b32 s40, 0, s40")
        for st in range(NST): issue()
        a(f"s_waitcnt vmcnt({6*(NST-G)})")
        a("s_barrier")
        a("s_mov_b32 s42, 0")
        NG = NK // G
        NFULL = (NK - NST) // G
        assert (NK - NST) % G == 0
        a.label("g2_lloop")
        a(f"s_waitcnt vmcnt({6*(NST-2*G)})")
        a("s_barrier")
        for gi in range(G): issue()
        a("s_add_u32 s42, s42, 1")
        a(f"s_cmp_lt_u32 s42, {NFULL}")
        a("s_cbranch_scc1 g2_lloop")
        rem = NST - G
        for j in range(NG - NFULL):
            rem -= G
            if rem >= 0:
                a(f"s_waitcnt vmcnt({6*rem})")
            a("s_barrier")
    a.label("g2_done")
    a("s_endpgm")
    return kernel_desc(name, max(176, 24 + 24 * VP), 72), SLOT * NST

def build(opts):
    a = Asm()
    a.lines.append('.amdgcn_target "amdgcn-amd-amdhsa--gfx950"')
    a.lines.append(".text")
    descs = []; launches = []
    npf = opts.get("npf", 256)
    descs.append(gen_prep(a, npf))
    launches.append(f"; @launch kernel=prep_kernel grid=({768+npf},1,1) block=(256,1,1) lds=0")
    d, lds = gen_conv(a)
    descs.append(d)
    launches.append(f"; @launch kernel=conv_kernel grid=(1024,1,1) block=(64,1,1) lds={lds}")
    d, lds = gen_gemm1(a, NST=opts.get("nst", 4))
    descs.append(d)
    launches.append(f"; @launch kernel=gemm1_kernel grid=(224,1,1) block=(512,1,1) lds={lds}")
    d, lds = gen_gemm2(a, NST=opts.get("nst2", 6), compute=opts.get("compute2", 1), same=opts.get("same2", 0), VP=opts.get("vp2", 0), MAPD=opts.get("mapd", 2), STAMP=opts.get("stamp", 0), G=opts.get("g2", 1))
    descs.append(d)
    launches.append(f"; @launch kernel=gemm2_kernel grid=(256,1,1) block=(512,1,1) lds={lds}")
    txt = HEADER + "\n".join(launches) + "\n" + a.text() + '.section .rodata,"a"\n.p2align 6\n' + ".p2align 6\n".join(descs)
    return txt

if __name__ == "__main__":
    opts = {}
    for arg in sys.argv[2:]:
        k, v = arg.split("=")
        opts[k] = int(v)
    open(sys.argv[1], "w").write(build(opts))
```

```python
from asmlib import *
from gen import rnd2, S, D, F, MB, WS_H, WS_STATS, WS_KVT, WS_Y2T, WS_U
from gen3 import interleave

def gen_gemm2(a, NST=5, R2=3584, XA0=4, STAMP=0):
    name = "gemm2_kernel"
    NK = F // 64
    SLOT = 24576
    EB = SLOT * NST
    kernel_header(a, name)
    a("s_cmp_ge_u32 s2, 256")
    a("s_cbranch_scc1 g2_done")
    a("s_load_dwordx4 s[4:7], s[0:1], 72")
    a("s_load_dwordx2 s[8:9], s[0:1], 104")
    a("s_load_dwordx2 s[44:45], s[0:1], 0")
    a("s_load_dwordx2 s[46:47], s[0:1], 88")
    a("s_and_b32 s10, s2, 7")
    a("s_lshr_b32 s11, s2, 3")
    a("s_and_b32 s12, s10, 1")
    a("s_lshl_b32 s12, s12, 2")
    a("s_and_b32 s13, s11, 3")
    a("s_add_u32 s14, s12, s13")
    a("s_lshr_b32 s12, s10, 1")
    a("s_lshl_b32 s12, s12, 3")
    a("s_lshr_b32 s13, s11, 2")
    a("s_add_u32 s15, s12, s13")
    a("v_and_b32 v1, 63, v0")
    a("v_lshrrev_b32 v2, 6, v0")
    a("s_nop 0")
    a("v_readfirstlane_b32 s16, v2")
    a("s_waitcnt lgkmcnt(0)")
    srd(a, 20, 8, D * F * 2, WS_U)
    srd(a, 24, 4, F * S * 2)
    a("s_cmp_ge_u32 s16, 4")
    a("s_cbranch_scc1 g2_loader")
    srd(a, 28, 46, S * D * 2)
    srd(a, 48, 8, S * 8, WS_STATS)
    srd(a, 56, 6, S * 2)
    a("s_and_b32 s17, s16, 1")
    a("s_lshr_b32 s18, s16, 1")
    a("v_lshrrev_b32 v3, 4, v1")
    a("v_bfe_u32 v4, v1, 2, 2")
    a("v_and_b32 v5, 3, v1")
    a("v_and_b32 v6, 15, v1")
    a("s_lshl_b32 s41, s15, 6")
    a("s_lshl_b32 s42, s18, 5")
    a("s_add_u32 s41, s41, s42")
    a("v_add_u32 v16, s41, v6")
    a("s_lshl_b32 s41, s14, 7")
    a("s_lshl_b32 s42, s17, 6")
    a("s_add_u32 s41, s41, s42")
    a("v_lshl_add_u32 v17, v3, 4, s41")
    a("v_lshlrev_b32 v18, 11, v16")
    a("v_lshl_add_u32 v18, v17, 1, v18")
    a("v_lshlrev_b32 v20, 3, v16")
    a("v_lshlrev_b32 v21, 1, v16")
    for j in range(2):
        a(f"buffer_load_dwordx2 v[{24+2*j}:{25+2*j}], v20, s[48:51], 0 offen offset:{128*j}")
        a(f"buffer_load_ushort v{28+j}, v21, s[56:59], 0 offen offset:{32*j}")
    if R2 < F:
        tot = (F - R2) * S * 2
        perw = (tot // 256 + 127) // 128 * 128
        a(f"s_mul_i32 s37, s2, {perw}")
        a(f"s_add_u32 s37, s37, {R2*S*2}")
        a("v_lshl_add_u32 v23, v0, 7, s37")
        for t in range((perw + 32767) // 32768):
            a(f"s_mov_b32 s37, {32768*t}")
            a("buffer_load_dword v2, v23, s[24:27], s37 offen")
    XAD = 112
    a("s_lshl_b32 s36, s18, 13")
    a("v_lshlrev_b32 v19, 8, v6")
    a("v_add_u32 v19, s36, v19")
    a("v_and_b32 v22, 1, v3")
    a("v_lshl_add_u32 v19, v22, 3, v19")
    a(f"v_add_u32 v19, {EB}, v19")
    a("v_lshrrev_b32 v22, 1, v3")
    a("s_lshl_b32 s36, s17, 3")
    a("v_add_u32 v22, s36, v22")
    for i in range(4):
        a(f"v_add_u32 v23, {2*i}, v22")
        a("v_xor_b32 v23, v23, v6")
        a(f"v_lshl_add_u32 v{XAD+i}, v23, 4, v19")
    a("s_lshl_b32 s19, s17, 12")
    a("v_lshl_add_u32 v8, v1, 4, s19")
    a("v_lshrrev_b32 v7, 1, v4")
    a("v_and_b32 v10, 1, v3")
    a("v_lshl_or_b32 v7, v10, 1, v7")
    a("v_lshl_add_u32 v12, v3, 2, v4")
    a("v_lshlrev_b32 v12, 7, v12")
    a("v_lshl_add_u32 v12, v5, 3, v12")
    a("s_lshl_b32 s19, s18, 1")
    YAD = 116
    a("s_lshl_b32 s37, s17, 13")
    a(f"s_add_u32 s37, s37, {EB+16384}")
    for j in range(2):
        a(f"s_add_u32 s36, s19, {j}")
        a(f"v_xor_b32 v{9+j}, s36, v7")
        a(f"v_lshl_add_u32 v{9+j}, v{9+j}, 5, v12")
        a(f"v_add_u32 v{YAD+j}, s37, v{9+j}")
        a(f"v_add_u32 v{9+j}, 0x4000, v{9+j}")
    for i in range(3): a(f"v_mov_b32 v{12+i}, v{8+i}")
    FA = [32, 56]; FB = [48, 72]
    ACC = 80
    XR = 120
    for i in range(32): a(f"v_mov_b32 v{ACC+i}, 0")
    a("s_mov_b32 s39, 0")
    a("s_mov_b32 s40, 0")
    a("s_barrier")
    def reads(buf, ks):
        L = []
        for j in range(2):
            for hh in range(2):
                L.append(f"ds_read_b64_tr_b16 v[{FB[buf]+4*j+2*hh}:{FB[buf]+4*j+2*hh+1}], v{13+j} offset:{ks*4096+hh*2048}")
        for i in range(4):
            L.append(f"ds_read_b128 v[{FA[buf]+4*i}:{FA[buf]+4*i+3}], v12 offset:{ks*8192+1024*i}")
        return L
    def mfmas(buf):
        L = []
        for i in range(4):
            for j in range(2):
                c = ACC + 8 * i + 4 * j
                L.append(f"v_mfma_f32_16x16x32_bf16 v[{c}:{c+3}], v[{FA[buf]+4*i}:{FA[buf]+4*i+3}], v[{FB[buf]+4*j}:{FB[buf]+4*j+3}], v[{c}:{c+3}]")
        return L
    for r in reads(0, 0): a(r)
    a.label("g2_cloop")
    a("s_waitcnt lgkmcnt(0)")
    interleave(a, mfmas(0), reads(1, 1))
    a("s_waitcnt lgkmcnt(0)")
    a("s_barrier")
    a(f"s_add_u32 s39, s39, {SLOT}")
    a(f"s_cmp_eq_u32 s39, {SLOT*NST}")
    a("s_cselect_b32 s39, 0, s39")
    M = mfmas(1)
    a(M[0])
    for i in range(3): a(f"v_add_u32 v{12+i}, s39, v{8+i}")
    interleave(a, M[1:], reads(0, 0))
    blocks = {}
    for j in range(2):
        m, sd, rc = 24 + 2 * j, 25 + 2 * j, 30 + j
        for i in range(4):
            b = Asm()
            if i == 0 and j == 0:
                b("s_waitcnt vmcnt(0)")
                for jj in range(2):
                    b(f"v_lshlrev_b32 v{28+jj}, 16, v{28+jj}")
                    b(f"v_rcp_f32 v{30+jj}, v{25+2*jj}")
            xr = XR + 4 * i + 2 * j
            X, T, Q, t, Y = 140, 144, 148, 152, 154
            b(f"ds_read_b64 v[{xr}:{xr+1}], v{XAD+i} offset:{4096*j}")
            b(f"ds_read_b64_tr_b16 v[{Y}:{Y+1}], v{YAD+j} offset:{2048*i}")
            b("s_waitcnt lgkmcnt(0)")
            b(f"v_lshlrev_b32 v{X}, 16, v{xr}")
            b(f"v_and_b32 v{X+1}, 0xffff0000, v{xr}")
            b(f"v_lshlrev_b32 v{X+2}, 16, v{xr+1}")
            b(f"v_and_b32 v{X+3}, 0xffff0000, v{xr+1}")
            for r in range(4): b(f"v_sub_f32 v{T+r}, v{X+r}, v{m}")
            rnd2(b, T, T + 1, t); rnd2(b, T + 2, T + 3, t)
            for r in range(4):
                b(f"v_mul_f32 v{Q+r}, v{T+r}, v{rc}")
                b(f"v_fma_f32 v{T+r}, -v{Q+r}, v{sd}, v{T+r}")
                b(f"v_fmac_f32 v{Q+r}, v{T+r}, v{rc}")
            rnd2(b, Q, Q + 1, t); rnd2(b, Q + 2, Q + 3, t)
            b(f"v_lshlrev_b32 v{T}, 16, v{Y}")
            b(f"v_and_b32 v{T+1}, 0xffff0000, v{Y}")
            b(f"v_lshlrev_b32 v{T+2}, 16, v{Y+1}")
            b(f"v_and_b32 v{T+3}, 0xffff0000, v{Y+1}")
            for r in range(4): b(f"v_mul_f32 v{Q+r}, v{Q+r}, v{T+r}")
            rnd2(b, Q, Q + 1, t); rnd2(b, Q + 2, Q + 3, t)
            for r in range(4): b(f"v_add_f32 v{X+r}, v{X+r}, v{Q+r}")
            b(f"v_cvt_pk_bf16_f32 v{xr}, v{X}, v{X+1}")
            b(f"v_cvt_pk_bf16_f32 v{xr+1}, v{X+2}, v{X+3}")
            blocks[XA0 + 4 * j + i] = [l.strip() for l in b.lines]
    a(f"s_sub_u32 s36, s40, {XA0}")
    a("s_cmp_gt_u32 s36, 7")
    a("s_cbranch_scc1 g2_noxa")
    for k in sorted(blocks):
        a(f"s_cmp_lg_u32 s40, {k}")
        a(f"s_cbranch_scc1 g2_blk{k}")
        for l in blocks[k]: a(l)
        a("s_branch g2_noxa")
        a.label(f"g2_blk{k}")
    a.label("g2_noxa")
    a("s_add_u32 s40, s40, 1")
    a(f"s_cmp_lt_u32 s40, {NK}")
    a("s_cbranch_scc1 g2_cloop")
    a("s_waitcnt lgkmcnt(0)")
    a("s_nop 7")
    for j in range(2):
        b2 = 28 + j
        O = 32 + 8 * j
        for i in range(4):
            c = ACC + 8 * i + 4 * j
            xr = XR + 4 * i + 2 * j
            X, t = 140, 152
            rnd2(a, c, c + 1, t); rnd2(a, c + 2, c + 3, t)
            for r in range(4): a(f"v_add_f32 v{c+r}, v{c+r}, v{b2}")
            rnd2(a, c, c + 1, t); rnd2(a, c + 2, c + 3, t)
            a(f"v_lshlrev_b32 v{X}, 16, v{xr}")
            a(f"v_and_b32 v{X+1}, 0xffff0000, v{xr}")
            a(f"v_lshlrev_b32 v{X+2}, 16, v{xr+1}")
            a(f"v_and_b32 v{X+3}, 0xffff0000, v{xr+1}")
            for r in range(4): a(f"v_add_f32 v{X+r}, v{X+r}, v{c+r}")
            a(f"v_cvt_pk_bf16_f32 v{O+2*i}, v{X}, v{X+1}")
            a(f"v_cvt_pk_bf16_f32 v{O+2*i+1}, v{X+2}, v{X+3}")
        a("s_nop 1")
        for k in range(2):
            a(f"v_permlane32_swap_b32 v{O+k}, v{O+4+k}")
            a(f"v_permlane32_swap_b32 v{O+2+k}, v{O+6+k}")
        a("s_nop 1")
        for k in range(2):
            a(f"v_permlane16_swap_b32 v{O+k}, v{O+2+k}")
            a(f"v_permlane16_swap_b32 v{O+4+k}, v{O+6+k}")
        a(f"v_add_u32 v22, {j*16*2048}, v18")
        a(f"buffer_store_dwordx4 v[{O}:{O+3}], v22, s[28:31], 0 offen")
        a(f"buffer_store_dwordx4 v[{O+4}:{O+7}], v22, s[28:31], 0 offen offset:16")
    a("s_endpgm")
    a.label("g2_loader")
    srd(a, 32, 44, S * D * 2)
    srd(a, 52, 8, D * S * 2, WS_Y2T)
    a("s_sub_u32 s16, s16, 4")
    a("v_lshrrev_b32 v3, 3, v1")
    a("v_bfe_u32 v4, v1, 4, 2")
    a("v_and_b32 v5, 7, v1")
    a(f"s_mul_i32 s17, s14, {112*8192}")
    a("s_lshl_b32 s18, s16, 12")
    a("s_add_u32 s17, s17, s18")
    a("v_lshl_add_u32 v12, v1, 4, s17")
    VB = 16
    a("v_lshlrev_b32 v6, 1, v4")
    a("v_xor_b32 v6, v6, v5")
    a("s_lshl_b32 s17, s16, 4")
    a("v_add_u32 v8, s17, v3")
    a("s_lshl_b32 s18, s15, 7")
    for q in range(2):
        a(f"v_add_u32 v9, {8*q}, v8")
        a(f"v_lshlrev_b32 v{VB+q}, 12, v9")
        a(f"v_lshl_add_u32 v{VB+q}, v6, 4, v{VB+q}")
        a(f"v_add_u32 v{VB+q}, s18, v{VB+q}")
        if q: a(f"v_subrev_u32 v{VB+q}, {1024*q}, v{VB+q}")
    a("s_lshl_b32 s37, s16, 12")
    a("s_lshl_b32 s43, s16, 11")
    a("s_add_u32 s43, s43, 0x4000")
    a("s_mov_b32 s38, 0")
    a("s_mov_b32 s39, 0")
    a("s_mov_b32 s40, 0")
    def issue():
        a("s_add_u32 m0, s40, s37")
        a("s_nop 0")
        for q in range(4):
            a(f"buffer_load_dwordx4 v12, s[20:23], s38 offen offset:{1024*q} lds")
        a("s_add_u32 m0, s40, s43")
        a("s_nop 0")
        for q in range(2):
            a(f"buffer_load_dwordx4 v{VB+q}, s[24:27], s39 offen offset:{1024*q} lds")
        a("s_add_u32 s38, s38, 0x4000")
        a(f"s_add_u32 s39, s39, {64*4096}")
        a(f"s_add_u32 s40, s40, {SLOT}")
        a(f"s_cmp_eq_u32 s40, {SLOT*NST}")
        a("s_cselect_b32 s40, 0, s40")
    issue()
    a("v_and_b32 v20, 15, v1")
    a("s_lshl_b32 s17, s15, 6")
    a("s_lshl_b32 s18, s16, 4")
    a("s_add_u32 s17, s17, s18")
    a("s_lshl_b32 s18, s14, 8")
    a(f"s_add_u32 m0, s37, {EB}")
    for q in range(4):
        a(f"v_add_u32 v21, {4*q}, v4")
        a("v_xor_b32 v22, v21, v20")
        a("v_add_u32 v21, s17, v21")
        a("v_lshlrev_b32 v21, 11, v21")
        a("v_lshl_add_u32 v21, v22, 4, v21")
        a("v_add_u32 v21, s18, v21")
        if q: a(f"v_subrev_u32 v21, {1024*q}, v21")
        a(f"buffer_load_dwordx4 v21, s[32:35], 0 offen offset:{1024*q} lds")
    a("s_lshl_b32 s17, s14, 7")
    a("s_lshl_b32 s18, s16, 5")
    a("s_add_u32 s17, s17, s18")
    a("s_lshl_b32 s18, s15, 7")
    a(f"s_add_u32 m0, s37, {EB+16384}")
    for q in range(4):
        a(f"v_add_u32 v21, {8*q}, v3")
        a("v_add_u32 v21, s17, v21")
        a("v_lshlrev_b32 v21, 12, v21")
        a("v_lshl_add_u32 v21, v6, 4, v21")
        a("v_add_u32 v21, s18, v21")
        if q: a(f"v_subrev_u32 v21, {1024*q}, v21")
        a(f"buffer_load_dwordx4 v21, s[52:55], 0 offen offset:{1024*q} lds")
    for st in range(1, NST): issue()
    a(f"s_waitcnt vmcnt({6*(NST-1)+8})")
    a("s_barrier")
    a("s_mov_b32 s42, 0")
    a.label("g2_lloop")
    a(f"s_waitcnt vmcnt({6*(NST-2)})")
    a("s_barrier")
    issue()
    a("s_add_u32 s42, s42, 1")
    a(f"s_cmp_lt_u32 s42, {NK-NST}")
    a("s_cbranch_scc1 g2_lloop")
    for j in range(NST):
        if j <= NST - 2:
            a(f"s_waitcnt vmcnt({6*(NST-2-j)})")
        a("s_barrier")
    a.label("g2_done")
    a("s_endpgm")
    return kernel_desc(name, 160, 64), EB + 32768
```

```python
import sys, struct
from asmlib import *
from gen import rnd2, wave_sum, gen_prep, HEADER, S, D, F, MB, WS_H, WS_STATS, WS_KVT, WS_Y2T, WS_U
from gen3 import gelu_epi, gen_gemm2, interleave, fb

KOFF = 4608
KCP2 = 4160
CONV_LDS = KOFF + 2 * KCP2

def conv_setup(a, ring_bytes):
    a("s_lshl_b32 s65, s64, 12")
    a("s_add_u32 s48, s68, s65"); a("s_addc_u32 s49, s69, 0"); a("s_movk_i32 s50, 4096"); a("s_mov_b32 s51, 0x00020000")
    a("s_add_u32 s52, s8, s65"); a("s_addc_u32 s53, s9, 0")
    a(f"s_add_u32 s56, s52, {WS_Y2T}"); a("s_addc_u32 s57, s53, 0"); a("s_movk_i32 s58, 4096"); a("s_mov_b32 s59, 0x00020000")
    a(f"s_add_u32 s52, s52, {WS_KVT}"); a("s_addc_u32 s53, s53, 0"); a("s_movk_i32 s54, 4096"); a("s_mov_b32 s55, 0x00020000")
    srd(a, 60, 70, D * 2)
    a(f"s_mul_i32 s66, s16, {CONV_LDS}")
    a(f"s_add_u32 s66, s66, {ring_bytes}")
    a("v_lshlrev_b32 v21, 4, v1")
    a("s_add_u32 m0, s66, 480")
    a("s_nop 0")
    for q in range(4):
        a(f"buffer_load_dwordx4 v21, s[52:55], 0 offen offset:{1024*q} lds")
    a("v_lshlrev_b32 v22, 6, v1")
    a("v_subrev_u32 v22, 32, v22")
    for i in range(4):
        a(f"v_add_u32 v23, {16*i}, v22")
        a(f"buffer_load_dwordx4 v[{64+4*i}:{67+4*i}], v23, s[48:51], 0 offen")
    a("v_add_u32 v23, 64, v22")
    a("buffer_load_dword v80, v23, s[48:51], 0 offen")
    a("v_mov_b32 v23, 4064")
    a("buffer_load_dwordx4 v[84:87], v23, s[48:51], 0 offen")
    a("buffer_load_dwordx4 v[88:91], v23, s[48:51], 0 offen offset:16")
    a("v_mov_b32 v92, 0")
    a("s_lshl_b32 s65, s64, 1")
    a("v_mov_b32 v22, s65")
    a("buffer_load_ushort v20, v22, s[60:63], 0 offen")
    for i in range(4): a(f"v_mov_b32 v{32+i}, 0")
    a("v_add_u32 v22, s66, v21")
    a("v_cmp_gt_u32 vcc, 30, v1")
    a("s_and_saveexec_b64 s[72:73], vcc")
    a("ds_write_b128 v22, v[32:35]")
    a("s_mov_b64 exec, s[72:73]")
    a("v_and_b32 v22, 15, v1")
    a("v_lshrrev_b32 v23, 4, v1")
    a("v_add_u32 v16, 1, v22")
    a("v_and_b32 v16, 1, v16")
    a("v_lshlrev_b32 v17, 3, v23")
    a("v_sub_u32 v17, v22, v17")
    a("v_sub_u32 v17, v17, v16")
    a("v_lshlrev_b32 v17, 1, v17")
    a(f"v_mul_u32_u24 v16, {KCP2}, v16")
    a("v_add_u32 v16, v16, v17")
    a("v_add_u32 v16, s66, v16")
    a(f"v_add_u32 v192, {KOFF+50}, v16")
    for i in range(1, 4): a(f"v_add_u32 v{192+i}, {KOFF+50+1024*i}, v16")
    a("v_lshlrev_b32 v17, 5, v22")
    a("v_lshl_add_u32 v17, v23, 4, v17")
    a("v_add_u32 v17, s66, v17")
    a("v_and_b32 v18, 1, v23")
    a("v_lshlrev_b32 v18, 3, v18")
    a("v_lshrrev_b32 v19, 1, v23")
    a("v_lshlrev_b32 v19, 4, v19")
    a("v_lshl_add_u32 v19, v22, 5, v19")
    a("v_sub_u32 v18, v19, v18")
    a("v_add_u32 v18, s66, v18")
    a("v_add_u32 v18, 488, v18")
    a("v_lshlrev_b32 v19, 5, v22")
    a("v_lshl_add_u32 v19, v23, 3, v19")

CACC = 32
CFA = [64, 128]; CFB = [96, 160]
def conv_flat():
    L = []
    for i in range(32): L.append(f"v_mov_b32 v{CACC+i}, 0")
    def reads(buf, rho):
        R = []
        for P in range(8):
            off = 512 * P + 64 * rho
            bi, o4 = off // 1024, (off % 1024) // 4
            R.append(f"ds_read2_b32 v[{CFA[buf]+4*P}:{CFA[buf]+4*P+1}], v{192+bi} offset0:{o4} offset1:{o4+1}")
            R.append(f"ds_read2_b32 v[{CFA[buf]+4*P+2}:{CFA[buf]+4*P+3}], v{192+bi} offset0:{o4+2} offset1:{o4+3}")
            R.append(f"ds_read_b128 v[{CFB[buf]+4*P}:{CFB[buf]+4*P+3}], v17 offset:{512*P-64*rho+448}")
        return R
    def mf(buf):
        M = []
        for P in range(8):
            for Dl in range(8 - P):
                T = P + Dl
                M.append(f"v_mfma_f32_16x16x32_bf16 v[{CACC+4*T}:{CACC+4*T+3}], v[{CFA[buf]+4*P}:{CFA[buf]+4*P+3}], v[{CFB[buf]+4*Dl}:{CFB[buf]+4*Dl+3}], v[{CACC+4*T}:{CACC+4*T+3}]")
        return M
    L.append("v_lshlrev_b32 v21, 6, v1")
    L.append("v_add_u32 v21, s66, v21")
    for m in range(16):
        L.append(f"v_alignbit_b32 v{96+m}, v{64+m+1}, v{64+m}, 16")
    for q in range(4):
        L.append(f"ds_write_b128 v21, v[{64+4*q}:{67+4*q}] offset:{KOFF+16*q}")
        L.append(f"ds_write_b128 v21, v[{96+4*q}:{99+4*q}] offset:{KOFF+KCP2+16*q}")
    for m in range(8):
        L.append(f"v_alignbit_b32 v{112+m}, v{84+m+1}, v{84+m}, 16")
    L.append("v_cmp_eq_u32 vcc, 0, v1")
    L.append("s_and_saveexec_b64 s[72:73], vcc")
    for q in range(2):
        L.append(f"ds_write_b128 v21, v[{84+4*q}:{87+4*q}] offset:{KOFF+4096+16*q}")
        L.append(f"ds_write_b128 v21, v[{112+4*q}:{115+4*q}] offset:{KOFF+KCP2+4096+16*q}")
    L.append("s_mov_b64 exec, s[72:73]")
    L.append("s_waitcnt lgkmcnt(0)")
    NB = len(L)
    L += reads(0, 0)
    for rho in range(8):
        L.append("s_waitcnt lgkmcnt(0)")
        R = reads((rho + 1) & 1, rho + 1) if rho < 7 else []
        for m in mf(rho & 1):
            L.append(m)
            if R: L.append(R.pop(0))
    return L, NB

def conv_flat_sb():
    L0, NB = conv_flat()
    L = L0[:NB]
    for rho in range(8):
        for P in range(8):
            off = 512 * P + 64 * rho
            bi, o4 = off // 1024, (off % 1024) // 4
            L.append(f"ds_read2_b32 v[{64+4*P}:{64+4*P+1}], v{24+bi} offset0:{o4} offset1:{o4+1}")
            L.append(f"ds_read2_b32 v[{64+4*P+2}:{64+4*P+3}], v{24+bi} offset0:{o4+2} offset1:{o4+3}")
            L.append(f"ds_read_b128 v[{96+4*P}:{96+4*P+3}], v17 offset:{512*P-64*rho+448}")
        L.append("s_waitcnt lgkmcnt(0)")
        for P in range(8):
            for Dl in range(8 - P):
                T = P + Dl
                L.append(f"v_mfma_f32_16x16x32_bf16 v[{CACC+4*T}:{CACC+4*T+3}], v[{64+4*P}:{64+4*P+3}], v[{96+4*Dl}:{96+4*Dl+3}], v[{CACC+4*T}:{CACC+4*T+3}]")
    return L, NB

def conv_epilogue(a):
    a("v_lshlrev_b32 v20, 16, v20")
    for T in range(8):
        a(f"ds_read_b64 v[{64+2*T}:{65+2*T}], v18 offset:{512*T}")
    a("s_nop 7")
    a("s_waitcnt lgkmcnt(0)")
    for T in range(8):
        c = CACC + 4 * T
        a(f"v_and_b32 v80, 0xffff0000, v{65+2*T}")
        a(f"v_lshlrev_b32 v81, 16, v{65+2*T}")
        a(f"v_and_b32 v82, 0xffff0000, v{64+2*T}")
        a(f"v_lshlrev_b32 v83, 16, v{64+2*T}")
        for r in range(4): a(f"v_mul_f32 v{80+r}, v{80+r}, v20")
        rnd2(a, 80, 81, 84); rnd2(a, 82, 83, 84)
        rnd2(a, c, c + 1, 84); rnd2(a, c + 2, c + 3, 84)
        for r in range(4): a(f"v_add_f32 v{c+r}, v{c+r}, v{80+r}")
        o = 86 + 2 * (T & 1)
        a(f"v_cvt_pk_bf16_f32 v{o}, v{c}, v{c+1}")
        a(f"v_cvt_pk_bf16_f32 v{o+1}, v{c+2}, v{c+3}")
        a(f"buffer_store_dwordx2 v[{o}:{o+1}], v19, s[56:59], 0 offen offset:{512*T}")

def gen_gemm1(a, NST=3, CSPAN=26, PFON=1, CONVON=1, NT1=0, PRIO=0, STAMP=0, R1=2048, R2=3584, XMAP=0, TP1=0, CMODE=0, IPER=2):
    name = "gemm1_kernel"
    NK = S // 64
    SLOT = 32768
    RING = SLOT * NST
    kernel_header(a, name)
    a("s_cmp_ge_u32 s2, 256")
    a("s_cbranch_scc1 g1_done")
    a("s_load_dwordx4 s[4:7], s[0:1], 56")
    a("s_load_dwordx2 s[8:9], s[0:1], 104")
    a("s_load_dwordx4 s[68:71], s[0:1], 32")
    a("s_load_dwordx2 s[74:75], s[0:1], 72")
    a("s_and_b32 s10, s2, 7")
    a("s_lshr_b32 s11, s2, 3")
    if XMAP:
        a("s_lshr_b32 s12, s11, 3")
        a("s_lshl_b32 s12, s12, 3")
        a("s_add_u32 s14, s10, s12")
        a("s_and_b32 s15, s11, 7")
    else:
        a("s_mul_i32 s12, s11, 37")
        a("s_lshr_b32 s12, s12, 8")
        a("s_mul_i32 s13, s12, 7")
        a("s_sub_u32 s13, s11, s13")
        a("s_and_b32 s14, s10, 3")
        a("s_mul_i32 s14, s14, 7")
        a("s_add_u32 s14, s14, s13")
        a("s_lshr_b32 s15, s10, 2")
        a("s_lshl_b32 s15, s15, 2")
        a("s_add_u32 s15, s15, s12")
    a("v_and_b32 v1, 63, v0")
    a("v_lshrrev_b32 v2, 6, v0")
    a("s_nop 0")
    a("v_readfirstlane_b32 s16, v2")
    if STAMP == 1: a("s_memrealtime s[76:77]")
    a("s_waitcnt lgkmcnt(0)")
    if XMAP:
        a("s_cmp_ge_u32 s14, 28")
    else:
        a("s_cmp_ge_u32 s2, 224")
    a("s_cbranch_scc1 g1_extra")
    srd(a, 20, 4, S * F * 2)
    srd(a, 24, 8, S * D * 2, WS_H)
    srd(a, 28, 8, D * F * 2, WS_U)
    srd(a, 32, 6, F * 2)
    a("s_and_b32 s17, s16, 1")
    a("s_bfe_u32 s18, s16, 0x10001")
    a("s_lshr_b32 s19, s16, 2")
    a("v_lshrrev_b32 v3, 4, v1")
    a("s_lshl_b32 s37, s14, 7")
    a("s_lshl_b32 s38, s17, 6")
    a("s_add_u32 s37, s37, s38")
    a("s_lshl_b32 s38, s19, 5")
    a("s_add_u32 s37, s37, s38")
    a("v_lshl_add_u32 v24, v3, 2, s37")
    a("v_lshlrev_b32 v24, 1, v24")
    BI = 28
    for ii in range(2):
        a(f"buffer_load_dwordx2 v[{BI+2*ii}:{BI+2*ii+1}], v24, s[32:35], 0 offen offset:{32*ii}")
    a("s_mul_i32 s37, s15, 112")
    a("s_lshl_b32 s38, s14, 2")
    a("s_add_u32 s37, s37, s38")
    a("s_lshl_b32 s38, s17, 1")
    a("s_add_u32 s37, s37, s38")
    a("s_add_u32 s37, s37, s19")
    a("s_lshl_b32 s37, s37, 3")
    a("s_lshl_b32 s38, s18, 2")
    a("s_add_u32 s37, s37, s38")
    a("s_lshl_b32 s37, s37, 10")
    a("v_lshl_add_u32 v25, v1, 4, s37")
    a("s_and_b32 s37, s16, 3")
    a("s_lshl_b32 s37, s37, 13")
    a("v_lshl_add_u32 v26, v1, 4, s37")
    c1 = -2.0 * 0.7978845608028654 * 1.4426950408889634
    c2 = c1 * 0.044715
    a(f"s_mov_b32 s42, {fb(c1):#x}"); a(f"s_mov_b32 s43, {fb(c1):#x}")
    a(f"s_mov_b32 s44, {fb(c2):#x}"); a(f"s_mov_b32 s45, {fb(c2):#x}")
    if CMODE == 3:
        a("s_cmp_ge_u32 s16, 8")
        a("s_cbranch_scc1 g1_convw")
    a("s_cmp_ge_u32 s16, 4")
    a("s_cbranch_scc1 g1_loader")
    a("v_bfe_u32 v4, v1, 2, 2")
    a("v_and_b32 v5, 3, v1")
    a("v_and_b32 v6, 1, v3")
    a("v_lshl_or_b32 v6, v6, 2, v4")
    a("v_lshl_add_u32 v7, v3, 3, v4")
    a("v_lshlrev_b32 v7, 8, v7")
    a("v_lshl_add_u32 v7, v5, 3, v7")
    AC, BC = 8, 12
    AA, BA = 16, 20
    a("s_lshl_b32 s19, s17, 2")
    a("s_lshl_b32 s36, s18, 2")
    for i in range(4):
        a(f"s_add_u32 s37, s19, {i}")
        a(f"v_xor_b32 v{AC+i}, s37, v6")
        a(f"v_lshl_add_u32 v{AC+i}, v{AC+i}, 5, v7")
        a(f"s_add_u32 s37, s36, {i}")
        a(f"v_xor_b32 v{BC+i}, s37, v6")
        a(f"v_lshl_add_u32 v{BC+i}, v{BC+i}, 5, v7")
        a(f"v_add_u32 v{BC+i}, 0x4000, v{BC+i}")
        a(f"v_mov_b32 v{AA+i}, v{AC+i}")
        a(f"v_mov_b32 v{BA+i}, v{BC+i}")
    if R1 < S:
        tot = (S - R1) * F * 2
        perw = (tot // 224 + 127) // 128 * 128
        a(f"s_mul_i32 s37, s2, {perw}")
        a(f"s_add_u32 s37, s37, {R1*F*2}")
        a("v_lshl_add_u32 v27, v0, 7, s37")
        for t in range((perw + 32767) // 32768):
            a(f"s_mov_b32 s37, {32768*t}")
            a("buffer_load_dword v2, v27, s[20:23], s37 offen")
    if TP1:
        a("v_lshrrev_b32 v27, 4, v1")
        a("v_lshlrev_b32 v27, 6, v27")
        a("v_bfe_u32 v2, v1, 1, 3")
        a("v_add_u32 v27, v27, v2")
        a("s_lshl_b32 s37, s15, 3")
        a(f"s_add_u32 s37, s37, {TP1*64}")
        a("v_add_u32 v27, s37, v27")
        a("s_movk_i32 s37, 7168")
        a("v_mul_lo_u32 v27, v27, s37")
        a("v_and_b32 v2, 1, v1")
        a("v_lshl_add_u32 v27, v2, 7, v27")
        a("s_lshl_b32 s37, s14, 8")
        a("v_add_u32 v27, s37, v27")
        for t in range((TP1 + 15) // 16):
            a("s_lshl_b32 s37, s16, 2")
            a(f"s_add_u32 s37, s37, {16*t - TP1 & 0xffffffff}")
            a(f"s_mul_i32 s37, s37, {64*7168}")
            a("v_add_u32 v7, s37, v27")
            a("buffer_load_dword v2, v7, s[20:23], 0 offen nt")
    FA = [32, 64]; FB = [48, 80]
    ACC = 96
    for i in range(64):
        a(f"v_mov_b32 v{ACC+i}, 0")
    a("s_mov_b32 s39, 0")
    a("s_mov_b32 s40, 0")
    if PRIO: a("s_setprio 2")
    def stamp():
        if STAMP != 1: return
        a("s_memrealtime s[78:79]")
        a("s_waitcnt lgkmcnt(0)")
        a("v_mov_b32 v27, s78")
        a("buffer_store_dword v27, v2, s[48:51], 0 offen")
        a("v_add_u32 v2, 4, v2")
    if STAMP == 1:
        srd(a, 48, 8, 1 << 20, 64 * MB)
        a("s_lshl_b32 s52, s2, 2")
        a("s_add_u32 s52, s52, s16")
        a("s_lshl_b32 s52, s52, 8")
        a("v_mov_b32 v2, s52")
        a("v_mov_b32 v27, s76")
        a("buffer_store_dword v27, v2, s[48:51], 0 offen")
        a("v_add_u32 v2, 4, v2")
    a("s_barrier")
    stamp()
    def reads(buf, ks):
        L = []
        for i in range(4):
            for hh in range(2):
                L.append(f"ds_read_b64_tr_b16 v[{FA[buf]+4*i+2*hh}:{FA[buf]+4*i+2*hh+1}], v{AA+i} offset:{ks*8192+hh*1024}")
            for hh in range(2):
                L.append(f"ds_read_b64_tr_b16 v[{FB[buf]+4*i+2*hh}:{FB[buf]+4*i+2*hh+1}], v{BA+i} offset:{ks*8192+hh*1024}")
        return L
    def mfmas(buf):
        L = []
        for i in range(4):
            for j in range(4):
                c = ACC + 16 * i + 4 * j
                L.append(f"v_mfma_f32_16x16x32_bf16 v[{c}:{c+3}], v[{FA[buf]+4*i}:{FA[buf]+4*i+3}], v[{FB[buf]+4*j}:{FB[buf]+4*j+3}], v[{c}:{c+3}]")
        return L
    for r in reads(0, 0): a(r)
    a.label("g1_cloop")
    a("s_waitcnt lgkmcnt(0)")
    interleave(a, mfmas(0), reads(1, 1), IPER)
    a("s_waitcnt lgkmcnt(0)")
    a("s_barrier")
    a(f"s_add_u32 s39, s39, {SLOT}")
    a(f"s_cmp_eq_u32 s39, {SLOT*NST}")
    a("s_cselect_b32 s39, 0, s39")
    M = mfmas(1)
    a(M[0])
    for i in range(4):
        a(f"v_add_u32 v{AA+i}, s39, v{AC+i}")
        a(f"v_add_u32 v{BA+i}, s39, v{BC+i}")
    interleave(a, M[1:], reads(0, 0), IPER)
    stamp()
    if TP1:
        a("s_and_b32 s36, s40, 15")
        a("s_lshl_b32 s37, s16, 2")
        a("s_cmp_lg_u32 s36, s37")
        a("s_cbranch_scc1 g1_notouch")
        a(f"s_mul_i32 s37, s40, {64*7168}")
        a("buffer_load_dword v2, v27, s[20:23], s37 offen nt")
        a.label("g1_notouch")
    a("s_add_u32 s40, s40, 1")
    a(f"s_cmp_lt_u32 s40, {NK}")
    a("s_cbranch_scc1 g1_cloop")
    a("s_waitcnt lgkmcnt(0)")
    a("s_nop 7")
    for q in range(8):
        a(f"ds_write_b128 v26, v[{ACC+32+4*q}:{ACC+32+4*q+3}] offset:{1024*q}")
    a("s_waitcnt lgkmcnt(0) vmcnt(0)")
    a("s_barrier")
    stamp()
    gelu_epi(a, [[ACC + 16 * ii + 4 * j for j in range(4)] for ii in range(2)], BI, 25, "s[28:31]", 32)
    stamp()
    a("s_waitcnt vmcnt(0)")
    stamp()
    a("s_endpgm")
    a.label("g1_loader")
    a("s_sub_u32 s16, s16, 4")
    a("v_and_b32 v4, 15, v1")
    a("v_lshlrev_b32 v5, 1, v3")
    a("v_xor_b32 v5, v5, v4")
    a("v_xor_b32 v6, 8, v5")
    a("s_lshl_b32 s17, s16, 4")
    a("v_add_u32 v3, s17, v3")
    a("s_lshl_b32 s18, s14, 8")
    a("s_lshl_b32 s19, s15, 8")
    a("s_movk_i32 s36, 7168")
    VA, VB = 8, 12
    for q in range(4):
        c16 = 5 if q < 2 else 6
        a(f"v_add_u32 v7, {4*q}, v3")
        a(f"v_mul_lo_u32 v{VA+q}, v7, s36")
        a(f"v_lshl_add_u32 v{VA+q}, v{c16}, 4, v{VA+q}")
        a(f"v_add_u32 v{VA+q}, s18, v{VA+q}")
        a(f"v_lshlrev_b32 v{VB+q}, 11, v7")
        a(f"v_lshl_add_u32 v{VB+q}, v{c16}, 4, v{VB+q}")
        a(f"v_add_u32 v{VB+q}, s19, v{VB+q}")
        if q:
            a(f"v_subrev_u32 v{VA+q}, {1024*q}, v{VA+q}")
            a(f"v_subrev_u32 v{VB+q}, {1024*q}, v{VB+q}")
    a("s_lshl_b32 s37, s16, 12")
    outst = []
    def issue(s):
        slot = (s % NST) * SLOT
        a(f"s_add_u32 m0, s37, {slot}")
        a(f"s_mov_b32 s38, {s*64*7168}")
        a(f"s_mov_b32 s39, {s*64*2048}")
        for q in range(4):
            a(f"buffer_load_dwordx4 v{VA+q}, s[20:23], s38 offen offset:{1024*q} {'nt ' if NT1 else ''}lds")
        a(f"s_add_u32 m0, s37, {slot+0x4000}")
        a("s_nop 0")
        for q in range(4):
            a(f"buffer_load_dwordx4 v{VB+q}, s[24:27], s39 offen offset:{1024*q} lds")
        outst.extend([s] * 8)
    def wait_stage(s):
        cand = [i for i, t in enumerate(outst) if t == s]
        if not cand: return
        idx = max(cand)
        n = len(outst) - 1 - idx
        a(f"s_waitcnt vmcnt({n})")
        del outst[:idx + 1]
    if CMODE >= 1:
        for st in range(NST): issue(st)
        wait_stage(0)
        a("s_barrier")
        for s in range(NK):
            if s + 1 < NK: wait_stage(s + 1)
            a("s_barrier")
            if s + NST < NK: issue(s + NST)
    else:
        issue(0)
        a("s_lshl_b32 s64, s2, 2")
        a("s_add_u32 s64, s64, s16")
        conv_setup(a, RING)
        outst.extend(["c"] * 12)
        for st in range(1, NST): issue(st)
        flat, NB = conv_flat() if CONVON else (["s_nop 0"], 1)
        build, flat = flat[:NB], flat[NB:]
        wait_stage("c")
        for ins in build: a(ins)
        a("s_barrier")
        per = (len(flat) + CSPAN - 1) // CSPAN
        epi = Asm(); conv_epilogue(epi)
        epi = [l.strip() for l in epi.lines]
        nst_epi = sum("buffer_store" in l for l in epi)
        cuts = [i + 1 for i, l in enumerate(epi) if "buffer_store" in l]
        pieces = [epi[:cuts[1]], epi[cuts[1]:cuts[3]], epi[cuts[3]:cuts[5]], epi[cuts[5]:]]
        if STAMP == 2:
            srd(a, 76, 8, 1 << 20, 64 * MB)
            a("s_lshl_b32 s80, s2, 2")
            a("s_add_u32 s80, s80, s16")
            a("s_lshl_b32 s80, s80, 10")
            a("v_mov_b32 v196, s80")
        for s in range(NK):
            if STAMP == 2: a("s_memtime s[80:81]")
            if s + 1 < NK: wait_stage(s + 1)
            if STAMP == 2: a("s_memtime s[82:83]")
            a("s_barrier")
            if STAMP == 2: a("s_memtime s[84:85]")
            if PRIO: a("s_setprio 3")
            if s + NST < NK: issue(s + NST)
            if PRIO: a("s_setprio 0")
            if STAMP == 2:
                a("s_memtime s[86:87]")
                a("s_waitcnt lgkmcnt(0)")
                a("v_mov_b32 v200, s80"); a("v_mov_b32 v201, s82"); a("v_mov_b32 v202, s84"); a("v_mov_b32 v203, s86")
                a(f"buffer_store_dwordx4 v[200:203], v196, s[76:79], 0 offen offset:{16*s}")
                outst.append("st")
            if flat:
                chunk, flat = flat[:per], flat[per:]
            elif pieces:
                chunk = pieces.pop(0)
                outst.extend(["y"] * 2)
            else:
                chunk = []
            for ins in chunk: a(ins)
        assert not flat and not pieces
    a("s_barrier")
    for q in range(8):
        a(f"ds_read_b128 v[{64+4*q}:{64+4*q+3}], v26 offset:{1024*q}")
    a("s_waitcnt lgkmcnt(0)")
    gelu_epi(a, [[64 + 16 * ii + 4 * j for j in range(4)] for ii in range(2)], BI, 25, "s[28:31]", 32)
    a("s_endpgm")
    if CMODE == 3:
        def conv_wave(with_bar):
            a("s_sub_u32 s16, s16, 8")
            a("s_lshl_b32 s64, s2, 2")
            a("s_add_u32 s64, s64, s16")
            cs = Asm(); conv_setup(cs, RING)
            for l in cs.lines:
                for i in range(4): l = l.replace(f"v{192+i},", f"v{24+i},")
                a.lines.append(l)
            if with_bar:
                for _ in range(4): a("s_barrier")
            a("s_waitcnt vmcnt(0)")
            fl, nb = conv_flat_sb()
            ep = Asm(); conv_epilogue(ep)
            fl = fl + [l.strip() for l in ep.lines]
            if not with_bar:
                for ins in fl: a(ins)
            else:
                for ins in fl[:nb]: a(ins)
                fl = fl[nb:]
                per = (len(fl) + CSPAN - 1) // CSPAN
                while fl:
                    a("s_barrier")
                    for ins in fl[:per]: a(ins)
                    fl = fl[per:]
            a("s_endpgm")
        a.label("g1_convw")
        conv_wave(True)
        a.label("g1_convx")
        conv_wave(False)
    a.label("g1_extra")
    if CMODE == 3:
        a("s_cmp_ge_u32 s16, 8")
        a("s_cbranch_scc1 g1_convx")
    if CMODE in (2, 3):
        if PFON and R2:
            srd(a, 20, 74, F * S * 2)
            perw = R2 * S * 2 // 256
            assert perw % 2048 == 0
            a("s_sub_u32 s17, s2, 224")
            a("s_lshl_b32 s17, s17, 3")
            a("s_add_u32 s17, s17, s16")
            a(f"s_mul_i32 s17, s17, {perw}")
            a("v_lshl_add_u32 v4, v1, 4, s17")
            a("s_mov_b32 s18, 0")
            a.label("g1_pfl")
            for k in range(2):
                a(f"buffer_load_dwordx4 v[{8+4*k}:{11+4*k}], v4, s[20:23], s18 offen")
                a("s_add_u32 s18, s18, 1024")
            a(f"s_cmp_lt_u32 s18, {perw}")
            a("s_cbranch_scc1 g1_pfl")
        a("s_endpgm")
    elif CMODE == 1:
        a("s_sub_u32 s17, s2, 224")
        a("s_lshl_b32 s64, s17, 3")
        a("s_add_u32 s64, s64, s16")
        if PFON:
            srd(a, 20, 74, F * S * 2)
            perw = R2 * S * 2 // 256
            a(f"s_mul_i32 s18, s64, {perw}")
            a("v_lshl_add_u32 v4, v1, 7, s18")
            a("s_mov_b32 s18, 0")
        if PRIO:
            a("s_cmp_ge_u32 s16, 4")
            a("s_cbranch_scc1 g1_xloop")
            a("s_setprio 2")
        def xst():
            if STAMP != 3: return
            a("s_memtime s[84:85]")
            a("s_waitcnt lgkmcnt(0)")
            a("v_mov_b32 v200, s84")
            a("buffer_store_dword v200, v196, s[76:79], 0 offen")
            a("v_add_u32 v196, 4, v196")
        if STAMP == 3:
            srd(a, 76, 8, 1 << 20, 64 * MB)
            a("s_lshl_b32 s80, s64, 8")
            a("v_mov_b32 v196, s80")
        a.label("g1_xloop")
        xst()
        conv_setup(a, 0)
        a("s_waitcnt vmcnt(0)")
        xst()
        if PFON:
            for t in range((perw // 4 + 8191) // 8192):
                a("buffer_load_dword v2, v4, s[20:23], s18 offen")
                a("s_add_u32 s18, s18, 8192")
        fl, nb = conv_flat()
        for ins in fl[:nb]: a(ins)
        xst()
        for ins in fl[nb:]: a(ins)
        xst()
        conv_epilogue(a)
        xst()
        a("s_add_u32 s64, s64, 256")
        a(f"s_cmp_lt_u32 s64, {D}")
        a("s_cbranch_scc1 g1_xloop")
        a("s_endpgm")
    else:
        a("s_cmp_lt_u32 s16, 4")
        a("s_cbranch_scc1 g1_pf")
        a("s_sub_u32 s16, s16, 4")
        a("s_lshl_b32 s64, s2, 2")
        a("s_add_u32 s64, s64, s16")
        conv_setup(a, RING)
        a("s_waitcnt vmcnt(0)")
        for ins in conv_flat()[0]: a(ins)
        conv_epilogue(a)
        a("s_add_u32 s16, s16, 4")
        a.label("g1_pf")
        if not PFON: a("s_endpgm")
        per = R2 * S * 2 // 32
        u = per // 32
        assert u % 2048 == 0
        srd(a, 20, 74, F * S * 2)
        if XMAP:
            a("s_sub_u32 s17, s10, 4")
            a("s_lshl_b32 s17, s17, 3")
            a("s_add_u32 s17, s17, s15")
        else:
            a("s_sub_u32 s17, s2, 224")
        a(f"s_mul_i32 s17, s17, {per}")
        a(f"s_mul_i32 s18, s16, {5*u}")
        a("s_sub_u32 s19, s16, 4")
        a(f"s_mul_i32 s19, s19, {3*u}")
        a(f"s_add_u32 s19, s19, {20*u}")
        a("s_cmp_lt_u32 s16, 4")
        a("s_cselect_b32 s18, s18, s19")
        a(f"s_mov_b32 s36, {5*u}")
        a(f"s_cselect_b32 s19, s36, {3*u}")
        a("s_add_u32 s17, s17, s18")
        a("v_lshl_add_u32 v4, v1, 4, s17")
        a("s_mov_b32 s18, 0")
        a.label("g1_pfl")
        for k in range(2):
            a(f"buffer_load_dwordx4 v[{8+4*k}:{11+4*k}], v4, s[20:23], s18 offen")
            a("s_add_u32 s18, s18, 1024")
        a("s_cmp_lt_u32 s18, s19")
        a("s_cbranch_scc1 g1_pfl")
    a.label("g1_done")
    a("s_endpgm")
    return kernel_desc(name, 160 if CMODE == 3 else 204, 96), (RING if CMODE == 2 else max(RING, 8 * CONV_LDS) if CMODE == 1 else RING + 4 * CONV_LDS)

def build(opts):
    a = Asm()
    a.lines.append('.amdgcn_target "amdgcn-amd-amdhsa--gfx950"')
    a.lines.append(".text")
    descs = []; launches = []
    npf = opts.get("npf", 256)
    descs.append(gen_prep(a, npf, rev=1, pfw2=2, r1=opts.get("r1", 2048)))
    launches.append(f"; @launch kernel=prep_kernel grid=({768+npf},1,1) block=(256,1,1) lds=0")
    d, lds = gen_gemm1(a, NST=opts.get("nst", 3), CSPAN=opts.get("cspan", 26), PFON=opts.get("pfon", 1), CONVON=opts.get("convon", 1), NT1=opts.get("nt1", 0), PRIO=opts.get("prio", 0), STAMP=opts.get("stamp", 0), R1=opts.get("r1", 2048), R2=opts.get("r2", 3584), XMAP=opts.get("xmap", 0), TP1=opts.get("tp1", 0), CMODE=opts.get("cmode", 0), IPER=opts.get("iper", 2))
    descs.append(d)
    launches.append(f"; @launch kernel=gemm1_kernel grid=(256,1,1) block=({768 if opts.get('cmode', 0) == 3 else 512},1,1) lds={lds}")
    import gen7_g2
    d, lds = gen7_g2.gen_gemm2(a, NST=opts.get("nst2", 5), R2=opts.get("r2", 3584), XA0=opts.get("xa0", 4))
    descs.append(d)
    launches.append(f"; @launch kernel=gemm2_kernel grid=(256,1,1) block=(512,1,1) lds={lds}")
    txt = HEADER + "\n".join(launches) + "\n" + a.text() + '.section .rodata,"a"\n.p2align 6\n' + ".p2align 6\n".join(descs)
    return txt

if __name__ == "__main__":
    opts = {}
    for arg in sys.argv[2:]:
        k, v = arg.split("=")
        opts[k] = int(v)
    open(sys.argv[1], "w").write(build(opts))
```

```python
from asmlib import *
from gen import rnd2, S, D, F, MB, WS_H, WS_STATS, WS_KVT, WS_Y2T, WS_U
from gen3 import interleave

def gen_gemm2(a, NST=5, R2=3584, XA0=4, STAMP=0, ROT=0, ONT=0):
    name = "gemm2_kernel"
    NK = F // 64
    SLOT = 24576
    EB = SLOT * NST
    kernel_header(a, name)
    a("s_cmp_ge_u32 s2, 256")
    a("s_cbranch_scc1 g2_done")
    a("s_load_dwordx4 s[4:7], s[0:1], 72")
    a("s_load_dwordx2 s[8:9], s[0:1], 104")
    a("s_load_dwordx2 s[44:45], s[0:1], 0")
    a("s_load_dwordx2 s[46:47], s[0:1], 88")
    a("s_and_b32 s10, s2, 7")
    a("s_lshr_b32 s11, s2, 3")
    a("s_and_b32 s12, s10, 1")
    a("s_lshl_b32 s12, s12, 2")
    a("s_and_b32 s13, s11, 3")
    a("s_add_u32 s14, s12, s13")
    a("s_lshr_b32 s12, s10, 1")
    a("s_lshl_b32 s12, s12, 3")
    a("s_lshr_b32 s13, s11, 2")
    a("s_add_u32 s15, s12, s13")
    a("v_and_b32 v1, 63, v0")
    a("v_lshrrev_b32 v2, 6, v0")
    a("s_nop 0")
    a("v_readfirstlane_b32 s16, v2")
    a("s_waitcnt lgkmcnt(0)")
    srd(a, 20, 8, D * F * 2, WS_U)
    srd(a, 24, 4, F * S * 2)
    a("s_cmp_ge_u32 s16, 4")
    a("s_cbranch_scc1 g2_loader")
    srd(a, 28, 46, S * D * 2)
    srd(a, 48, 8, S * 8, WS_STATS)
    srd(a, 56, 6, S * 2)
    a("s_and_b32 s17, s16, 1")
    a("s_lshr_b32 s18, s16, 1")
    a("v_lshrrev_b32 v3, 4, v1")
    a("v_bfe_u32 v4, v1, 2, 2")
    a("v_and_b32 v5, 3, v1")
    a("v_and_b32 v6, 15, v1")
    a("s_lshl_b32 s41, s15, 6")
    a("s_lshl_b32 s42, s18, 5")
    a("s_add_u32 s41, s41, s42")
    a("v_add_u32 v16, s41, v6")
    a("s_lshl_b32 s41, s14, 7")
    a("s_lshl_b32 s42, s17, 6")
    a("s_add_u32 s41, s41, s42")
    a("v_lshl_add_u32 v17, v3, 4, s41")
    a("v_lshlrev_b32 v18, 11, v16")
    a("v_lshl_add_u32 v18, v17, 1, v18")
    a("v_lshlrev_b32 v20, 3, v16")
    a("v_lshlrev_b32 v21, 1, v16")
    for j in range(2):
        a(f"buffer_load_dwordx2 v[{24+2*j}:{25+2*j}], v20, s[48:51], 0 offen offset:{128*j}")
        a(f"buffer_load_ushort v{28+j}, v21, s[56:59], 0 offen offset:{32*j}")
    if R2 < F:
        tot = (F - R2) * S * 2
        perw = (tot // 256 + 127) // 128 * 128
        a(f"s_mul_i32 s37, s2, {perw}")
        a(f"s_add_u32 s37, s37, {R2*S*2}")
        a("v_lshl_add_u32 v23, v0, 7, s37")
        for t in range((perw + 32767) // 32768):
            a(f"s_mov_b32 s37, {32768*t}")
            a("buffer_load_dword v2, v23, s[24:27], s37 offen")
    XAD = 112
    a("s_lshl_b32 s36, s18, 13")
    a("v_lshlrev_b32 v19, 8, v6")
    a("v_add_u32 v19, s36, v19")
    a("v_and_b32 v22, 1, v3")
    a("v_lshl_add_u32 v19, v22, 3, v19")
    a(f"v_add_u32 v19, {EB}, v19")
    a("v_lshrrev_b32 v22, 1, v3")
    a("s_lshl_b32 s36, s17, 3")
    a("v_add_u32 v22, s36, v22")
    for i in range(4):
        a(f"v_add_u32 v23, {2*i}, v22")
        a("v_xor_b32 v23, v23, v6")
        a(f"v_lshl_add_u32 v{XAD+i}, v23, 4, v19")
    a("s_lshl_b32 s19, s17, 12")
    a("v_lshl_add_u32 v8, v1, 4, s19")
    a("v_lshrrev_b32 v7, 1, v4")
    a("v_and_b32 v10, 1, v3")
    a("v_lshl_or_b32 v7, v10, 1, v7")
    a("v_lshl_add_u32 v12, v3, 2, v4")
    a("v_lshlrev_b32 v12, 7, v12")
    a("v_lshl_add_u32 v12, v5, 3, v12")
    a("s_lshl_b32 s19, s18, 1")
    YAD = 116
    a("s_lshl_b32 s37, s17, 13")
    a(f"s_add_u32 s37, s37, {EB+16384}")
    for j in range(2):
        a(f"s_add_u32 s36, s19, {j}")
        a(f"v_xor_b32 v{9+j}, s36, v7")
        a(f"v_lshl_add_u32 v{9+j}, v{9+j}, 5, v12")
        a(f"v_add_u32 v{YAD+j}, s37, v{9+j}")
        a(f"v_add_u32 v{9+j}, 0x4000, v{9+j}")
    for i in range(3): a(f"v_mov_b32 v{12+i}, v{8+i}")
    FA = [32, 56]; FB = [48, 72]
    ACC = 80
    XR = 120
    for i in range(32): a(f"v_mov_b32 v{ACC+i}, 0")
    a("s_mov_b32 s39, 0")
    a("s_mov_b32 s40, 0")
    a("s_barrier")
    def reads(buf, ks):
        L = []
        for j in range(2):
            for hh in range(2):
                L.append(f"ds_read_b64_tr_b16 v[{FB[buf]+4*j+2*hh}:{FB[buf]+4*j+2*hh+1}], v{13+j} offset:{ks*4096+hh*2048}")
        for i in range(4):
            L.append(f"ds_read_b128 v[{FA[buf]+4*i}:{FA[buf]+4*i+3}], v12 offset:{ks*8192+1024*i}")
        return L
    def mfmas(buf):
        L = []
        for i in range(4):
            for j in range(2):
                c = ACC + 8 * i + 4 * j
                L.append(f"v_mfma_f32_16x16x32_bf16 v[{c}:{c+3}], v[{FA[buf]+4*i}:{FA[buf]+4*i+3}], v[{FB[buf]+4*j}:{FB[buf]+4*j+3}], v[{c}:{c+3}]")
        return L
    for r in reads(0, 0): a(r)
    a.label("g2_cloop")
    a("s_waitcnt lgkmcnt(0)")
    interleave(a, mfmas(0), reads(1, 1))
    a("s_waitcnt lgkmcnt(0)")
    a("s_barrier")
    a(f"s_add_u32 s39, s39, {SLOT}")
    a(f"s_cmp_eq_u32 s39, {SLOT*NST}")
    a("s_cselect_b32 s39, 0, s39")
    M = mfmas(1)
    a(M[0])
    for i in range(3): a(f"v_add_u32 v{12+i}, s39, v{8+i}")
    interleave(a, M[1:], reads(0, 0))
    blocks = {}
    for j in range(2):
        m, sd, rc = 24 + 2 * j, 25 + 2 * j, 30 + j
        for i in range(4):
            b = Asm()
            if i == 0 and j == 0:
                b("s_waitcnt vmcnt(0)")
                for jj in range(2):
                    b(f"v_lshlrev_b32 v{28+jj}, 16, v{28+jj}")
                    b(f"v_rcp_f32 v{30+jj}, v{25+2*jj}")
            xr = XR + 4 * i + 2 * j
            X, T, Q, t, Y = 140, 144, 148, 152, 154
            b(f"ds_read_b64 v[{xr}:{xr+1}], v{XAD+i} offset:{4096*j}")
            b(f"ds_read_b64_tr_b16 v[{Y}:{Y+1}], v{YAD+j} offset:{2048*i}")
            b("s_waitcnt lgkmcnt(0)")
            b(f"v_lshlrev_b32 v{X}, 16, v{xr}")
            b(f"v_and_b32 v{X+1}, 0xffff0000, v{xr}")
            b(f"v_lshlrev_b32 v{X+2}, 16, v{xr+1}")
            b(f"v_and_b32 v{X+3}, 0xffff0000, v{xr+1}")
            for r in range(4): b(f"v_sub_f32 v{T+r}, v{X+r}, v{m}")
            rnd2(b, T, T + 1, t); rnd2(b, T + 2, T + 3, t)
            for r in range(4):
                b(f"v_mul_f32 v{Q+r}, v{T+r}, v{rc}")
                b(f"v_fma_f32 v{T+r}, -v{Q+r}, v{sd}, v{T+r}")
                b(f"v_fmac_f32 v{Q+r}, v{T+r}, v{rc}")
            rnd2(b, Q, Q + 1, t); rnd2(b, Q + 2, Q + 3, t)
            b(f"v_lshlrev_b32 v{T}, 16, v{Y}")
            b(f"v_and_b32 v{T+1}, 0xffff0000, v{Y}")
            b(f"v_lshlrev_b32 v{T+2}, 16, v{Y+1}")
            b(f"v_and_b32 v{T+3}, 0xffff0000, v{Y+1}")
            for r in range(4): b(f"v_mul_f32 v{Q+r}, v{Q+r}, v{T+r}")
            rnd2(b, Q, Q + 1, t); rnd2(b, Q + 2, Q + 3, t)
            for r in range(4): b(f"v_add_f32 v{X+r}, v{X+r}, v{Q+r}")
            b(f"v_cvt_pk_bf16_f32 v{xr}, v{X}, v{X+1}")
            b(f"v_cvt_pk_bf16_f32 v{xr+1}, v{X+2}, v{X+3}")
            blocks[XA0 + 4 * j + i] = [l.strip() for l in b.lines]
    a(f"s_sub_u32 s36, s40, {XA0}")
    a("s_cmp_gt_u32 s36, 7")
    a("s_cbranch_scc1 g2_noxa")
    for k in sorted(blocks):
        a(f"s_cmp_lg_u32 s40, {k}")
        a(f"s_cbranch_scc1 g2_blk{k}")
        for l in blocks[k]: a(l)
        a("s_branch g2_noxa")
        a.label(f"g2_blk{k}")
    a.label("g2_noxa")
    a("s_add_u32 s40, s40, 1")
    a(f"s_cmp_lt_u32 s40, {NK}")
    a("s_cbranch_scc1 g2_cloop")
    a("s_waitcnt lgkmcnt(0)")
    a("s_nop 7")
    for j in range(2):
        b2 = 28 + j
        O = 32 + 8 * j
        for i in range(4):
            c = ACC + 8 * i + 4 * j
            xr = XR + 4 * i + 2 * j
            X, t = 140, 152
            rnd2(a, c, c + 1, t); rnd2(a, c + 2, c + 3, t)
            for r in range(4): a(f"v_add_f32 v{c+r}, v{c+r}, v{b2}")
            rnd2(a, c, c + 1, t); rnd2(a, c + 2, c + 3, t)
            a(f"v_lshlrev_b32 v{X}, 16, v{xr}")
            a(f"v_and_b32 v{X+1}, 0xffff0000, v{xr}")
            a(f"v_lshlrev_b32 v{X+2}, 16, v{xr+1}")
            a(f"v_and_b32 v{X+3}, 0xffff0000, v{xr+1}")
            for r in range(4): a(f"v_add_f32 v{X+r}, v{X+r}, v{c+r}")
            a(f"v_cvt_pk_bf16_f32 v{O+2*i}, v{X}, v{X+1}")
            a(f"v_cvt_pk_bf16_f32 v{O+2*i+1}, v{X+2}, v{X+3}")
        a("s_nop 1")
        for k in range(2):
            a(f"v_permlane32_swap_b32 v{O+k}, v{O+4+k}")
            a(f"v_permlane32_swap_b32 v{O+2+k}, v{O+6+k}")
        a("s_nop 1")
        for k in range(2):
            a(f"v_permlane16_swap_b32 v{O+k}, v{O+2+k}")
            a(f"v_permlane16_swap_b32 v{O+4+k}, v{O+6+k}")
        a(f"v_add_u32 v22, {j*16*2048}, v18")
        a(f"buffer_store_dwordx4 v[{O}:{O+3}], v22, s[28:31], 0 offen{' nt' if ONT else ''}")
        a(f"buffer_store_dwordx4 v[{O+4}:{O+7}], v22, s[28:31], 0 offen offset:16{' nt' if ONT else ''}")
    a("s_endpgm")
    a.label("g2_loader")
    srd(a, 32, 44, S * D * 2)
    srd(a, 52, 8, D * S * 2, WS_Y2T)
    a("s_sub_u32 s16, s16, 4")
    a("v_lshrrev_b32 v3, 3, v1")
    a("v_bfe_u32 v4, v1, 4, 2")
    a("v_and_b32 v5, 7, v1")
    a(f"s_mul_i32 s17, s14, {112*8192}")
    a("s_lshl_b32 s18, s16, 12")
    a("s_add_u32 s17, s17, s18")
    a("v_lshl_add_u32 v12, v1, 4, s17")
    VB = 16
    a("v_lshlrev_b32 v6, 1, v4")
    a("v_xor_b32 v6, v6, v5")
    a("s_lshl_b32 s17, s16, 4")
    a("v_add_u32 v8, s17, v3")
    a("s_lshl_b32 s18, s15, 7")
    for q in range(2):
        a(f"v_add_u32 v9, {8*q}, v8")
        a(f"v_lshlrev_b32 v{VB+q}, 12, v9")
        a(f"v_lshl_add_u32 v{VB+q}, v6, 4, v{VB+q}")
        a(f"v_add_u32 v{VB+q}, s18, v{VB+q}")
        if q: a(f"v_subrev_u32 v{VB+q}, {1024*q}, v{VB+q}")
    a("s_lshl_b32 s37, s16, 12")
    a("s_lshl_b32 s43, s16, 11")
    a("s_add_u32 s43, s43, 0x4000")
    if ROT:
        a(f"s_mul_i32 s38, s11, {ROT}")
        a(f"s_cmp_ge_u32 s38, {NK}")
        a(f"s_cselect_b32 s39, {NK}, 0")
        a("s_sub_u32 s38, s38, s39")
        a("s_lshl_b32 s39, s38, 18")
        a("s_lshl_b32 s38, s38, 14")
    else:
        a("s_mov_b32 s38, 0")
        a("s_mov_b32 s39, 0")
    a("s_mov_b32 s40, 0")
    def issue():
        a("s_add_u32 m0, s40, s37")
        a("s_nop 0")
        for q in range(4):
            a(f"buffer_load_dwordx4 v12, s[20:23], s38 offen offset:{1024*q} lds")
        a("s_add_u32 m0, s40, s43")
        a("s_nop 0")
        for q in range(2):
            a(f"buffer_load_dwordx4 v{VB+q}, s[24:27], s39 offen offset:{1024*q} lds")
        a("s_add_u32 s38, s38, 0x4000")
        a(f"s_add_u32 s39, s39, {64*4096}")
        if ROT:
            a(f"s_cmp_eq_u32 s38, {NK*0x4000}")
            a("s_cselect_b32 s38, 0, s38")
            a("s_cselect_b32 s39, 0, s39")
        a(f"s_add_u32 s40, s40, {SLOT}")
        a(f"s_cmp_eq_u32 s40, {SLOT*NST}")
        a("s_cselect_b32 s40, 0, s40")
    issue()
    a("v_and_b32 v20, 15, v1")
    a("s_lshl_b32 s17, s15, 6")
    a("s_lshl_b32 s18, s16, 4")
    a("s_add_u32 s17, s17, s18")
    a("s_lshl_b32 s18, s14, 8")
    a(f"s_add_u32 m0, s37, {EB}")
    for q in range(4):
        a(f"v_add_u32 v21, {4*q}, v4")
        a("v_xor_b32 v22, v21, v20")
        a("v_add_u32 v21, s17, v21")
        a("v_lshlrev_b32 v21, 11, v21")
        a("v_lshl_add_u32 v21, v22, 4, v21")
        a("v_add_u32 v21, s18, v21")
        if q: a(f"v_subrev_u32 v21, {1024*q}, v21")
        a(f"buffer_load_dwordx4 v21, s[32:35], 0 offen offset:{1024*q} lds")
    a("s_lshl_b32 s17, s14, 7")
    a("s_lshl_b32 s18, s16, 5")
    a("s_add_u32 s17, s17, s18")
    a("s_lshl_b32 s18, s15, 7")
    a(f"s_add_u32 m0, s37, {EB+16384}")
    for q in range(4):
        a(f"v_add_u32 v21, {8*q}, v3")
        a("v_add_u32 v21, s17, v21")
        a("v_lshlrev_b32 v21, 12, v21")
        a("v_lshl_add_u32 v21, v6, 4, v21")
        a("v_add_u32 v21, s18, v21")
        if q: a(f"v_subrev_u32 v21, {1024*q}, v21")
        a(f"buffer_load_dwordx4 v21, s[52:55], 0 offen offset:{1024*q} lds")
    for st in range(1, NST): issue()
    a(f"s_waitcnt vmcnt({6*(NST-1)+8})")
    a("s_barrier")
    a("s_mov_b32 s42, 0")
    a.label("g2_lloop")
    a(f"s_waitcnt vmcnt({6*(NST-2)})")
    a("s_barrier")
    issue()
    a("s_add_u32 s42, s42, 1")
    a(f"s_cmp_lt_u32 s42, {NK-NST}")
    a("s_cbranch_scc1 g2_lloop")
    for j in range(NST):
        if j <= NST - 2:
            a(f"s_waitcnt vmcnt({6*(NST-2-j)})")
        a("s_barrier")
    a.label("g2_done")
    a("s_endpgm")
    return kernel_desc(name, 160, 64), EB + 32768
```

```python
import sys, struct
from asmlib import *
from gen import rnd2, wave_sum, gen_prep, HEADER, S, D, F, MB, WS_H, WS_STATS, WS_KVT, WS_Y2T, WS_U
from gen3 import gelu_epi, gen_gemm2, interleave, fb

KOFF = 4608
KNT = ""
KCP2 = 4160
CONV_LDS = KOFF + 2 * KCP2

def conv_setup(a, ring_bytes):
    a("s_lshl_b32 s65, s64, 12")
    a("s_add_u32 s48, s68, s65"); a("s_addc_u32 s49, s69, 0"); a("s_movk_i32 s50, 4096"); a("s_mov_b32 s51, 0x00020000")
    a("s_add_u32 s52, s8, s65"); a("s_addc_u32 s53, s9, 0")
    a(f"s_add_u32 s56, s52, {WS_Y2T}"); a("s_addc_u32 s57, s53, 0"); a("s_movk_i32 s58, 4096"); a("s_mov_b32 s59, 0x00020000")
    a(f"s_add_u32 s52, s52, {WS_KVT}"); a("s_addc_u32 s53, s53, 0"); a("s_movk_i32 s54, 4096"); a("s_mov_b32 s55, 0x00020000")
    srd(a, 60, 70, D * 2)
    a(f"s_mul_i32 s66, s16, {CONV_LDS}")
    a(f"s_add_u32 s66, s66, {ring_bytes}")
    a("v_lshlrev_b32 v21, 4, v1")
    a("s_add_u32 m0, s66, 480")
    a("s_nop 0")
    for q in range(4):
        a(f"buffer_load_dwordx4 v21, s[52:55], 0 offen offset:{1024*q} lds")
    a("v_lshlrev_b32 v22, 6, v1")
    a("v_subrev_u32 v22, 32, v22")
    for i in range(4):
        a(f"v_add_u32 v23, {16*i}, v22")
        a(f"buffer_load_dwordx4 v[{64+4*i}:{67+4*i}], v23, s[48:51], 0 offen{KNT}")
    a("v_add_u32 v23, 64, v22")
    a("buffer_load_dword v80, v23, s[48:51], 0 offen")
    a("v_mov_b32 v23, 4064")
    a("buffer_load_dwordx4 v[84:87], v23, s[48:51], 0 offen")
    a("buffer_load_dwordx4 v[88:91], v23, s[48:51], 0 offen offset:16")
    a("v_mov_b32 v92, 0")
    a("s_lshl_b32 s65, s64, 1")
    a("v_mov_b32 v22, s65")
    a("buffer_load_ushort v20, v22, s[60:63], 0 offen")
    for i in range(4): a(f"v_mov_b32 v{32+i}, 0")
    a("v_add_u32 v22, s66, v21")
    a("v_cmp_gt_u32 vcc, 30, v1")
    a("s_and_saveexec_b64 s[72:73], vcc")
    a("ds_write_b128 v22, v[32:35]")
    a("s_mov_b64 exec, s[72:73]")
    a("v_and_b32 v22, 15, v1")
    a("v_lshrrev_b32 v23, 4, v1")
    a("v_add_u32 v16, 1, v22")
    a("v_and_b32 v16, 1, v16")
    a("v_lshlrev_b32 v17, 3, v23")
    a("v_sub_u32 v17, v22, v17")
    a("v_sub_u32 v17, v17, v16")
    a("v_lshlrev_b32 v17, 1, v17")
    a(f"v_mul_u32_u24 v16, {KCP2}, v16")
    a("v_add_u32 v16, v16, v17")
    a("v_add_u32 v16, s66, v16")
    a(f"v_add_u32 v192, {KOFF+50}, v16")
    for i in range(1, 4): a(f"v_add_u32 v{192+i}, {KOFF+50+1024*i}, v16")
    a("v_lshlrev_b32 v17, 5, v22")
    a("v_lshl_add_u32 v17, v23, 4, v17")
    a("v_add_u32 v17, s66, v17")
    a("v_and_b32 v18, 1, v23")
    a("v_lshlrev_b32 v18, 3, v18")
    a("v_lshrrev_b32 v19, 1, v23")
    a("v_lshlrev_b32 v19, 4, v19")
    a("v_lshl_add_u32 v19, v22, 5, v19")
    a("v_sub_u32 v18, v19, v18")
    a("v_add_u32 v18, s66, v18")
    a("v_add_u32 v18, 488, v18")
    a("v_lshlrev_b32 v19, 5, v22")
    a("v_lshl_add_u32 v19, v23, 3, v19")

CACC = 32
CFA = [64, 128]; CFB = [96, 160]
def conv_flat():
    L = []
    for i in range(32): L.append(f"v_mov_b32 v{CACC+i}, 0")
    def reads(buf, rho):
        R = []
        for P in range(8):
            off = 512 * P + 64 * rho
            bi, o4 = off // 1024, (off % 1024) // 4
            R.append(f"ds_read2_b32 v[{CFA[buf]+4*P}:{CFA[buf]+4*P+1}], v{192+bi} offset0:{o4} offset1:{o4+1}")
            R.append(f"ds_read2_b32 v[{CFA[buf]+4*P+2}:{CFA[buf]+4*P+3}], v{192+bi} offset0:{o4+2} offset1:{o4+3}")
            R.append(f"ds_read_b128 v[{CFB[buf]+4*P}:{CFB[buf]+4*P+3}], v17 offset:{512*P-64*rho+448}")
        return R
    def mf(buf):
        M = []
        for P in range(8):
            for Dl in range(8 - P):
                T = P + Dl
                M.append(f"v_mfma_f32_16x16x32_bf16 v[{CACC+4*T}:{CACC+4*T+3}], v[{CFA[buf]+4*P}:{CFA[buf]+4*P+3}], v[{CFB[buf]+4*Dl}:{CFB[buf]+4*Dl+3}], v[{CACC+4*T}:{CACC+4*T+3}]")
        return M
    L.append("v_lshlrev_b32 v21, 6, v1")
    L.append("v_add_u32 v21, s66, v21")
    for m in range(16):
        L.append(f"v_alignbit_b32 v{96+m}, v{64+m+1}, v{64+m}, 16")
    for q in range(4):
        L.append(f"ds_write_b128 v21, v[{64+4*q}:{67+4*q}] offset:{KOFF+16*q}")
        L.append(f"ds_write_b128 v21, v[{96+4*q}:{99+4*q}] offset:{KOFF+KCP2+16*q}")
    for m in range(8):
        L.append(f"v_alignbit_b32 v{112+m}, v{84+m+1}, v{84+m}, 16")
    L.append("v_cmp_eq_u32 vcc, 0, v1")
    L.append("s_and_saveexec_b64 s[72:73], vcc")
    for q in range(2):
        L.append(f"ds_write_b128 v21, v[{84+4*q}:{87+4*q}] offset:{KOFF+4096+16*q}")
        L.append(f"ds_write_b128 v21, v[{112+4*q}:{115+4*q}] offset:{KOFF+KCP2+4096+16*q}")
    L.append("s_mov_b64 exec, s[72:73]")
    L.append("s_waitcnt lgkmcnt(0)")
    NB = len(L)
    L += reads(0, 0)
    for rho in range(8):
        L.append("s_waitcnt lgkmcnt(0)")
        R = reads((rho + 1) & 1, rho + 1) if rho < 7 else []
        for m in mf(rho & 1):
            L.append(m)
            if R: L.append(R.pop(0))
    return L, NB

def conv_flat_sb():
    L0, NB = conv_flat()
    L = L0[:NB]
    for rho in range(8):
        for P in range(8):
            off = 512 * P + 64 * rho
            bi, o4 = off // 1024, (off % 1024) // 4
            L.append(f"ds_read2_b32 v[{64+4*P}:{64+4*P+1}], v{24+bi} offset0:{o4} offset1:{o4+1}")
            L.append(f"ds_read2_b32 v[{64+4*P+2}:{64+4*P+3}], v{24+bi} offset0:{o4+2} offset1:{o4+3}")
            L.append(f"ds_read_b128 v[{96+4*P}:{96+4*P+3}], v17 offset:{512*P-64*rho+448}")
        L.append("s_waitcnt lgkmcnt(0)")
        for P in range(8):
            for Dl in range(8 - P):
                T = P + Dl
                L.append(f"v_mfma_f32_16x16x32_bf16 v[{CACC+4*T}:{CACC+4*T+3}], v[{64+4*P}:{64+4*P+3}], v[{96+4*Dl}:{96+4*Dl+3}], v[{CACC+4*T}:{CACC+4*T+3}]")
    return L, NB

def conv_epilogue(a):
    a("v_lshlrev_b32 v20, 16, v20")
    for T in range(8):
        a(f"ds_read_b64 v[{64+2*T}:{65+2*T}], v18 offset:{512*T}")
    a("s_nop 7")
    a("s_waitcnt lgkmcnt(0)")
    for T in range(8):
        c = CACC + 4 * T
        a(f"v_and_b32 v80, 0xffff0000, v{65+2*T}")
        a(f"v_lshlrev_b32 v81, 16, v{65+2*T}")
        a(f"v_and_b32 v82, 0xffff0000, v{64+2*T}")
        a(f"v_lshlrev_b32 v83, 16, v{64+2*T}")
        for r in range(4): a(f"v_mul_f32 v{80+r}, v{80+r}, v20")
        rnd2(a, 80, 81, 84); rnd2(a, 82, 83, 84)
        rnd2(a, c, c + 1, 84); rnd2(a, c + 2, c + 3, 84)
        for r in range(4): a(f"v_add_f32 v{c+r}, v{c+r}, v{80+r}")
        o = 86 + 2 * (T & 1)
        a(f"v_cvt_pk_bf16_f32 v{o}, v{c}, v{c+1}")
        a(f"v_cvt_pk_bf16_f32 v{o+1}, v{c+2}, v{c+3}")
        a(f"buffer_store_dwordx2 v[{o}:{o+1}], v19, s[56:59], 0 offen offset:{512*T}")

def gen_gemm1(a, NST=3, CSPAN=26, PFON=1, CONVON=1, NT1=0, PRIO=0, STAMP=0, R1=2048, R2=3584, XMAP=0, TP1=0, CMODE=0, IPER=2, M32=0):
    name = "gemm1_kernel"
    NK = S // 64
    SLOT = 32768
    RING = SLOT * NST
    kernel_header(a, name)
    a("s_cmp_ge_u32 s2, 256")
    a("s_cbranch_scc1 g1_done")
    a("s_load_dwordx4 s[4:7], s[0:1], 56")
    a("s_load_dwordx2 s[8:9], s[0:1], 104")
    a("s_load_dwordx4 s[68:71], s[0:1], 32")
    a("s_load_dwordx2 s[74:75], s[0:1], 72")
    a("s_and_b32 s10, s2, 7")
    a("s_lshr_b32 s11, s2, 3")
    if XMAP:
        a("s_lshr_b32 s12, s11, 3")
        a("s_lshl_b32 s12, s12, 3")
        a("s_add_u32 s14, s10, s12")
        a("s_and_b32 s15, s11, 7")
    else:
        a("s_mul_i32 s12, s11, 37")
        a("s_lshr_b32 s12, s12, 8")
        a("s_mul_i32 s13, s12, 7")
        a("s_sub_u32 s13, s11, s13")
        a("s_and_b32 s14, s10, 3")
        a("s_mul_i32 s14, s14, 7")
        a("s_add_u32 s14, s14, s13")
        a("s_lshr_b32 s15, s10, 2")
        a("s_lshl_b32 s15, s15, 2")
        a("s_add_u32 s15, s15, s12")
    a("v_and_b32 v1, 63, v0")
    a("v_lshrrev_b32 v2, 6, v0")
    a("s_nop 0")
    a("v_readfirstlane_b32 s16, v2")
    if STAMP == 1: a("s_memrealtime s[76:77]")
    a("s_waitcnt lgkmcnt(0)")
    if XMAP:
        a("s_cmp_ge_u32 s14, 28")
    else:
        a("s_cmp_ge_u32 s2, 224")
    a("s_cbranch_scc1 g1_extra")
    srd(a, 20, 4, S * F * 2)
    srd(a, 24, 8, S * D * 2, WS_H)
    srd(a, 28, 8, D * F * 2, WS_U)
    srd(a, 32, 6, F * 2)
    a("s_and_b32 s17, s16, 1")
    a("s_bfe_u32 s18, s16, 0x10001")
    a("s_lshr_b32 s19, s16, 2")
    a("v_lshrrev_b32 v3, 4, v1")
    a("s_lshl_b32 s37, s14, 7")
    a("s_lshl_b32 s38, s17, 6")
    a("s_add_u32 s37, s37, s38")
    a("s_lshl_b32 s38, s19, 5")
    a("s_add_u32 s37, s37, s38")
    a("v_lshl_add_u32 v24, v3, 2, s37")
    a("v_lshlrev_b32 v24, 1, v24")
    BI = 28
    for ii in range(2):
        a(f"buffer_load_dwordx2 v[{BI+2*ii}:{BI+2*ii+1}], v24, s[32:35], 0 offen offset:{32*ii}")
    a("s_mul_i32 s37, s15, 112")
    a("s_lshl_b32 s38, s14, 2")
    a("s_add_u32 s37, s37, s38")
    a("s_lshl_b32 s38, s17, 1")
    a("s_add_u32 s37, s37, s38")
    a("s_add_u32 s37, s37, s19")
    a("s_lshl_b32 s37, s37, 3")
    a("s_lshl_b32 s38, s18, 2")
    a("s_add_u32 s37, s37, s38")
    a("s_lshl_b32 s37, s37, 10")
    a("v_lshl_add_u32 v25, v1, 4, s37")
    a("s_and_b32 s37, s16, 3")
    a("s_lshl_b32 s37, s37, 13")
    a("v_lshl_add_u32 v26, v1, 4, s37")
    c1 = -2.0 * 0.7978845608028654 * 1.4426950408889634
    c2 = c1 * 0.044715
    a(f"s_mov_b32 s42, {fb(c1):#x}"); a(f"s_mov_b32 s43, {fb(c1):#x}")
    a(f"s_mov_b32 s44, {fb(c2):#x}"); a(f"s_mov_b32 s45, {fb(c2):#x}")
    if CMODE == 3:
        a("s_cmp_ge_u32 s16, 8")
        a("s_cbranch_scc1 g1_convw")
    a("s_cmp_ge_u32 s16, 4")
    a("s_cbranch_scc1 g1_loader")
    a("v_bfe_u32 v4, v1, 2, 2")
    a("v_and_b32 v5, 3, v1")
    a("v_and_b32 v6, 1, v3")
    a("v_lshl_or_b32 v6, v6, 2, v4")
    a("v_lshl_add_u32 v7, v3, 3, v4")
    a("v_lshlrev_b32 v7, 8, v7")
    a("v_lshl_add_u32 v7, v5, 3, v7")
    AC, BC = 8, 12
    AA, BA = 16, 20
    a("s_lshl_b32 s19, s17, 2")
    a("s_lshl_b32 s36, s18, 2")
    for i in range(4):
        a(f"s_add_u32 s37, s19, {i}")
        a(f"v_xor_b32 v{AC+i}, s37, v6")
        a(f"v_lshl_add_u32 v{AC+i}, v{AC+i}, 5, v7")
        a(f"s_add_u32 s37, s36, {i}")
        a(f"v_xor_b32 v{BC+i}, s37, v6")
        a(f"v_lshl_add_u32 v{BC+i}, v{BC+i}, 5, v7")
        a(f"v_add_u32 v{BC+i}, 0x4000, v{BC+i}")
        a(f"v_mov_b32 v{AA+i}, v{AC+i}")
        a(f"v_mov_b32 v{BA+i}, v{BC+i}")
    if R1 < S:
        tot = (S - R1) * F * 2
        perw = (tot // 224 + 127) // 128 * 128
        a(f"s_mul_i32 s37, s2, {perw}")
        a(f"s_add_u32 s37, s37, {R1*F*2}")
        a("v_lshl_add_u32 v27, v0, 7, s37")
        for t in range((perw + 32767) // 32768):
            a(f"s_mov_b32 s37, {32768*t}")
            a("buffer_load_dword v2, v27, s[20:23], s37 offen")
    if TP1:
        a("v_lshrrev_b32 v27, 4, v1")
        a("v_lshlrev_b32 v27, 6, v27")
        a("v_bfe_u32 v2, v1, 1, 3")
        a("v_add_u32 v27, v27, v2")
        a("s_lshl_b32 s37, s15, 3")
        a(f"s_add_u32 s37, s37, {TP1*64}")
        a("v_add_u32 v27, s37, v27")
        a("s_movk_i32 s37, 7168")
        a("v_mul_lo_u32 v27, v27, s37")
        a("v_and_b32 v2, 1, v1")
        a("v_lshl_add_u32 v27, v2, 7, v27")
        a("s_lshl_b32 s37, s14, 8")
        a("v_add_u32 v27, s37, v27")
        for t in range((TP1 + 15) // 16):
            a("s_lshl_b32 s37, s16, 2")
            a(f"s_add_u32 s37, s37, {16*t - TP1 & 0xffffffff}")
            a(f"s_mul_i32 s37, s37, {64*7168}")
            a("v_add_u32 v7, s37, v27")
            a("buffer_load_dword v2, v7, s[20:23], 0 offen nt")
    FA = [32, 64]; FB = [48, 80]
    ACC = 96
    for i in range(64):
        a(f"v_mov_b32 v{ACC+i}, 0")
    a("s_mov_b32 s39, 0")
    a("s_mov_b32 s40, 0")
    if PRIO: a("s_setprio 2")
    def stamp():
        if STAMP != 1: return
        a("s_memrealtime s[78:79]")
        a("s_waitcnt lgkmcnt(0)")
        a("v_mov_b32 v27, s78")
        a("buffer_store_dword v27, v2, s[48:51], 0 offen")
        a("v_add_u32 v2, 4, v2")
    if STAMP == 1:
        srd(a, 48, 8, 1 << 20, 64 * MB)
        a("s_lshl_b32 s52, s2, 2")
        a("s_add_u32 s52, s52, s16")
        a("s_lshl_b32 s52, s52, 8")
        a("v_mov_b32 v2, s52")
        a("v_mov_b32 v27, s76")
        a("buffer_store_dword v27, v2, s[48:51], 0 offen")
        a("v_add_u32 v2, 4, v2")
    a("s_barrier")
    stamp()
    def reads(buf, ks):
        L = []
        for i in range(4):
            for hh in range(2):
                L.append(f"ds_read_b64_tr_b16 v[{FA[buf]+4*i+2*hh}:{FA[buf]+4*i+2*hh+1}], v{AA+i} offset:{ks*8192+hh*1024}")
            for hh in range(2):
                L.append(f"ds_read_b64_tr_b16 v[{FB[buf]+4*i+2*hh}:{FB[buf]+4*i+2*hh+1}], v{BA+i} offset:{ks*8192+hh*1024}")
        return L
    def mfmas(buf):
        L = []
        if M32:
            for k2 in range(2):
                for i in range(2):
                    for j in range(2):
                        c = ACC + 32 * i + 16 * j
                        L.append(f"v_mfma_f32_32x32x16_bf16 v[{c}:{c+15}], v[{FA[buf]+8*i+4*k2}:{FA[buf]+8*i+4*k2+3}], v[{FB[buf]+8*j+4*k2}:{FB[buf]+8*j+4*k2+3}], v[{c}:{c+15}]")
            return L
        for i in range(4):
            for j in range(4):
                c = ACC + 16 * i + 4 * j
                L.append(f"v_mfma_f32_16x16x32_bf16 v[{c}:{c+3}], v[{FA[buf]+4*i}:{FA[buf]+4*i+3}], v[{FB[buf]+4*j}:{FB[buf]+4*j+3}], v[{c}:{c+3}]")
        return L
    for r in reads(0, 0): a(r)
    a.label("g1_cloop")
    a("s_waitcnt lgkmcnt(0)")
    interleave(a, mfmas(0), reads(1, 1), IPER)
    a("s_waitcnt lgkmcnt(0)")
    a("s_barrier")
    a(f"s_add_u32 s39, s39, {SLOT}")
    a(f"s_cmp_eq_u32 s39, {SLOT*NST}")
    a("s_cselect_b32 s39, 0, s39")
    M = mfmas(1)
    a(M[0])
    for i in range(4):
        a(f"v_add_u32 v{AA+i}, s39, v{AC+i}")
        a(f"v_add_u32 v{BA+i}, s39, v{BC+i}")
    interleave(a, M[1:], reads(0, 0), IPER)
    stamp()
    if TP1:
        a("s_and_b32 s36, s40, 15")
        a("s_lshl_b32 s37, s16, 2")
        a("s_cmp_lg_u32 s36, s37")
        a("s_cbranch_scc1 g1_notouch")
        a(f"s_mul_i32 s37, s40, {64*7168}")
        a("buffer_load_dword v2, v27, s[20:23], s37 offen nt")
        a.label("g1_notouch")
    a("s_add_u32 s40, s40, 1")
    a(f"s_cmp_lt_u32 s40, {NK}")
    a("s_cbranch_scc1 g1_cloop")
    a("s_waitcnt lgkmcnt(0)")
    a("s_nop 7")
    for q in range(8):
        a(f"ds_write_b128 v26, v[{ACC+32+4*q}:{ACC+32+4*q+3}] offset:{1024*q}")
    a("s_waitcnt lgkmcnt(0) vmcnt(0)")
    a("s_barrier")
    stamp()
    gelu_epi(a, [[ACC + 16 * ii + 4 * j for j in range(4)] for ii in range(2)], BI, 25, "s[28:31]", 32)
    stamp()
    a("s_waitcnt vmcnt(0)")
    stamp()
    a("s_endpgm")
    a.label("g1_loader")
    a("s_sub_u32 s16, s16, 4")
    a("v_and_b32 v4, 15, v1")
    a("v_lshlrev_b32 v5, 1, v3")
    a("v_xor_b32 v5, v5, v4")
    a("v_xor_b32 v6, 8, v5")
    a("s_lshl_b32 s17, s16, 4")
    a("v_add_u32 v3, s17, v3")
    a("s_lshl_b32 s18, s14, 8")
    a("s_lshl_b32 s19, s15, 8")
    a("s_movk_i32 s36, 7168")
    VA, VB = 8, 12
    for q in range(4):
        c16 = 5 if q < 2 else 6
        a(f"v_add_u32 v7, {4*q}, v3")
        a(f"v_mul_lo_u32 v{VA+q}, v7, s36")
        a(f"v_lshl_add_u32 v{VA+q}, v{c16}, 4, v{VA+q}")
        a(f"v_add_u32 v{VA+q}, s18, v{VA+q}")
        a(f"v_lshlrev_b32 v{VB+q}, 11, v7")
        a(f"v_lshl_add_u32 v{VB+q}, v{c16}, 4, v{VB+q}")
        a(f"v_add_u32 v{VB+q}, s19, v{VB+q}")
        if q:
            a(f"v_subrev_u32 v{VA+q}, {1024*q}, v{VA+q}")
            a(f"v_subrev_u32 v{VB+q}, {1024*q}, v{VB+q}")
    a("s_lshl_b32 s37, s16, 12")
    outst = []
    def issue(s):
        slot = (s % NST) * SLOT
        a(f"s_add_u32 m0, s37, {slot}")
        a(f"s_mov_b32 s38, {s*64*7168}")
        a(f"s_mov_b32 s39, {s*64*2048}")
        for q in range(4):
            a(f"buffer_load_dwordx4 v{VA+q}, s[20:23], s38 offen offset:{1024*q} {'nt ' if NT1 else ''}lds")
        a(f"s_add_u32 m0, s37, {slot+0x4000}")
        a("s_nop 0")
        for q in range(4):
            a(f"buffer_load_dwordx4 v{VB+q}, s[24:27], s39 offen offset:{1024*q} lds")
        outst.extend([s] * 8)
    def wait_stage(s):
        cand = [i for i, t in enumerate(outst) if t == s]
        if not cand: return
        idx = max(cand)
        n = len(outst) - 1 - idx
        a(f"s_waitcnt vmcnt({n})")
        del outst[:idx + 1]
    if CMODE >= 1:
        for st in range(NST): issue(st)
        wait_stage(0)
        a("s_barrier")
        for s in range(NK):
            if s + 1 < NK: wait_stage(s + 1)
            a("s_barrier")
            if s + NST < NK: issue(s + NST)
    else:
        issue(0)
        a("s_lshl_b32 s64, s2, 2")
        a("s_add_u32 s64, s64, s16")
        conv_setup(a, RING)
        outst.extend(["c"] * 12)
        for st in range(1, NST): issue(st)
        flat, NB = conv_flat() if CONVON else (["s_nop 0"], 1)
        build, flat = flat[:NB], flat[NB:]
        wait_stage("c")
        for ins in build: a(ins)
        a("s_barrier")
        per = (len(flat) + CSPAN - 1) // CSPAN
        epi = Asm(); conv_epilogue(epi)
        epi = [l.strip() for l in epi.lines]
        nst_epi = sum("buffer_store" in l for l in epi)
        cuts = [i + 1 for i, l in enumerate(epi) if "buffer_store" in l]
        pieces = [epi[:cuts[1]], epi[cuts[1]:cuts[3]], epi[cuts[3]:cuts[5]], epi[cuts[5]:]]
        if STAMP == 2:
            srd(a, 76, 8, 1 << 20, 64 * MB)
            a("s_lshl_b32 s80, s2, 2")
            a("s_add_u32 s80, s80, s16")
            a("s_lshl_b32 s80, s80, 10")
            a("v_mov_b32 v196, s80")
        for s in range(NK):
            if STAMP == 2: a("s_memtime s[80:81]")
            if s + 1 < NK: wait_stage(s + 1)
            if STAMP == 2: a("s_memtime s[82:83]")
            a("s_barrier")
            if STAMP == 2: a("s_memtime s[84:85]")
            if PRIO: a("s_setprio 3")
            if s + NST < NK: issue(s + NST)
            if PRIO: a("s_setprio 0")
            if STAMP == 2:
                a("s_memtime s[86:87]")
                a("s_waitcnt lgkmcnt(0)")
                a("v_mov_b32 v200, s80"); a("v_mov_b32 v201, s82"); a("v_mov_b32 v202, s84"); a("v_mov_b32 v203, s86")
                a(f"buffer_store_dwordx4 v[200:203], v196, s[76:79], 0 offen offset:{16*s}")
                outst.append("st")
            if flat:
                chunk, flat = flat[:per], flat[per:]
            elif pieces:
                chunk = pieces.pop(0)
                outst.extend(["y"] * 2)
            else:
                chunk = []
            for ins in chunk: a(ins)
        assert not flat and not pieces
    a("s_barrier")
    for q in range(8):
        a(f"ds_read_b128 v[{64+4*q}:{64+4*q+3}], v26 offset:{1024*q}")
    a("s_waitcnt lgkmcnt(0)")
    gelu_epi(a, [[64 + 16 * ii + 4 * j for j in range(4)] for ii in range(2)], BI, 25, "s[28:31]", 32)
    a("s_endpgm")
    if CMODE == 3:
        def conv_wave(with_bar):
            a("s_sub_u32 s16, s16, 8")
            a("s_lshl_b32 s64, s2, 2")
            a("s_add_u32 s64, s64, s16")
            cs = Asm(); conv_setup(cs, RING)
            for l in cs.lines:
                for i in range(4): l = l.replace(f"v{192+i},", f"v{24+i},")
                a.lines.append(l)
            if with_bar:
                for _ in range(4): a("s_barrier")
            a("s_waitcnt vmcnt(0)")
            fl, nb = conv_flat_sb()
            ep = Asm(); conv_epilogue(ep)
            fl = fl + [l.strip() for l in ep.lines]
            if not with_bar:
                for ins in fl: a(ins)
            else:
                for ins in fl[:nb]: a(ins)
                fl = fl[nb:]
                per = (len(fl) + CSPAN - 1) // CSPAN
                while fl:
                    a("s_barrier")
                    for ins in fl[:per]: a(ins)
                    fl = fl[per:]
            a("s_endpgm")
        a.label("g1_convw")
        conv_wave(True)
        a.label("g1_convx")
        conv_wave(False)
    a.label("g1_extra")
    if CMODE == 3:
        a("s_cmp_ge_u32 s16, 8")
        a("s_cbranch_scc1 g1_convx")
    if CMODE in (2, 3):
        if PFON and R2:
            srd(a, 20, 74, F * S * 2)
            perw = R2 * S * 2 // 256
            assert perw % 2048 == 0
            a("s_sub_u32 s17, s2, 224")
            a("s_lshl_b32 s17, s17, 3")
            a("s_add_u32 s17, s17, s16")
            a(f"s_mul_i32 s17, s17, {perw}")
            a("v_lshl_add_u32 v4, v1, 4, s17")
            a("s_mov_b32 s18, 0")
            a.label("g1_pfl")
            for k in range(2):
                a(f"buffer_load_dwordx4 v[{8+4*k}:{11+4*k}], v4, s[20:23], s18 offen")
                a("s_add_u32 s18, s18, 1024")
            a(f"s_cmp_lt_u32 s18, {perw}")
            a("s_cbranch_scc1 g1_pfl")
        a("s_endpgm")
    elif CMODE == 1:
        a("s_sub_u32 s17, s2, 224")
        a("s_lshl_b32 s64, s17, 3")
        a("s_add_u32 s64, s64, s16")
        if PFON:
            srd(a, 20, 74, F * S * 2)
            perw = R2 * S * 2 // 256
            a(f"s_mul_i32 s18, s64, {perw}")
            a("v_lshl_add_u32 v4, v1, 7, s18")
            a("s_mov_b32 s18, 0")
        if PRIO:
            a("s_cmp_ge_u32 s16, 4")
            a("s_cbranch_scc1 g1_xloop")
            a("s_setprio 2")
        def xst():
            if STAMP != 3: return
            a("s_memtime s[84:85]")
            a("s_waitcnt lgkmcnt(0)")
            a("v_mov_b32 v200, s84")
            a("buffer_store_dword v200, v196, s[76:79], 0 offen")
            a("v_add_u32 v196, 4, v196")
        if STAMP == 3:
            srd(a, 76, 8, 1 << 20, 64 * MB)
            a("s_lshl_b32 s80, s64, 8")
            a("v_mov_b32 v196, s80")
        a.label("g1_xloop")
        xst()
        conv_setup(a, 0)
        a("s_waitcnt vmcnt(0)")
        xst()
        if PFON:
            for t in range((perw // 4 + 8191) // 8192):
                a("buffer_load_dword v2, v4, s[20:23], s18 offen")
                a("s_add_u32 s18, s18, 8192")
        fl, nb = conv_flat()
        for ins in fl[:nb]: a(ins)
        xst()
        for ins in fl[nb:]: a(ins)
        xst()
        conv_epilogue(a)
        xst()
        a("s_add_u32 s64, s64, 256")
        a(f"s_cmp_lt_u32 s64, {D}")
        a("s_cbranch_scc1 g1_xloop")
        a("s_endpgm")
    else:
        a("s_cmp_lt_u32 s16, 4")
        a("s_cbranch_scc1 g1_pf")
        a("s_sub_u32 s16, s16, 4")
        a("s_lshl_b32 s64, s2, 2")
        a("s_add_u32 s64, s64, s16")
        conv_setup(a, RING)
        a("s_waitcnt vmcnt(0)")
        for ins in conv_flat()[0]: a(ins)
        conv_epilogue(a)
        a("s_add_u32 s16, s16, 4")
        a.label("g1_pf")
        if not PFON: a("s_endpgm")
        per = R2 * S * 2 // 32
        u = per // 32
        assert u % 2048 == 0
        srd(a, 20, 74, F * S * 2)
        if XMAP:
            a("s_sub_u32 s17, s10, 4")
            a("s_lshl_b32 s17, s17, 3")
            a("s_add_u32 s17, s17, s15")
        else:
            a("s_sub_u32 s17, s2, 224")
        a(f"s_mul_i32 s17, s17, {per}")
        a(f"s_mul_i32 s18, s16, {5*u}")
        a("s_sub_u32 s19, s16, 4")
        a(f"s_mul_i32 s19, s19, {3*u}")
        a(f"s_add_u32 s19, s19, {20*u}")
        a("s_cmp_lt_u32 s16, 4")
        a("s_cselect_b32 s18, s18, s19")
        a(f"s_mov_b32 s36, {5*u}")
        a(f"s_cselect_b32 s19, s36, {3*u}")
        a("s_add_u32 s17, s17, s18")
        a("v_lshl_add_u32 v4, v1, 4, s17")
        a("s_mov_b32 s18, 0")
        a.label("g1_pfl")
        for k in range(2):
            a(f"buffer_load_dwordx4 v[{8+4*k}:{11+4*k}], v4, s[20:23], s18 offen")
            a("s_add_u32 s18, s18, 1024")
        a("s_cmp_lt_u32 s18, s19")
        a("s_cbranch_scc1 g1_pfl")
    a.label("g1_done")
    a("s_endpgm")
    return kernel_desc(name, 160 if CMODE == 3 else 204, 96), (RING if CMODE == 2 else max(RING, 8 * CONV_LDS) if CMODE == 1 else RING + 4 * CONV_LDS)

def build(opts):
    a = Asm()
    a.lines.append('.amdgcn_target "amdgcn-amd-amdhsa--gfx950"')
    a.lines.append(".text")
    descs = []; launches = []
    npf = opts.get("npf", 256)
    global KNT
    KNT = " nt" if opts.get("knt", 0) else ""
    descs.append(gen_prep(a, npf, rev=1, pfw2=(0 if opts.get("knt", 0) else 2), r1=opts.get("r1", 2048)))
    launches.append(f"; @launch kernel=prep_kernel grid=({768+npf},1,1) block=(256,1,1) lds=0")
    d, lds = gen_gemm1(a, NST=opts.get("nst", 3), CSPAN=opts.get("cspan", 26), PFON=opts.get("pfon", 1), CONVON=opts.get("convon", 1), NT1=opts.get("nt1", 0), PRIO=opts.get("prio", 0), STAMP=opts.get("stamp", 0), R1=opts.get("r1", 2048), R2=opts.get("r2", 3584), XMAP=opts.get("xmap", 0), TP1=opts.get("tp1", 0), CMODE=opts.get("cmode", 0), IPER=opts.get("iper", 2), M32=opts.get("m32", 0))
    descs.append(d)
    launches.append(f"; @launch kernel=gemm1_kernel grid=(256,1,1) block=({768 if opts.get('cmode', 0) == 3 else 512},1,1) lds={lds}")
    import gen7_g2
    d, lds = gen7_g2.gen_gemm2(a, NST=opts.get("nst2", 5), R2=opts.get("r2", 3584), XA0=opts.get("xa0", 4), ROT=opts.get("rot", 0), ONT=opts.get("ont", 0))
    descs.append(d)
    launches.append(f"; @launch kernel=gemm2_kernel grid=(256,1,1) block=(512,1,1) lds={lds}")
    txt = HEADER + "\n".join(launches) + "\n" + a.text() + '.section .rodata,"a"\n.p2align 6\n' + ".p2align 6\n".join(descs)
    return txt

if __name__ == "__main__":
    opts = {}
    for arg in sys.argv[2:]:
        k, v = arg.split("=")
        opts[k] = int(v)
    open(sys.argv[1], "w").write(build(opts))
```

```python
import sys
from asmlib import *

S, D, F = 2048, 1024, 3584
MB = 1 << 20
WS_H, WS_STATS, WS_KVT, WS_Y2T, WS_U = 0, 4 * MB, 8 * MB, 12 * MB, 16 * MB

HEADER = open("parallel_sum__ssm_conv_h3__mixer_token_mlp__prompt.s.ref").read().split("; Override launch")[0]

def rnd2(a, x, y, t):
    a(f"v_cvt_pk_bf16_f32 v{t}, v{x}, v{y}")
    a(f"v_lshlrev_b32 v{x}, 16, v{t}")
    a(f"v_and_b32 v{y}, 0xffff0000, v{t}")

def wave_sum(a, v, sdst):
    for sh in (1, 2, 4, 8):
        a("s_nop 1")
        a(f"v_add_f32_dpp v{v}, v{v}, v{v} row_shr:{sh} row_mask:0xf bank_mask:0xf bound_ctrl:0")
    a("s_nop 1")
    a(f"v_add_f32_dpp v{v}, v{v}, v{v} row_bcast:15 row_mask:0xa bank_mask:0xf")
    a("s_nop 1")
    a(f"v_add_f32_dpp v{v}, v{v}, v{v} row_bcast:31 row_mask:0xc bank_mask:0xf")
    a("s_nop 1")
    a(f"v_readlane_b32 s{sdst}, v{v}, 63")
    a("s_nop 3")

def gen_prep(a, npf=256, rev=0, pfw2=1, r1=2048, xpf=0, pflast=0):
    name = "prep_kernel"
    kernel_header(a, name)
    a(f"s_cmp_ge_u32 s2, {768+npf}")
    a("s_cbranch_scc1 prep_done")
    if npf and pflast:
        a("s_cmp_lt_u32 s2, 768")
        a("s_cbranch_scc1 prep_notpf")
        a("s_sub_u32 s2, s2, 768")
        a("s_branch prep_pf")
        a.label("prep_notpf")
    elif npf:
        a(f"s_cmp_lt_u32 s2, {npf}")
        a("s_cbranch_scc1 prep_pf")
        a(f"s_sub_u32 s2, s2, {npf}")
    a("s_load_dwordx4 s[4:7], s[0:1], 0")
    a("s_load_dwordx4 s[8:11], s[0:1], 16")
    a("s_load_dwordx2 s[12:13], s[0:1], 104")
    a("s_cmp_ge_u32 s2, 512")
    a("s_cbranch_scc1 prep_kv")
    a("v_and_b32 v1, 63, v0")
    a("v_lshrrev_b32 v2, 6, v0")
    a("s_lshl_b32 s3, s2, 2")
    a("v_add_u32 v2, s3, v2")
    a("v_lshlrev_b32 v3, 11, v2")
    a("v_lshl_add_u32 v3, v1, 4, v3")
    a("s_waitcnt lgkmcnt(0)")
    srd(a, 16, 4, S * D * 2)
    srd(a, 20, 12, S * D * 2, WS_H)
    srd(a, 24, 12, S * 8, WS_STATS)
    a("buffer_load_dwordx4 v[4:7], v3, s[16:19], 0 offen")
    a("buffer_load_dwordx4 v[8:11], v3, s[16:19], 0 offen offset:1024")
    a("s_waitcnt vmcnt(0)")
    X = 16
    for i in range(8):
        a(f"v_lshlrev_b32 v{X+2*i}, 16, v{4+i}")
        a(f"v_and_b32 v{X+2*i+1}, 0xffff0000, v{4+i}")
    a("s_mov_b32 s30, 0x3a800000")
    a("s_mov_b32 s31, 0x3727c5ac")
    def ln_pass(save):
        T = 32
        a(f"v_add_f32 v12, v{X}, v{X+1}")
        for i in range(2, 16):
            a(f"v_add_f32 v12, v12, v{X+i}")
        wave_sum(a, 12, 28)
        a("v_mov_b32 v13, s28")
        a("v_mul_f32 v13, s30, v13")
        for i in range(16):
            a(f"v_sub_f32 v{T+i}, v{X+i}, v13")
        a(f"v_mul_f32 v12, v{T}, v{T}")
        for i in range(1, 16):
            a(f"v_fmac_f32 v12, v{T+i}, v{T+i}")
        wave_sum(a, 12, 28)
        a("v_mov_b32 v14, s28")
        a("v_mul_f32 v14, s30, v14")
        rnd2(a, 13, 14, 15)
        a("v_add_f32 v14, s31, v14")
        a("v_cvt_pk_bf16_f32 v15, v14, v14")
        a("v_lshlrev_b32 v14, 16, v15")
        a("v_sqrt_f32 v14, v14")
        a("s_nop 0")
        a("v_cvt_pk_bf16_f32 v15, v14, v14")
        a("v_lshlrev_b32 v14, 16, v15")
        a("v_rcp_f32 v15, v14")
        if save:
            a("v_lshlrev_b32 v48, 3, v2")
            a("v_cmp_eq_u32 vcc, 0, v1")
            a("s_and_saveexec_b64 s[26:27], vcc")
            a("v_mov_b32 v50, v13")
            a("v_mov_b32 v51, v14")
            a("buffer_store_dwordx2 v[50:51], v48, s[24:27], 0 offen")
            a("s_mov_b64 exec, s[26:27]")
        for i in range(16):
            a(f"v_sub_f32 v{X+i}, v{X+i}, v13")
        for i in range(0, 16, 2):
            rnd2(a, X + i, X + i + 1, 12)
        for i in range(16):
            a(f"v_mul_f32 v{T+i}, v{X+i}, v15")
            a(f"v_fma_f32 v{X+i}, -v{T+i}, v14, v{X+i}")
            a(f"v_fmac_f32 v{T+i}, v{X+i}, v15")
        for i in range(0, 16, 2):
            a(f"v_cvt_pk_bf16_f32 v{4+i//2}, v{T+i}, v{T+i+1}")
            a(f"v_lshlrev_b32 v{X+i}, 16, v{4+i//2}")
            a(f"v_and_b32 v{X+i+1}, 0xffff0000, v{4+i//2}")
    a.lines = [l.replace("s[24:27], 0 offen", "s[40:43], 0 offen") for l in a.lines]
    srd(a, 40, 12, S * 8, WS_STATS)
    ln_pass(True)
    ln_pass(False)
    a.lines = [l.replace("s[24:27], 0 offen", "s[40:43], 0 offen") for l in a.lines]
    a("buffer_store_dwordx4 v[4:7], v3, s[20:23], 0 offen")
    a("buffer_store_dwordx4 v[8:11], v3, s[20:23], 0 offen offset:1024")
    a("s_endpgm")
    a.label("prep_kv")
    a("s_sub_u32 s3, s2, 512")
    a("s_and_b32 s14, s3, 15")
    a("s_lshr_b32 s15, s3, 4")
    a("v_and_b32 v1, 7, v0")
    a("v_lshrrev_b32 v2, 3, v0")
    a("s_lshl_b32 s14, s14, 7")
    a("s_lshl_b32 s15, s15, 6")
    a("v_lshl_add_u32 v2, v2, 2, s14")
    a("v_lshl_add_u32 v1, v1, 3, s15")
    a("v_lshlrev_b32 v3, 11, v2")
    a("v_lshl_add_u32 v3, v1, 1, v3")
    a("s_waitcnt lgkmcnt(0)")
    srd(a, 16, 6, S * D * 2)
    srd(a, 20, 8, S * D * 2)
    srd(a, 24, 10, D * 8)
    srd(a, 28, 12, D * S * 2, WS_KVT)
    KO = 4
    for i in range(7):
        a(f"v_add_u32 v{KO+i}, {(i-3)*2048 & 0xffffffff:#x}, v3")
    KR = 16
    VR = 44
    WR = 60
    for i in range(7):
        a(f"buffer_load_dwordx4 v[{KR+4*i}:{KR+4*i+3}], v{KO+i}, s[16:19], 0 offen nt")
    for i in range(4):
        a(f"buffer_load_dwordx4 v[{VR+4*i}:{VR+4*i+3}], v{KO+3+i}, s[20:23], 0 offen nt")
    a("v_lshlrev_b32 v11, 3, v1")
    for i in range(4):
        a(f"buffer_load_dwordx4 v[{WR+4*i}:{WR+4*i+3}], v11, s[24:27], 0 offen offset:{16*i}")
    a("v_lshlrev_b32 v12, 12, v1")
    if rev:
        a("v_xor_b32 v13, 4, v2")
        a("v_lshl_add_u32 v12, v13, 1, v12")
    else:
        a("v_lshl_add_u32 v12, v2, 1, v12")
    a("s_waitcnt vmcnt(0)")
    KF = 80
    VF = 88
    WF = 92
    P = 96
    for j in range(8):
        dw, hi = j >> 1, j & 1
        def unp(dst, src):
            if hi: a(f"v_and_b32 v{dst}, 0xffff0000, v{src}")
            else: a(f"v_lshlrev_b32 v{dst}, 16, v{src}")
        for i in range(7): unp(KF + i, KR + 4 * i + dw)
        for i in range(4): unp(VF + i, VR + 4 * i + dw)
        a(f"v_lshlrev_b32 v{WF}, 16, v{WR+2*j}")
        a(f"v_and_b32 v{WF+1}, 0xffff0000, v{WR+2*j}")
        a(f"v_lshlrev_b32 v{WF+2}, 16, v{WR+2*j+1}")
        a(f"v_and_b32 v{WF+3}, 0xffff0000, v{WR+2*j+1}")
        for t in range(4):
            for r in range(4):
                a(f"v_mul_f32 v{P+4*t+r}, v{KF+r+t}, v{WF+3-t}")
            rnd2(a, P + 4 * t, P + 4 * t + 1, 13)
            rnd2(a, P + 4 * t + 2, P + 4 * t + 3, 13)
        for t in range(1, 4):
            for r in range(4):
                a(f"v_add_f32 v{P+r}, v{P+r}, v{P+4*t+r}")
            rnd2(a, P, P + 1, 13)
            rnd2(a, P + 2, P + 3, 13)
        for r in range(4):
            a(f"v_mul_f32 v{P+r}, v{P+r}, v{VF+r}")
        o = 112 + 2 * (j & 1)
        if rev:
            a(f"v_cvt_pk_bf16_f32 v{o}, v{P+3}, v{P+2}")
            a(f"v_cvt_pk_bf16_f32 v{o+1}, v{P+1}, v{P}")
        else:
            a(f"v_cvt_pk_bf16_f32 v{o}, v{P}, v{P+1}")
            a(f"v_cvt_pk_bf16_f32 v{o+1}, v{P+2}, v{P+3}")
        a(f"buffer_store_dwordx2 v[{o}:{o+1}], v12, s[28:31], 0 offen")
        a("v_add_u32 v12, 0x1000, v12")
    a("s_endpgm")
    if npf:
        a.label("prep_pf")
        a("s_load_dwordx2 s[4:5], s[0:1], 56")
        a(f"s_load_dwordx2 s[6:7], s[0:1], {32 if pfw2 == 2 else 72}")
        per = r1 * F * 2 // npf
        assert per % 4096 == 0
        a(f"s_mul_i32 s3, s2, {per}")
        a("v_lshlrev_b32 v1, 4, v0")
        a("v_add_u32 v1, s3, v1")
        a("s_waitcnt lgkmcnt(0)")
        srd(a, 8, 4, S * F * 2)
        srd(a, 12, 6, D * S * 2 if pfw2 == 2 else S * F * 2)
        n = per // 4096
        if pfw2 == 2:
            a(f"s_mul_i32 s3, s2, {D*S*2//npf}")
            a("v_lshlrev_b32 v2, 4, v0")
            a("v_add_u32 v2, s3, v2")
            for i in range(D * S * 2 // npf // 4096):
                a(f"s_mov_b32 s16, {4096*i}")
                a(f"buffer_load_dwordx4 v[{8+8*(i%8)}:{11+8*(i%8)}], v2, s[12:15], s16 offen")
        if xpf:
            a("s_and_b32 s17, s2, 7")
            a("s_lshr_b32 s18, s2, 3")
            a("s_lshl_b32 s18, s18, 6")
            a("v_lshrrev_b32 v3, 4, v0")
            a("v_add_u32 v3, s18, v3")
            a("s_movk_i32 s18, 7168")
            a("v_mul_lo_u32 v3, v3, s18")
            a("v_and_b32 v1, 15, v0")
            a("v_lshl_add_u32 v3, v1, 4, v3")
            a("s_lshl_b32 s17, s17, 8")
            a("v_add_u32 v3, s17, v3")
            for fi in range(4):
                if fi == 3:
                    a("s_cmp_ge_u32 s17, 1024")
                    a("s_cbranch_scc1 prep_done")
                for q in range(4):
                    a(f"s_mov_b32 s16, {fi*2048 + q*16*7168}")
                    a(f"buffer_load_dwordx4 v[{4+4*q}:{7+4*q}], v3, s[8:11], s16 offen{' nt' if xpf == 1 else ''}")
            n = 0
        for i in range(n):
            a(f"s_mov_b32 s16, {4096*i}")
            a(f"buffer_load_dwordx4 v[{4+8*(i%8)}:{7+8*(i%8)}], v1, s[8:11], s16 offen")
            if pfw2 == 1: a(f"buffer_load_dwordx4 v[{8+8*(i%8)}:{11+8*(i%8)}], v1, s[12:15], s16 offen")
    a.label("prep_done")
    a("s_endpgm")
    return kernel_desc(name, 120, 48)

def gen_gemm1(a, NST=4, compute=True, epilogue=True, nwg=224, only=0, blk=0):
    name = "gemm1_kernel"
    NK = S // 64
    SLOT = 32768
    kernel_header(a, name)
    a(f"s_cmp_ge_u32 s2, {nwg}")
    a("s_cbranch_scc1 g1_done")
    a("s_load_dwordx4 s[4:7], s[0:1], 56")
    a("s_load_dwordx2 s[8:9], s[0:1], 104")
    a("s_and_b32 s10, s2, 7")
    a("s_lshr_b32 s11, s2, 3")
    a("s_mul_i32 s12, s11, 37")
    a("s_lshr_b32 s12, s12, 8")
    a("s_mul_i32 s13, s12, 7")
    a("s_sub_u32 s13, s11, s13")
    a("s_and_b32 s14, s10, 3")
    a("s_mul_i32 s14, s14, 7")
    a("s_add_u32 s14, s14, s13")
    a("s_lshr_b32 s15, s10, 2")
    a("s_lshl_b32 s15, s15, 2")
    a("s_add_u32 s15, s15, s12")
    if blk == 2: a("s_mov_b32 s15, 0")
    if blk == 3:
        a("s_mov_b32 s15, 0"); a("s_mov_b32 s14, 0"); blk = 0
    a("v_and_b32 v1, 63, v0")
    a("v_lshrrev_b32 v2, 6, v0")
    a("s_nop 0")
    a("v_readfirstlane_b32 s16, v2")
    a("s_waitcnt lgkmcnt(0)")
    srd(a, 20, 4, S * F * 2)
    srd(a, 24, 8, S * D * 2, WS_H)
    srd(a, 28, 8, D * F * 2, WS_U)
    srd(a, 32, 6, F * 2)
    a("s_cmp_ge_u32 s16, 4")
    a("s_cbranch_scc1 g1_loader")
    a("s_and_b32 s17, s16, 1")
    a("s_lshr_b32 s18, s16, 1")
    a("v_lshrrev_b32 v3, 4, v1")
    a("v_bfe_u32 v4, v1, 2, 2")
    a("v_and_b32 v5, 3, v1")
    a("v_and_b32 v6, 1, v3")
    a("v_lshl_or_b32 v6, v6, 2, v4")
    a("v_lshl_add_u32 v7, v3, 3, v4")
    a("v_lshlrev_b32 v7, 8, v7")
    a("v_lshl_add_u32 v7, v5, 3, v7")
    AC, BC = 8, 12
    AA, BA = 16, 20
    a("s_lshl_b32 s19, s17, 2")
    a("s_lshl_b32 s36, s18, 2")
    for i in range(4):
        a(f"s_add_u32 s37, s19, {i}")
        a(f"v_xor_b32 v{AC+i}, s37, v6")
        a(f"v_lshl_add_u32 v{AC+i}, v{AC+i}, 5, v7")
        a(f"s_add_u32 s37, s36, {i}")
        a(f"v_xor_b32 v{BC+i}, s37, v6")
        a(f"v_lshl_add_u32 v{BC+i}, v{BC+i}, 5, v7")
        a(f"v_add_u32 v{BC+i}, 0x4000, v{BC+i}")
        a(f"v_mov_b32 v{AA+i}, v{AC+i}")
        a(f"v_mov_b32 v{BA+i}, v{BC+i}")
    a("s_lshl_b32 s37, s14, 7")
    a("s_lshl_b32 s38, s17, 6")
    a("s_add_u32 s37, s37, s38")
    a("v_lshl_add_u32 v24, v3, 2, s37")
    a("v_lshlrev_b32 v24, 1, v24")
    BI = 40
    for i in range(4):
        a(f"buffer_load_dwordx2 v[{BI+2*i}:{BI+2*i+1}], v24, s[32:35], 0 offen offset:{32*i}")
    FA = [64, 96]; FB = [80, 112]
    ACC = 128
    for i in range(64):
        a(f"v_mov_b32 v{ACC+i}, 0")
    a("s_mov_b32 s39, 0")
    a("s_mov_b32 s40, 0")
    a("s_barrier")
    def reads(buf, ks):
        L = []
        for i in range(4):
            for hh in range(2):
                L.append(f"ds_read_b64_tr_b16 v[{FA[buf]+4*i+2*hh}:{FA[buf]+4*i+2*hh+1}], v{AA+i} offset:{ks*8192+hh*1024}")
            for hh in range(2):
                L.append(f"ds_read_b64_tr_b16 v[{FB[buf]+4*i+2*hh}:{FB[buf]+4*i+2*hh+1}], v{BA+i} offset:{ks*8192+hh*1024}")
        return L
    def mfmas(buf):
        L = []
        for i in range(4):
            for j in range(4):
                c = ACC + 16 * i + 4 * j
                L.append(f"v_mfma_f32_16x16x32_bf16 v[{c}:{c+3}], v[{FA[buf]+4*i}:{FA[buf]+4*i+3}], v[{FB[buf]+4*j}:{FB[buf]+4*j+3}], v[{c}:{c+3}]")
        return L
    def interleave(M, R):
        R = list(R)
        for m in M:
            a(m)
            for _ in range(2):
                if R: a(R.pop(0))
        for r in R: a(r)
    if compute:
        for r in reads(0, 0): a(r)
    a.label("g1_cloop")
    if compute:
        a("s_waitcnt lgkmcnt(0)")
        interleave(mfmas(0), reads(1, 1))
        a("s_waitcnt lgkmcnt(0)")
    a("s_barrier")
    a(f"s_add_u32 s39, s39, {SLOT}")
    a(f"s_cmp_eq_u32 s39, {SLOT*NST}")
    a("s_cselect_b32 s39, 0, s39")
    upd = []
    for i in range(4):
        upd.append(f"v_add_u32 v{AA+i}, s39, v{AC+i}")
        upd.append(f"v_add_u32 v{BA+i}, s39, v{BC+i}")
    if compute:
        M = mfmas(1)
        a(M[0])
        for u in upd: a(u)
        interleave(M[1:], reads(0, 0))
    a("s_add_u32 s40, s40, 1")
    a(f"s_cmp_lt_u32 s40, {NK}")
    a("s_cbranch_scc1 g1_cloop")
    a("s_waitcnt lgkmcnt(0) vmcnt(0)")
    if epilogue:
        a("s_nop 7")
        a("s_lshl_b32 s41, s15, 7")
        a("s_lshl_b32 s42, s18, 6")
        a("s_add_u32 s41, s41, s42")
        a("v_and_b32 v25, 15, v1")
        a("v_add_u32 v25, s41, v25")
        a("s_movk_i32 s42, 7168")
        a("v_mul_lo_u32 v25, v25, s42")
        a("v_add_u32 v25, v25, v24")
        c1 = -2.0 * 0.7978845608028654 * 1.4426950408889634
        c2 = c1 * 0.044715
        import struct
        fb = lambda x: struct.unpack("<I", struct.pack("<f", x))[0]
        a(f"s_mov_b32 s43, {fb(c1):#x}")
        a(f"s_mov_b32 s44, {fb(c2):#x}")
        a("v_mov_b32 v26, s43")
        for i in range(4):
            a(f"v_lshlrev_b32 v48, 16, v{BI+2*i}")
            a(f"v_and_b32 v49, 0xffff0000, v{BI+2*i}")
            a(f"v_lshlrev_b32 v50, 16, v{BI+2*i+1}")
            a(f"v_and_b32 v51, 0xffff0000, v{BI+2*i+1}")
            for j in range(4):
                c = ACC + 16 * i + 4 * j
                rnd2(a, c, c + 1, 27)
                rnd2(a, c + 2, c + 3, 27)
                for r in range(4):
                    a(f"v_add_f32 v{c+r}, v{c+r}, v{48+r}")
                rnd2(a, c, c + 1, 27)
                rnd2(a, c + 2, c + 3, 27)
                for r in range(4):
                    a(f"v_mul_f32 v{52+r}, v{c+r}, v{c+r}")
                for r in range(4):
                    a(f"v_fma_f32 v{52+r}, v{52+r}, s44, v26")
                for r in range(4):
                    a(f"v_mul_f32 v{52+r}, v{52+r}, v{c+r}")
                for r in range(4):
                    a(f"v_exp_f32 v{52+r}, v{52+r}")
                for r in range(4):
                    a(f"v_add_f32 v{52+r}, 1.0, v{52+r}")
                for r in range(4):
                    a(f"v_rcp_f32 v{52+r}, v{52+r}")
                for r in range(4):
                    a(f"v_mul_f32 v{c+r}, v{c+r}, v{52+r}")
                o = 56 + 2 * (j & 1)
                a(f"v_cvt_pk_bf16_f32 v{o}, v{c}, v{c+1}")
                a(f"v_cvt_pk_bf16_f32 v{o+1}, v{c+2}, v{c+3}")
                a(f"v_add_u32 v{60+(j&1)}, {j*16*7168}, v25")
                a(f"buffer_store_dwordx2 v[{o}:{o+1}], v{60+(j&1)}, s[28:31], 0 offen offset:{32*i}")
    a("s_endpgm")
    a.label("g1_loader")
    a("s_sub_u32 s16, s16, 4")
    a("v_lshrrev_b32 v3, 4, v1")
    a("v_and_b32 v4, 15, v1")
    a("v_lshlrev_b32 v5, 1, v3")
    a("v_xor_b32 v5, v5, v4")
    a("v_xor_b32 v6, 8, v5")
    a("s_lshl_b32 s17, s16, 4")
    a("v_add_u32 v3, s17, v3")
    a("s_lshl_b32 s18, s14, 8")
    a(f"s_lshl_b32 s19, s15, {19 if blk else 8}")
    a("s_movk_i32 s36, 7168")
    VA, VB = 8, 12
    for q in range(4):
        c16 = 5 if q < 2 else 6
        a(f"v_add_u32 v7, {4*q}, v3")
        a(f"v_mul_lo_u32 v{VA+q}, v7, s36")
        a(f"v_lshl_add_u32 v{VA+q}, v{c16}, 4, v{VA+q}")
        a(f"v_add_u32 v{VA+q}, s18, v{VA+q}")
        a(f"v_lshlrev_b32 v{VB+q}, {8 if blk else 11}, v7")
        a(f"v_lshl_add_u32 v{VB+q}, v{c16}, 4, v{VB+q}")
        a(f"v_add_u32 v{VB+q}, s19, v{VB+q}")
        if q:
            a(f"v_subrev_u32 v{VA+q}, {1024*q}, v{VA+q}")
            a(f"v_subrev_u32 v{VB+q}, {1024*q}, v{VB+q}")
    a("s_lshl_b32 s37, s16, 12")
    a("s_mov_b32 s38, 0")
    a("s_mov_b32 s39, 0")
    a("s_mov_b32 s40, s37")
    def issue():
        a("s_mov_b32 m0, s40")
        a("s_nop 0")
        for q in range(4):
            if only == 2: a(f"buffer_load_dwordx4 v{VB+q}, s[24:27], s39 offen offset:{1024*q} lds")
            else: a(f"buffer_load_dwordx4 v{VA+q}, s[20:23], s38 offen offset:{1024*q} lds")
        a("s_add_u32 m0, s40, 0x4000")
        a("s_nop 0")
        for q in range(4):
            if only == 1: a(f"buffer_load_dwordx4 v{VA+q}, s[20:23], s38 offen offset:{1024*q} lds")
            else: a(f"buffer_load_dwordx4 v{VB+q}, s[24:27], s39 offen offset:{1024*q} lds")
        a(f"s_add_u32 s38, s38, {64*7168}")
        a(f"s_add_u32 s39, s39, {64*256 if blk else 64*2048}")
        a(f"s_add_u32 s40, s40, {SLOT}")
        a(f"s_add_u32 s41, s37, {SLOT*NST}")
        a("s_cmp_eq_u32 s40, s41")
        a("s_cselect_b32 s40, s37, s40")
    for st in range(NST):
        issue()
    a(f"s_waitcnt vmcnt({8*(NST-1)})")
    a("s_barrier")
    a("s_mov_b32 s42, 0")
    a.label("g1_lloop")
    a(f"s_waitcnt vmcnt({8*(NST-2)})")
    a("s_barrier")
    issue()
    a("s_add_u32 s42, s42, 1")
    a(f"s_cmp_lt_u32 s42, {NK-NST}")
    a("s_cbranch_scc1 g1_lloop")
    for j in range(NST):
        if j <= NST - 2:
            a(f"s_waitcnt vmcnt({8*(NST-2-j)})")
        a("s_barrier")
    a.label("g1_done")
    a("s_endpgm")
    return kernel_desc(name, 192, 48), SLOT * NST

def build(opts):
    a = Asm()
    a.lines.append('.amdgcn_target "amdgcn-amd-amdhsa--gfx950"')
    a.lines.append(".text")
    descs = []
    launches = []
    descs.append(gen_prep(a, 0))
    launches.append("; @launch kernel=prep_kernel grid=(768,1,1) block=(256,1,1) lds=0")
    d, lds = gen_gemm1(a, NST=opts.get("nst", 4), compute=opts.get("compute", True), epilogue=opts.get("epilogue", True), nwg=opts.get("nwg", 224), only=opts.get("only", 0), blk=opts.get("blk", 0))
    descs.append(d)
    launches.append(f"; @launch kernel=gemm1_kernel grid=(224,1,1) block=(512,1,1) lds={lds}")
    txt = HEADER + "\n".join(launches) + "\n" + a.text() + '.section .rodata,"a"\n.p2align 6\n' + ".p2align 6\n".join(descs)
    return txt

if __name__ == "__main__":
    opts = {}
    for arg in sys.argv[2:]:
        k, v = arg.split("=")
        opts[k] = int(v)
    open(sys.argv[1], "w").write(build(opts))
```

```python
from asmlib import *
from gen import rnd2, S, D, F, MB, WS_H, WS_STATS, WS_KVT, WS_Y2T, WS_U
from gen3 import interleave
import gen4

def gen_gemm2(a, NST=5, R2=3584, XA0=4, STAMP=0, ROT=0, ONT=0, CONV=0, CSPAN=24, LPRIO=0):
    if CONV: NST, XA0 = 4, 48
    name = "gemm2_kernel"
    NK = F // 64
    SLOT = 24576
    EB = SLOT * NST
    kernel_header(a, name)
    a("s_cmp_ge_u32 s2, 256")
    a("s_cbranch_scc1 g2_done")
    a("s_load_dwordx4 s[4:7], s[0:1], 72")
    a("s_load_dwordx2 s[8:9], s[0:1], 104")
    a("s_load_dwordx2 s[44:45], s[0:1], 0")
    a("s_load_dwordx2 s[46:47], s[0:1], 88")
    if CONV:
        a("s_load_dwordx4 s[68:71], s[0:1], 32")
        a("s_load_dwordx2 s[76:77], s[0:1], 96")
    a("s_and_b32 s10, s2, 7")
    a("s_lshr_b32 s11, s2, 3")
    a("s_and_b32 s12, s10, 1")
    a("s_lshl_b32 s12, s12, 2")
    a("s_and_b32 s13, s11, 3")
    a("s_add_u32 s14, s12, s13")
    a("s_lshr_b32 s12, s10, 1")
    a("s_lshl_b32 s12, s12, 3")
    a("s_lshr_b32 s13, s11, 2")
    a("s_add_u32 s15, s12, s13")
    a("v_and_b32 v1, 63, v0")
    a("v_lshrrev_b32 v2, 6, v0")
    a("s_nop 0")
    a("v_readfirstlane_b32 s16, v2")
    a("s_waitcnt lgkmcnt(0)")
    srd(a, 20, 8, D * F * 2, WS_U)
    srd(a, 24, 4, F * S * 2)
    if CONV:
        a("s_cmp_ge_u32 s16, 8")
        a("s_cbranch_scc1 g2_convw")
    a("s_cmp_ge_u32 s16, 4")
    a("s_cbranch_scc1 g2_loader")
    srd(a, 28, 46, S * D * 2)
    srd(a, 48, 8, S * 8, WS_STATS)
    srd(a, 56, 6, S * 2)
    a("s_and_b32 s17, s16, 1")
    a("s_lshr_b32 s18, s16, 1")
    a("v_lshrrev_b32 v3, 4, v1")
    a("v_bfe_u32 v4, v1, 2, 2")
    a("v_and_b32 v5, 3, v1")
    a("v_and_b32 v6, 15, v1")
    a("s_lshl_b32 s41, s15, 6")
    a("s_lshl_b32 s42, s18, 5")
    a("s_add_u32 s41, s41, s42")
    a("v_add_u32 v16, s41, v6")
    a("s_lshl_b32 s41, s14, 7")
    a("s_lshl_b32 s42, s17, 6")
    a("s_add_u32 s41, s41, s42")
    a("v_lshl_add_u32 v17, v3, 4, s41")
    a("v_lshlrev_b32 v18, 11, v16")
    a("v_lshl_add_u32 v18, v17, 1, v18")
    a("v_lshlrev_b32 v20, 3, v16")
    a("v_lshlrev_b32 v21, 1, v16")
    for j in range(2):
        a(f"buffer_load_dwordx2 v[{24+2*j}:{25+2*j}], v20, s[48:51], 0 offen offset:{128*j}")
        a(f"buffer_load_ushort v{28+j}, v21, s[56:59], 0 offen offset:{32*j}")
    if R2 < F:
        tot = (F - R2) * S * 2
        perw = (tot // 256 + 127) // 128 * 128
        a(f"s_mul_i32 s37, s2, {perw}")
        a(f"s_add_u32 s37, s37, {R2*S*2}")
        a("v_lshl_add_u32 v23, v0, 7, s37")
        for t in range((perw + 32767) // 32768):
            a(f"s_mov_b32 s37, {32768*t}")
            a("buffer_load_dword v2, v23, s[24:27], s37 offen")
    XAD = 112
    a("s_lshl_b32 s36, s18, 13")
    a("v_lshlrev_b32 v19, 8, v6")
    a("v_add_u32 v19, s36, v19")
    a("v_and_b32 v22, 1, v3")
    a("v_lshl_add_u32 v19, v22, 3, v19")
    a(f"v_add_u32 v19, {EB}, v19")
    a("v_lshrrev_b32 v22, 1, v3")
    a("s_lshl_b32 s36, s17, 3")
    a("v_add_u32 v22, s36, v22")
    for i in range(4):
        a(f"v_add_u32 v23, {2*i}, v22")
        a("v_xor_b32 v23, v23, v6")
        a(f"v_lshl_add_u32 v{XAD+i}, v23, 4, v19")
    a("s_lshl_b32 s19, s17, 12")
    a("v_lshl_add_u32 v8, v1, 4, s19")
    a("v_lshrrev_b32 v7, 1, v4")
    a("v_and_b32 v10, 1, v3")
    a("v_lshl_or_b32 v7, v10, 1, v7")
    a("v_lshl_add_u32 v12, v3, 2, v4")
    a("v_lshlrev_b32 v12, 7, v12")
    a("v_lshl_add_u32 v12, v5, 3, v12")
    a("s_lshl_b32 s19, s18, 1")
    YAD = 116
    a("s_lshl_b32 s37, s17, 13")
    a(f"s_add_u32 s37, s37, {EB+16384}")
    for j in range(2):
        a(f"s_add_u32 s36, s19, {j}")
        a(f"v_xor_b32 v{9+j}, s36, v7")
        a(f"v_lshl_add_u32 v{9+j}, v{9+j}, 5, v12")
        a(f"v_add_u32 v{YAD+j}, s37, v{9+j}")
        a(f"v_add_u32 v{9+j}, 0x4000, v{9+j}")
    for i in range(3): a(f"v_mov_b32 v{12+i}, v{8+i}")
    FA = [32, 56]; FB = [48, 72]
    ACC = 80
    XR = 120
    for i in range(32): a(f"v_mov_b32 v{ACC+i}, 0")
    a("s_mov_b32 s39, 0")
    a("s_mov_b32 s40, 0")
    a("s_barrier")
    def reads(buf, ks):
        L = []
        for j in range(2):
            for hh in range(2):
                L.append(f"ds_read_b64_tr_b16 v[{FB[buf]+4*j+2*hh}:{FB[buf]+4*j+2*hh+1}], v{13+j} offset:{ks*4096+hh*2048}")
        for i in range(4):
            L.append(f"ds_read_b128 v[{FA[buf]+4*i}:{FA[buf]+4*i+3}], v12 offset:{ks*8192+1024*i}")
        return L
    def mfmas(buf):
        L = []
        for i in range(4):
            for j in range(2):
                c = ACC + 8 * i + 4 * j
                L.append(f"v_mfma_f32_16x16x32_bf16 v[{c}:{c+3}], v[{FA[buf]+4*i}:{FA[buf]+4*i+3}], v[{FB[buf]+4*j}:{FB[buf]+4*j+3}], v[{c}:{c+3}]")
        return L
    for r in reads(0, 0): a(r)
    a.label("g2_cloop")
    a("s_waitcnt lgkmcnt(0)")
    interleave(a, mfmas(0), reads(1, 1))
    a("s_waitcnt lgkmcnt(0)")
    a("s_barrier")
    a(f"s_add_u32 s39, s39, {SLOT}")
    a(f"s_cmp_eq_u32 s39, {SLOT*NST}")
    a("s_cselect_b32 s39, 0, s39")
    M = mfmas(1)
    a(M[0])
    for i in range(3): a(f"v_add_u32 v{12+i}, s39, v{8+i}")
    interleave(a, M[1:], reads(0, 0))
    blocks = {}
    for j in range(2):
        m, sd, rc = 24 + 2 * j, 25 + 2 * j, 30 + j
        for i in range(4):
            b = Asm()
            if i == 0 and j == 0:
                b("s_waitcnt vmcnt(0)")
                for jj in range(2):
                    b(f"v_lshlrev_b32 v{28+jj}, 16, v{28+jj}")
                    b(f"v_rcp_f32 v{30+jj}, v{25+2*jj}")
            xr = XR + 4 * i + 2 * j
            X, T, Q, t, Y = 140, 144, 148, 152, 154
            b(f"ds_read_b64 v[{xr}:{xr+1}], v{XAD+i} offset:{4096*j}")
            b(f"ds_read_b64_tr_b16 v[{Y}:{Y+1}], v{YAD+j} offset:{2048*i}")
            b("s_waitcnt lgkmcnt(0)")
            b(f"v_lshlrev_b32 v{X}, 16, v{xr}")
            b(f"v_and_b32 v{X+1}, 0xffff0000, v{xr}")
            b(f"v_lshlrev_b32 v{X+2}, 16, v{xr+1}")
            b(f"v_and_b32 v{X+3}, 0xffff0000, v{xr+1}")
            for r in range(4): b(f"v_sub_f32 v{T+r}, v{X+r}, v{m}")
            rnd2(b, T, T + 1, t); rnd2(b, T + 2, T + 3, t)
            for r in range(4):
                b(f"v_mul_f32 v{Q+r}, v{T+r}, v{rc}")
                b(f"v_fma_f32 v{T+r}, -v{Q+r}, v{sd}, v{T+r}")
                b(f"v_fmac_f32 v{Q+r}, v{T+r}, v{rc}")
            rnd2(b, Q, Q + 1, t); rnd2(b, Q + 2, Q + 3, t)
            b(f"v_lshlrev_b32 v{T}, 16, v{Y}")
            b(f"v_and_b32 v{T+1}, 0xffff0000, v{Y}")
            b(f"v_lshlrev_b32 v{T+2}, 16, v{Y+1}")
            b(f"v_and_b32 v{T+3}, 0xffff0000, v{Y+1}")
            for r in range(4): b(f"v_mul_f32 v{Q+r}, v{Q+r}, v{T+r}")
            rnd2(b, Q, Q + 1, t); rnd2(b, Q + 2, Q + 3, t)
            for r in range(4): b(f"v_add_f32 v{X+r}, v{X+r}, v{Q+r}")
            b(f"v_cvt_pk_bf16_f32 v{xr}, v{X}, v{X+1}")
            b(f"v_cvt_pk_bf16_f32 v{xr+1}, v{X+2}, v{X+3}")
            blocks[XA0 + 4 * j + i] = [l.strip() for l in b.lines]
    a(f"s_sub_u32 s36, s40, {XA0}")
    a("s_cmp_gt_u32 s36, 7")
    a("s_cbranch_scc1 g2_noxa")
    for k in sorted(blocks):
        a(f"s_cmp_lg_u32 s40, {k}")
        a(f"s_cbranch_scc1 g2_blk{k}")
        for l in blocks[k]: a(l)
        a("s_branch g2_noxa")
        a.label(f"g2_blk{k}")
    a.label("g2_noxa")
    a("s_add_u32 s40, s40, 1")
    a(f"s_cmp_lt_u32 s40, {NK}")
    a("s_cbranch_scc1 g2_cloop")
    a("s_waitcnt lgkmcnt(0)")
    a("s_nop 7")
    for j in range(2):
        b2 = 28 + j
        O = 32 + 8 * j
        for i in range(4):
            c = ACC + 8 * i + 4 * j
            xr = XR + 4 * i + 2 * j
            X, t = 140, 152
            rnd2(a, c, c + 1, t); rnd2(a, c + 2, c + 3, t)
            for r in range(4): a(f"v_add_f32 v{c+r}, v{c+r}, v{b2}")
            rnd2(a, c, c + 1, t); rnd2(a, c + 2, c + 3, t)
            a(f"v_lshlrev_b32 v{X}, 16, v{xr}")
            a(f"v_and_b32 v{X+1}, 0xffff0000, v{xr}")
            a(f"v_lshlrev_b32 v{X+2}, 16, v{xr+1}")
            a(f"v_and_b32 v{X+3}, 0xffff0000, v{xr+1}")
            for r in range(4): a(f"v_add_f32 v{X+r}, v{X+r}, v{c+r}")
            a(f"v_cvt_pk_bf16_f32 v{O+2*i}, v{X}, v{X+1}")
            a(f"v_cvt_pk_bf16_f32 v{O+2*i+1}, v{X+2}, v{X+3}")
        a("s_nop 1")
        for k in range(2):
            a(f"v_permlane32_swap_b32 v{O+k}, v{O+4+k}")
            a(f"v_permlane32_swap_b32 v{O+2+k}, v{O+6+k}")
        a("s_nop 1")
        for k in range(2):
            a(f"v_permlane16_swap_b32 v{O+k}, v{O+2+k}")
            a(f"v_permlane16_swap_b32 v{O+4+k}, v{O+6+k}")
        a(f"v_add_u32 v22, {j*16*2048}, v18")
        a(f"buffer_store_dwordx4 v[{O}:{O+3}], v22, s[28:31], 0 offen{' nt' if ONT else ''}")
        a(f"buffer_store_dwordx4 v[{O+4}:{O+7}], v22, s[28:31], 0 offen offset:16{' nt' if ONT else ''}")
    a("s_endpgm")
    a.label("g2_loader")
    if LPRIO: a(f"s_setprio {LPRIO}")
    srd(a, 32, 44, S * D * 2)
    srd(a, 52, 8, D * S * 2, WS_Y2T)
    a("s_sub_u32 s16, s16, 4")
    a("v_lshrrev_b32 v3, 3, v1")
    a("v_bfe_u32 v4, v1, 4, 2")
    a("v_and_b32 v5, 7, v1")
    a(f"s_mul_i32 s17, s14, {112*8192}")
    a("s_lshl_b32 s18, s16, 12")
    a("s_add_u32 s17, s17, s18")
    a("v_lshl_add_u32 v12, v1, 4, s17")
    VB = 16
    a("v_lshlrev_b32 v6, 1, v4")
    a("v_xor_b32 v6, v6, v5")
    a("s_lshl_b32 s17, s16, 4")
    a("v_add_u32 v8, s17, v3")
    a("s_lshl_b32 s18, s15, 7")
    for q in range(2):
        a(f"v_add_u32 v9, {8*q}, v8")
        a(f"v_lshlrev_b32 v{VB+q}, 12, v9")
        a(f"v_lshl_add_u32 v{VB+q}, v6, 4, v{VB+q}")
        a(f"v_add_u32 v{VB+q}, s18, v{VB+q}")
        if q: a(f"v_subrev_u32 v{VB+q}, {1024*q}, v{VB+q}")
    a("s_lshl_b32 s37, s16, 12")
    a("s_lshl_b32 s43, s16, 11")
    a("s_add_u32 s43, s43, 0x4000")
    if ROT:
        a(f"s_mul_i32 s38, s11, {ROT}")
        a(f"s_cmp_ge_u32 s38, {NK}")
        a(f"s_cselect_b32 s39, {NK}, 0")
        a("s_sub_u32 s38, s38, s39")
        a("s_lshl_b32 s39, s38, 18")
        a("s_lshl_b32 s38, s38, 14")
    else:
        a("s_mov_b32 s38, 0")
        a("s_mov_b32 s39, 0")
    a("s_mov_b32 s40, 0")
    def issue():
        a("s_add_u32 m0, s40, s37")
        a("s_nop 0")
        for q in range(4):
            a(f"buffer_load_dwordx4 v12, s[20:23], s38 offen offset:{1024*q} lds")
        a("s_add_u32 m0, s40, s43")
        a("s_nop 0")
        for q in range(2):
            a(f"buffer_load_dwordx4 v{VB+q}, s[24:27], s39 offen offset:{1024*q} lds")
        a("s_add_u32 s38, s38, 0x4000")
        a(f"s_add_u32 s39, s39, {64*4096}")
        if ROT:
            a(f"s_cmp_eq_u32 s38, {NK*0x4000}")
            a("s_cselect_b32 s38, 0, s38")
            a("s_cselect_b32 s39, 0, s39")
        a(f"s_add_u32 s40, s40, {SLOT}")
        a(f"s_cmp_eq_u32 s40, {SLOT*NST}")
        a("s_cselect_b32 s40, 0, s40")
    issue()
    def etiles():
        a("v_and_b32 v20, 15, v1")
        a("s_lshl_b32 s17, s15, 6")
        a("s_lshl_b32 s18, s16, 4")
        a("s_add_u32 s17, s17, s18")
        a("s_lshl_b32 s18, s14, 8")
        a(f"s_add_u32 m0, s37, {EB}")
        for q in range(4):
            a(f"v_add_u32 v21, {4*q}, v4")
            a("v_xor_b32 v22, v21, v20")
            a("v_add_u32 v21, s17, v21")
            a("v_lshlrev_b32 v21, 11, v21")
            a("v_lshl_add_u32 v21, v22, 4, v21")
            a("v_add_u32 v21, s18, v21")
            if q: a(f"v_subrev_u32 v21, {1024*q}, v21")
            a(f"buffer_load_dwordx4 v21, s[32:35], 0 offen offset:{1024*q} lds")
        a("s_lshl_b32 s17, s14, 7")
        a("s_lshl_b32 s18, s16, 5")
        a("s_add_u32 s17, s17, s18")
        a("s_lshl_b32 s18, s15, 7")
        a(f"s_add_u32 m0, s37, {EB+16384}")
        for q in range(4):
            a(f"v_add_u32 v21, {8*q}, v3")
            a("v_add_u32 v21, s17, v21")
            a("v_lshlrev_b32 v21, 12, v21")
            a("v_lshl_add_u32 v21, v6, 4, v21")
            a("v_add_u32 v21, s18, v21")
            if q: a(f"v_subrev_u32 v21, {1024*q}, v21")
            a(f"buffer_load_dwordx4 v21, s[52:55], 0 offen offset:{1024*q} lds")

    if not CONV: etiles()
    for st in range(1, NST): issue()
    a(f"s_waitcnt vmcnt({6*(NST-1)+(0 if CONV else 8)})")
    a("s_barrier")
    a("s_mov_b32 s42, 0")
    a.label("g2_lloop")
    a(f"s_waitcnt vmcnt({6*(NST-2)})")
    a("s_barrier")
    issue()
    a("s_add_u32 s42, s42, 1")
    a(f"s_cmp_lt_u32 s42, {NK-NST}")
    a("s_cbranch_scc1 g2_lloop")
    for j in range(NST):
        if j <= NST - 2:
            a(f"s_waitcnt vmcnt({6*(NST-2-j)})")
        a("s_barrier")
    a("s_endpgm")
    if CONV:
        a.label("g2_convw")
        a("s_sub_u32 s16, s16, 8")
        a("s_lshl_b32 s64, s14, 7")
        a("s_lshl_b32 s65, s15, 2")
        a("s_add_u32 s64, s64, s65")
        a("s_add_u32 s64, s64, s16")
        srd(a, 80, 76, 256)
        cs = Asm(); gen4.conv_setup(cs, EB)
        for l in cs.lines:
            for i in range(4): l = l.replace(f"v{192+i},", f"v{24+i},")
            a.lines.append(l)
        nb_bar = 0
        for _ in range(8): a("s_barrier"); nb_bar += 1
        a("s_waitcnt vmcnt(0)")
        fl, nb = gen4.conv_flat_sb()
        ep = Asm(); gen4.conv_epilogue(ep)
        fl = fl + [l.strip().replace("0 offen offset", "0 offen sc1 offset") if "buffer_store" in l else l.strip() for l in ep.lines]
        fl = [(l.replace(" sc1 offset:", " offset:") + " sc1") if " sc1 offset:" in l else l for l in fl]
        for ins in fl[:nb]: a(ins)
        fl = fl[nb:]
        per = (len(fl) + CSPAN - 1) // CSPAN
        while fl:
            a("s_barrier"); nb_bar += 1
            for ins in fl[:per]: a(ins)
            fl = fl[per:]
        for _ in range(6): a("s_barrier"); nb_bar += 1
        a("s_waitcnt vmcnt(0)")
        a("s_barrier"); nb_bar += 1
        a("s_cmp_lg_u32 s16, 0")
        a("s_cbranch_scc1 g2_done")
        a("s_lshl_b32 s65, s14, 4")
        a("v_mov_b32 v3, s65")
        a("v_mov_b32 v4, 1")
        a("v_cmp_eq_u32 vcc, 0, v1")
        a("s_and_saveexec_b64 s[72:73], vcc")
        a("buffer_atomic_add v4, v3, s[80:83], 0 offen sc1")
        a("s_mov_b64 exec, s[72:73]")
        a(f"s_mov_b32 s84, {nb_bar}")
        a("s_mov_b32 s85, 0")
        assert nb_bar < XA0 - 8
        a.label("g2_cpoll")
        a("buffer_load_dword v4, v3, s[80:83], 0 offen sc1")
        for _ in range(3):
            lbl = a.newlabel("g2_cnb")
            a(f"s_cmp_ge_u32 s84, {XA0-4}")
            a(f"s_cbranch_scc1 {lbl}")
            a("s_barrier")
            a("s_add_u32 s84, s84, 1")
            a.label(lbl)
        a("s_waitcnt vmcnt(0)")
        a("v_readfirstlane_b32 s86, v4")
        a("s_add_u32 s85, s85, 1")
        a("s_cmp_ge_u32 s86, 32")
        a("s_cbranch_scc1 g2_cready")
        a("s_cmp_ge_u32 s85, 0x40000")
        a("s_cbranch_scc1 g2_cready")
        a("s_branch g2_cpoll")
        a.label("g2_cready")
        a("buffer_inv sc1")
        for _ in range(2):
            a("s_barrier")
            a("s_add_u32 s84, s84, 1")
        a("s_waitcnt vmcnt(0)")
        srd(a, 32, 44, S * D * 2)
        srd(a, 52, 8, D * S * 2, WS_Y2T)
        a("v_lshrrev_b32 v3, 3, v1")
        a("v_bfe_u32 v4, v1, 4, 2")
        a("v_and_b32 v5, 7, v1")
        a("v_lshlrev_b32 v6, 1, v4")
        a("v_xor_b32 v6, v6, v5")
        for qq in range(4):
            a(f"s_mov_b32 s16, {qq}")
            a("s_lshl_b32 s37, s16, 12")
            etiles()
        a.label("g2_cbar")
        a(f"s_cmp_ge_u32 s84, {XA0}")
        a("s_cbranch_scc1 g2_cfin")
        a("s_barrier")
        a("s_add_u32 s84, s84, 1")
        a("s_branch g2_cbar")
        a.label("g2_cfin")
        a("s_waitcnt vmcnt(0)")
        a("s_barrier")
    a.label("g2_done")
    a("s_endpgm")
    return kernel_desc(name, 160, 90), EB + (4 * gen4.CONV_LDS if CONV else 32768)
```

```python
from asmlib import *
from gen import rnd2, S, D, F, MB, WS_H, WS_STATS, WS_KVT, WS_Y2T, WS_U
from gen3 import interleave
WS_P = 32 * MB

def gen_gemm2(a, NST=4, R2=3584, XA0=3, STAMP=0):
    def st(k):
        if not STAMP: return
        a("s_memrealtime s[84:85]")
        a("s_waitcnt lgkmcnt(0)")
        a("v_mov_b32 v226, s84")
        a(f"buffer_store_dword v226, v227, s[80:83], 0 offen offset:{4*k}")
    name = "gemm2_kernel"
    NK = F // 64 // 2
    SLOT = 32768
    EB = SLOT * NST
    kernel_header(a, name)
    a("s_cmp_ge_u32 s2, 256")
    a("s_cbranch_scc1 g2_done")
    a("s_load_dwordx4 s[4:7], s[0:1], 72")
    a("s_load_dwordx4 s[60:63], s[0:1], 96")
    a("s_load_dwordx2 s[44:45], s[0:1], 0")
    a("s_load_dwordx2 s[46:47], s[0:1], 88")
    a("s_and_b32 s10, s2, 7")
    a("s_lshr_b32 s11, s2, 3")
    a("s_and_b32 s64, s11, 1")
    a("s_and_b32 s12, s10, 1")
    a("s_lshl_b32 s12, s12, 2")
    a("s_bfe_u32 s13, s11, 0x20001")
    a("s_add_u32 s14, s12, s13")
    a("s_lshr_b32 s12, s10, 1")
    a("s_lshl_b32 s12, s12, 2")
    a("s_lshr_b32 s13, s11, 3")
    a("s_add_u32 s15, s12, s13")
    a("s_lshl_b32 s65, s14, 4")
    a("s_add_u32 s65, s65, s15")
    a("v_and_b32 v1, 63, v0")
    a("v_lshrrev_b32 v2, 6, v0")
    a("s_nop 0")
    a("v_readfirstlane_b32 s16, v2")
    a("s_waitcnt lgkmcnt(0)")
    a("s_mov_b32 s8, s62"); a("s_mov_b32 s9, s63")
    srd(a, 20, 8, D * F * 2, WS_U)
    srd(a, 24, 4, F * S * 2)
    a("s_cmp_ge_u32 s16, 4")
    a("s_cbranch_scc1 g2_loader")
    srd(a, 28, 46, S * D * 2)
    srd(a, 48, 8, S * 8, WS_STATS)
    srd(a, 56, 6, S * 2)
    srd(a, 68, 60, 256)
    srd(a, 72, 8, 128 * 65536, WS_P)
    a("s_and_b32 s17, s16, 1")
    a("s_lshr_b32 s18, s16, 1")
    if STAMP:
        srd(a, 80, 8, 1 << 20, 64 * MB)
        a("s_lshl_b32 s84, s2, 2")
        a("s_add_u32 s84, s84, s16")
        a("s_lshl_b32 s84, s84, 6")
        a("v_mov_b32 v227, s84")
    st(0)
    a("v_lshrrev_b32 v3, 4, v1")
    a("v_bfe_u32 v4, v1, 2, 2")
    a("v_and_b32 v5, 3, v1")
    a("v_and_b32 v6, 15, v1")
    a("s_lshl_b32 s41, s15, 7")
    a("s_lshl_b32 s42, s18, 6")
    a("s_add_u32 s41, s41, s42")
    a("v_add_u32 v16, s41, v6")
    a("s_lshl_b32 s41, s14, 7")
    a("s_lshl_b32 s42, s17, 6")
    a("s_add_u32 s41, s41, s42")
    a("v_lshl_add_u32 v17, v3, 4, s41")
    a("v_lshlrev_b32 v18, 11, v16")
    a("v_lshl_add_u32 v18, v17, 1, v18")
    a("v_lshlrev_b32 v20, 3, v16")
    a("v_lshlrev_b32 v21, 1, v16")
    ST = 192
    for j in range(4):
        a(f"buffer_load_dwordx2 v[{ST+2*j}:{ST+2*j+1}], v20, s[48:51], 0 offen offset:{128*j}")
        a(f"buffer_load_ushort v{ST+8+j}, v21, s[56:59], 0 offen offset:{32*j}")
    if R2 < F:
        tot = (F - R2) * S * 2
        perw = (tot // 256 + 127) // 128 * 128
        a(f"s_mul_i32 s37, s2, {perw}")
        a(f"s_add_u32 s37, s37, {R2*S*2}")
        a("v_lshl_add_u32 v23, v0, 7, s37")
        for t in range((perw + 32767) // 32768):
            a(f"s_mov_b32 s37, {32768*t}")
            a("buffer_load_dword v2, v23, s[24:27], s37 offen")
    a("v_and_b32 v7, 1, v3")
    a("v_lshl_or_b32 v7, v7, 2, v4")
    a("v_lshl_add_u32 v19, v3, 2, v4")
    a("v_lshlrev_b32 v19, 8, v19")
    a("v_lshl_add_u32 v19, v5, 3, v19")
    a("s_lshl_b32 s19, s18, 2")
    for j in range(4):
        a(f"s_add_u32 s36, s19, {j}")
        a(f"v_xor_b32 v{8+j}, s36, v7")
        a(f"v_lshl_add_u32 v{8+j}, v{8+j}, 5, v19")
        a(f"v_add_u32 v{24+j}, {EB+16384}, v{8+j}")
        a(f"v_add_u32 v{8+j}, 0x4000, v{8+j}")
    a("s_lshl_b32 s19, s17, 12")
    a("v_lshl_add_u32 v12, v1, 4, s19")
    a("s_lshl_b32 s36, s18, 13")
    a("v_lshlrev_b32 v19, 7, v6")
    a("v_add_u32 v19, s36, v19")
    a("v_and_b32 v22, 1, v3")
    a("v_lshl_add_u32 v19, v22, 3, v19")
    a(f"v_add_u32 v19, {EB}, v19")
    a("v_lshrrev_b32 v22, 1, v3")
    a("v_lshrrev_b32 v23, 1, v6")
    for i in range(4):
        a(f"v_add_u32 v{28+i}, {2*i}, v22")
        a(f"v_xor_b32 v{28+i}, v{28+i}, v23")
        a(f"v_lshl_add_u32 v{28+i}, v{28+i}, 4, v19")
    BA = [14, 15, 22, 23]
    a("v_mov_b32 v13, v12")
    for j in range(4): a(f"v_mov_b32 v{BA[j]}, v{8+j}")
    FA = [32, 64]; FB = [48, 80]
    ACC = 96
    XR = 160
    for i in range(64): a(f"v_mov_b32 v{ACC+i}, 0")
    a("s_mov_b32 s39, 0")
    a("s_mov_b32 s40, 0")
    a("s_barrier")
    st(1)
    def reads(buf, ks):
        L = []
        for i in range(4):
            L.append(f"ds_read_b128 v[{FA[buf]+4*i}:{FA[buf]+4*i+3}], v13 offset:{ks*8192+1024*i}")
            for hh in range(2):
                L.append(f"ds_read_b64_tr_b16 v[{FB[buf]+4*i+2*hh}:{FB[buf]+4*i+2*hh+1}], v{BA[i]} offset:{ks*8192+hh*4096}")
        return L
    def mfmas(buf):
        L = []
        for i in range(4):
            for j in range(4):
                c = ACC + 16 * i + 4 * j
                L.append(f"v_mfma_f32_16x16x32_bf16 v[{c}:{c+3}], v[{FA[buf]+4*i}:{FA[buf]+4*i+3}], v[{FB[buf]+4*j}:{FB[buf]+4*j+3}], v[{c}:{c+3}]")
        return L
    for r in reads(0, 0): a(r)
    a.label("g2_cloop")
    a("s_waitcnt lgkmcnt(0)")
    interleave(a, mfmas(0), reads(1, 1))
    a("s_waitcnt lgkmcnt(0)")
    a("s_barrier")
    a(f"s_add_u32 s39, s39, {SLOT}")
    a(f"s_cmp_eq_u32 s39, {SLOT*NST}")
    a("s_cselect_b32 s39, 0, s39")
    M = mfmas(1)
    a(M[0])
    a("v_add_u32 v13, s39, v12")
    for j in range(4): a(f"v_add_u32 v{BA[j]}, s39, v{8+j}")
    interleave(a, M[1:], reads(0, 0))
    blocks = {}
    for j in range(4):
        m, sd, rc = ST + 2 * j, ST + 2 * j + 1, ST + 12 + j
        for i in range(4):
            b = Asm()
            if i == 0 and j == 0:
                b("s_waitcnt vmcnt(0)")
                for jj in range(4):
                    b(f"v_lshlrev_b32 v{ST+8+jj}, 16, v{ST+8+jj}")
                    b(f"v_rcp_f32 v{ST+12+jj}, v{ST+2*jj+1}")
            xr = XR + 8 * j + 2 * i
            X, T, Q, t, Y = 208, 212, 216, 220, 222
            b(f"ds_read_b64 v[{xr}:{xr+1}], v{28+i} offset:{2048*j}")
            b(f"ds_read_b64_tr_b16 v[{Y}:{Y+1}], v{24+j} offset:{4096*i}")
            b("s_waitcnt lgkmcnt(0)")
            b(f"v_lshlrev_b32 v{X}, 16, v{xr}")
            b(f"v_and_b32 v{X+1}, 0xffff0000, v{xr}")
            b(f"v_lshlrev_b32 v{X+2}, 16, v{xr+1}")
            b(f"v_and_b32 v{X+3}, 0xffff0000, v{xr+1}")
            for r in range(4): b(f"v_sub_f32 v{T+r}, v{X+r}, v{m}")
            rnd2(b, T, T + 1, t); rnd2(b, T + 2, T + 3, t)
            for r in range(4):
                b(f"v_mul_f32 v{Q+r}, v{T+r}, v{rc}")
                b(f"v_fma_f32 v{T+r}, -v{Q+r}, v{sd}, v{T+r}")
                b(f"v_fmac_f32 v{Q+r}, v{T+r}, v{rc}")
            rnd2(b, Q, Q + 1, t); rnd2(b, Q + 2, Q + 3, t)
            b(f"v_lshlrev_b32 v{T}, 16, v{Y}")
            b(f"v_and_b32 v{T+1}, 0xffff0000, v{Y}")
            b(f"v_lshlrev_b32 v{T+2}, 16, v{Y+1}")
            b(f"v_and_b32 v{T+3}, 0xffff0000, v{Y+1}")
            for r in range(4): b(f"v_mul_f32 v{Q+r}, v{Q+r}, v{T+r}")
            rnd2(b, Q, Q + 1, t); rnd2(b, Q + 2, Q + 3, t)
            for r in range(4): b(f"v_add_f32 v{X+r}, v{X+r}, v{Q+r}")
            b(f"v_cvt_pk_bf16_f32 v{xr}, v{X}, v{X+1}")
            b(f"v_cvt_pk_bf16_f32 v{xr+1}, v{X+2}, v{X+3}")
            blocks[XA0 + 4 * j + i] = [l.strip() for l in b.lines]
    a("s_cmp_lg_u32 s17, s64")
    a("s_cbranch_scc1 g2_noxa")
    a(f"s_sub_u32 s36, s40, {XA0}")
    a("s_cmp_gt_u32 s36, 15")
    a("s_cbranch_scc1 g2_noxa")
    for k in sorted(blocks):
        a(f"s_cmp_lg_u32 s40, {k}")
        a(f"s_cbranch_scc1 g2_blk{k}")
        for l in blocks[k]: a(l)
        a("s_branch g2_noxa")
        a.label(f"g2_blk{k}")
    a.label("g2_noxa")
    a("s_add_u32 s40, s40, 1")
    a(f"s_cmp_lt_u32 s40, {NK}")
    a("s_cbranch_scc1 g2_cloop")
    a("s_waitcnt lgkmcnt(0)")
    a("s_nop 7")
    st(2)
    a("s_cmp_eq_u32 s17, s64")
    a("s_cbranch_scc1 g2_keeper")
    a("s_lshl_b32 s36, s65, 1")
    a("s_add_u32 s36, s36, s64")
    a("s_lshl_b32 s36, s36, 1")
    a("s_add_u32 s36, s36, s18")
    a("s_lshl_b32 s36, s36, 14")
    a("v_lshl_add_u32 v19, v1, 4, s36")
    for q in range(16):
        if q % 4 == 0 and q: a("v_add_u32 v19, 0x1000, v19")
        a(f"buffer_store_dwordx4 v[{ACC+4*q}:{ACC+4*q+3}], v19, s[72:75], 0 offen offset:{1024*(q%4)} sc1")
    a("s_waitcnt vmcnt(0)")
    st(3)
    a("s_barrier")
    a("s_cmp_lg_u32 s18, 0")
    a("s_cbranch_scc1 g2_done")
    a("s_lshl_b32 s36, s65, 1")
    a("s_add_u32 s36, s36, s64")
    a("s_lshr_b32 s37, s36, 5")
    a("s_lshl_b32 s37, s37, 2")
    a("s_and_b32 s36, s36, 31")
    a("s_lshl_b32 s36, 1, s36")
    a("v_mov_b32 v19, s37")
    a("v_mov_b32 v20, s36")
    a("v_cmp_eq_u32 vcc, 0, v1")
    a("s_and_saveexec_b64 s[76:77], vcc")
    a("buffer_atomic_or v20, v19, s[68:71], 0 offen sc1")
    a("s_endpgm")
    a.label("g2_keeper")
    a("s_barrier")
    a("s_xor_b32 s38, s64, 1")
    a("s_lshl_b32 s36, s65, 1")
    a("s_add_u32 s36, s36, s38")
    a("s_lshr_b32 s37, s36, 5")
    a("s_lshl_b32 s37, s37, 2")
    a("s_and_b32 s41, s36, 31")
    a("v_mov_b32 v19, s37")
    a("s_mov_b32 s42, 0")
    a.label("g2_poll")
    a("buffer_load_dword v20, v19, s[68:71], 0 offen sc1")
    a("s_waitcnt vmcnt(0)")
    a("v_readfirstlane_b32 s37, v20")
    a("s_add_u32 s42, s42, 1")
    a("s_lshr_b32 s37, s37, s41")
    a("s_and_b32 s37, s37, 1")
    a("s_cmp_eq_u32 s37, 1")
    a("s_cbranch_scc1 g2_polled")
    a("s_cmp_ge_u32 s42, 0x40000")
    a("s_cbranch_scc1 g2_polled")
    a("s_sleep 2")
    a("s_branch g2_poll")
    a.label("g2_polled")
    st(3)
    a("buffer_inv sc1")
    a("s_lshl_b32 s36, s36, 1")
    a("s_add_u32 s36, s36, s18")
    a("s_lshl_b32 s36, s36, 14")
    a("v_lshl_add_u32 v19, v1, 4, s36")
    a("s_waitcnt vmcnt(0)")
    for q in range(16):
        if q % 4 == 0 and q: a("v_add_u32 v19, 0x1000, v19")
        a(f"buffer_load_dwordx4 v[{32+4*q}:{32+4*q+3}], v19, s[72:75], 0 offen offset:{1024*(q%4)} sc1")
    for q in range(16):
        a(f"s_waitcnt vmcnt({15-q if not STAMP else 0})")
        for r in range(4):
            a(f"v_add_f32 v{ACC+4*q+r}, v{ACC+4*q+r}, v{32+4*q+r}")
    st(4)
    for j in range(4):
        b2 = ST + 8 + j
        O = 32 + 8 * (j & 1)
        for i in range(4):
            c = ACC + 16 * i + 4 * j
            xr = XR + 8 * j + 2 * i
            X, t = 208, 220
            rnd2(a, c, c + 1, t); rnd2(a, c + 2, c + 3, t)
            for r in range(4): a(f"v_add_f32 v{c+r}, v{c+r}, v{b2}")
            rnd2(a, c, c + 1, t); rnd2(a, c + 2, c + 3, t)
            a(f"v_lshlrev_b32 v{X}, 16, v{xr}")
            a(f"v_and_b32 v{X+1}, 0xffff0000, v{xr}")
            a(f"v_lshlrev_b32 v{X+2}, 16, v{xr+1}")
            a(f"v_and_b32 v{X+3}, 0xffff0000, v{xr+1}")
            for r in range(4): a(f"v_add_f32 v{X+r}, v{X+r}, v{c+r}")
            a(f"v_cvt_pk_bf16_f32 v{O+2*i}, v{X}, v{X+1}")
            a(f"v_cvt_pk_bf16_f32 v{O+2*i+1}, v{X+2}, v{X+3}")
        a("s_nop 1")
        for k in range(2):
            a(f"v_permlane32_swap_b32 v{O+k}, v{O+4+k}")
            a(f"v_permlane32_swap_b32 v{O+2+k}, v{O+6+k}")
        a("s_nop 1")
        for k in range(2):
            a(f"v_permlane16_swap_b32 v{O+k}, v{O+2+k}")
            a(f"v_permlane16_swap_b32 v{O+4+k}, v{O+6+k}")
        a(f"v_add_u32 v22, {j*16*2048}, v18")
        a(f"buffer_store_dwordx4 v[{O}:{O+3}], v22, s[28:31], 0 offen")
        a(f"buffer_store_dwordx4 v[{O+4}:{O+7}], v22, s[28:31], 0 offen offset:16")
    st(5)
    a("s_endpgm")
    a.label("g2_loader")
    srd(a, 32, 44, S * D * 2)
    srd(a, 52, 8, D * S * 2, WS_Y2T)
    a("s_sub_u32 s16, s16, 4")
    a("v_lshrrev_b32 v3, 3, v1")
    a("v_lshrrev_b32 v4, 4, v1")
    a("v_and_b32 v5, 7, v1")
    a("v_and_b32 v6, 15, v1")
    a(f"s_mul_i32 s17, s14, {112*8192}")
    a(f"s_mul_i32 s18, s64, {NK*16384}")
    a("s_add_u32 s17, s17, s18")
    a("s_lshl_b32 s18, s16, 12")
    a("s_add_u32 s17, s17, s18")
    a("v_lshl_add_u32 v12, v1, 4, s17")
    a("v_lshlrev_b32 v7, 1, v4")
    a("v_xor_b32 v7, v7, v6")
    a("v_xor_b32 v8, 8, v7")
    VB = 16
    a(f"s_mul_i32 s17, s64, {NK*64}")
    a("s_lshl_b32 s18, s16, 4")
    a("s_add_u32 s17, s17, s18")
    a("s_lshl_b32 s18, s15, 8")
    for q in range(4):
        a(f"v_add_u32 v9, {4*q}, v4")
        a("v_add_u32 v9, s17, v9")
        a(f"v_lshlrev_b32 v{VB+q}, 12, v9")
        a(f"v_lshl_add_u32 v{VB+q}, v{7+(q&1)}, 4, v{VB+q}")
        a(f"v_add_u32 v{VB+q}, s18, v{VB+q}")
        if q: a(f"v_subrev_u32 v{VB+q}, {1024*q}, v{VB+q}")
    a("s_lshl_b32 s37, s16, 12")
    a("s_add_u32 s43, s37, 0x4000")
    a("s_mov_b32 s38, 0")
    a("s_mov_b32 s39, 0")
    a("s_mov_b32 s40, 0")
    def issue():
        a("s_add_u32 m0, s40, s37")
        a("s_nop 0")
        for q in range(4):
            a(f"buffer_load_dwordx4 v12, s[20:23], s38 offen offset:{1024*q} lds")
        a("s_add_u32 m0, s40, s43")
        a("s_nop 0")
        for q in range(4):
            a(f"buffer_load_dwordx4 v{VB+q}, s[24:27], s39 offen offset:{1024*q} lds")
        a("s_add_u32 s38, s38, 0x4000")
        a(f"s_add_u32 s39, s39, {64*4096}")
        a(f"s_add_u32 s40, s40, {SLOT}")
        a(f"s_cmp_eq_u32 s40, {SLOT*NST}")
        a("s_cselect_b32 s40, 0, s40")
    issue()
    a("s_lshl_b32 s17, s15, 7")
    a("s_lshl_b32 s18, s16, 5")
    a("s_add_u32 s17, s17, s18")
    a("s_lshl_b32 s18, s14, 8")
    a("s_lshl_b32 s19, s64, 7")
    a("s_add_u32 s18, s18, s19")
    a(f"s_add_u32 m0, s37, {EB}")
    for q in range(4):
        a(f"v_add_u32 v22, {4*q}, v4")
        a("v_and_b32 v22, 7, v22")
        a("v_xor_b32 v22, v22, v5")
        a(f"v_add_u32 v21, {8*q}, v3")
        a("v_add_u32 v21, s17, v21")
        a("v_lshlrev_b32 v21, 11, v21")
        a("v_lshl_add_u32 v21, v22, 4, v21")
        a("v_add_u32 v21, s18, v21")
        if q: a(f"v_subrev_u32 v21, {1024*q}, v21")
        a(f"buffer_load_dwordx4 v21, s[32:35], 0 offen offset:{1024*q} lds")
    a("s_lshl_b32 s17, s14, 7")
    a("s_lshl_b32 s18, s64, 6")
    a("s_add_u32 s17, s17, s18")
    a("s_lshl_b32 s18, s16, 4")
    a("s_add_u32 s17, s17, s18")
    a("s_lshl_b32 s18, s15, 8")
    a(f"s_add_u32 m0, s37, {EB+16384}")
    for q in range(4):
        a(f"v_add_u32 v21, {4*q}, v4")
        a("v_add_u32 v21, s17, v21")
        a("v_lshlrev_b32 v21, 12, v21")
        a(f"v_lshl_add_u32 v21, v{7+(q&1)}, 4, v21")
        a("v_add_u32 v21, s18, v21")
        if q: a(f"v_subrev_u32 v21, {1024*q}, v21")
        a(f"buffer_load_dwordx4 v21, s[52:55], 0 offen offset:{1024*q} lds")
    for st in range(1, NST): issue()
    a(f"s_waitcnt vmcnt({8*(NST-1)+8})")
    a("s_barrier")
    a("s_mov_b32 s42, 0")
    a.label("g2_lloop")
    a(f"s_waitcnt vmcnt({8*(NST-2)})")
    a("s_barrier")
    issue()
    a("s_add_u32 s42, s42, 1")
    a(f"s_cmp_lt_u32 s42, {NK-NST}")
    a("s_cbranch_scc1 g2_lloop")
    for j in range(NST):
        if j <= NST - 2:
            a(f"s_waitcnt vmcnt({8*(NST-2-j)})")
        a("s_barrier")
    a.label("g2_done")
    a("s_endpgm")
    return kernel_desc(name, 228, 90), EB + 32768
```

```python
import sys, struct
from asmlib import *
from gen import rnd2, wave_sum, gen_prep, HEADER, S, D, F, MB, WS_H, WS_STATS, WS_KVT, WS_Y2T, WS_U
from gen3 import gelu_epi, gen_gemm2, interleave, fb

KOFF = 4608
KNT = ""
KCP2 = 4160
CONV_LDS = KOFF + 2 * KCP2

def conv_setup(a, ring_bytes):
    a("s_lshl_b32 s65, s64, 12")
    a("s_add_u32 s48, s68, s65"); a("s_addc_u32 s49, s69, 0"); a("s_movk_i32 s50, 4096"); a("s_mov_b32 s51, 0x00020000")
    a("s_add_u32 s52, s8, s65"); a("s_addc_u32 s53, s9, 0")
    a(f"s_add_u32 s56, s52, {WS_Y2T}"); a("s_addc_u32 s57, s53, 0"); a("s_movk_i32 s58, 4096"); a("s_mov_b32 s59, 0x00020000")
    a(f"s_add_u32 s52, s52, {WS_KVT}"); a("s_addc_u32 s53, s53, 0"); a("s_movk_i32 s54, 4096"); a("s_mov_b32 s55, 0x00020000")
    srd(a, 60, 70, D * 2)
    a(f"s_mul_i32 s66, s16, {CONV_LDS}")
    a(f"s_add_u32 s66, s66, {ring_bytes}")
    a("v_lshlrev_b32 v21, 4, v1")
    a("s_add_u32 m0, s66, 480")
    a("s_nop 0")
    for q in range(4):
        a(f"buffer_load_dwordx4 v21, s[52:55], 0 offen offset:{1024*q} lds")
    a("v_lshlrev_b32 v22, 6, v1")
    a("v_subrev_u32 v22, 32, v22")
    for i in range(4):
        a(f"v_add_u32 v23, {16*i}, v22")
        a(f"buffer_load_dwordx4 v[{64+4*i}:{67+4*i}], v23, s[48:51], 0 offen{KNT}")
    a("v_add_u32 v23, 64, v22")
    a("buffer_load_dword v80, v23, s[48:51], 0 offen")
    a("v_mov_b32 v23, 4064")
    a("buffer_load_dwordx4 v[84:87], v23, s[48:51], 0 offen")
    a("buffer_load_dwordx4 v[88:91], v23, s[48:51], 0 offen offset:16")
    a("v_mov_b32 v92, 0")
    a("s_lshl_b32 s65, s64, 1")
    a("v_mov_b32 v22, s65")
    a("buffer_load_ushort v20, v22, s[60:63], 0 offen")
    for i in range(4): a(f"v_mov_b32 v{32+i}, 0")
    a("v_add_u32 v22, s66, v21")
    a("v_cmp_gt_u32 vcc, 30, v1")
    a("s_and_saveexec_b64 s[72:73], vcc")
    a("ds_write_b128 v22, v[32:35]")
    a("s_mov_b64 exec, s[72:73]")
    a("v_and_b32 v22, 15, v1")
    a("v_lshrrev_b32 v23, 4, v1")
    a("v_add_u32 v16, 1, v22")
    a("v_and_b32 v16, 1, v16")
    a("v_lshlrev_b32 v17, 3, v23")
    a("v_sub_u32 v17, v22, v17")
    a("v_sub_u32 v17, v17, v16")
    a("v_lshlrev_b32 v17, 1, v17")
    a(f"v_mul_u32_u24 v16, {KCP2}, v16")
    a("v_add_u32 v16, v16, v17")
    a("v_add_u32 v16, s66, v16")
    a(f"v_add_u32 v192, {KOFF+50}, v16")
    for i in range(1, 4): a(f"v_add_u32 v{192+i}, {KOFF+50+1024*i}, v16")
    a("v_lshlrev_b32 v17, 5, v22")
    a("v_lshl_add_u32 v17, v23, 4, v17")
    a("v_add_u32 v17, s66, v17")
    a("v_and_b32 v18, 1, v23")
    a("v_lshlrev_b32 v18, 3, v18")
    a("v_lshrrev_b32 v19, 1, v23")
    a("v_lshlrev_b32 v19, 4, v19")
    a("v_lshl_add_u32 v19, v22, 5, v19")
    a("v_sub_u32 v18, v19, v18")
    a("v_add_u32 v18, s66, v18")
    a("v_add_u32 v18, 488, v18")
    a("v_lshlrev_b32 v19, 5, v22")
    a("v_lshl_add_u32 v19, v23, 3, v19")

CACC = 32
CFA = [64, 128]; CFB = [96, 160]
def conv_flat():
    L = []
    for i in range(32): L.append(f"v_mov_b32 v{CACC+i}, 0")
    def reads(buf, rho):
        R = []
        for P in range(8):
            off = 512 * P + 64 * rho
            bi, o4 = off // 1024, (off % 1024) // 4
            R.append(f"ds_read2_b32 v[{CFA[buf]+4*P}:{CFA[buf]+4*P+1}], v{192+bi} offset0:{o4} offset1:{o4+1}")
            R.append(f"ds_read2_b32 v[{CFA[buf]+4*P+2}:{CFA[buf]+4*P+3}], v{192+bi} offset0:{o4+2} offset1:{o4+3}")
            R.append(f"ds_read_b128 v[{CFB[buf]+4*P}:{CFB[buf]+4*P+3}], v17 offset:{512*P-64*rho+448}")
        return R
    def mf(buf):
        M = []
        for P in range(8):
            for Dl in range(8 - P):
                T = P + Dl
                M.append(f"v_mfma_f32_16x16x32_bf16 v[{CACC+4*T}:{CACC+4*T+3}], v[{CFA[buf]+4*P}:{CFA[buf]+4*P+3}], v[{CFB[buf]+4*Dl}:{CFB[buf]+4*Dl+3}], v[{CACC+4*T}:{CACC+4*T+3}]")
        return M
    L.append("v_lshlrev_b32 v21, 6, v1")
    L.append("v_add_u32 v21, s66, v21")
    for m in range(16):
        L.append(f"v_alignbit_b32 v{96+m}, v{64+m+1}, v{64+m}, 16")
    for q in range(4):
        L.append(f"ds_write_b128 v21, v[{64+4*q}:{67+4*q}] offset:{KOFF+16*q}")
        L.append(f"ds_write_b128 v21, v[{96+4*q}:{99+4*q}] offset:{KOFF+KCP2+16*q}")
    for m in range(8):
        L.append(f"v_alignbit_b32 v{112+m}, v{84+m+1}, v{84+m}, 16")
    L.append("v_cmp_eq_u32 vcc, 0, v1")
    L.append("s_and_saveexec_b64 s[72:73], vcc")
    for q in range(2):
        L.append(f"ds_write_b128 v21, v[{84+4*q}:{87+4*q}] offset:{KOFF+4096+16*q}")
        L.append(f"ds_write_b128 v21, v[{112+4*q}:{115+4*q}] offset:{KOFF+KCP2+4096+16*q}")
    L.append("s_mov_b64 exec, s[72:73]")
    L.append("s_waitcnt lgkmcnt(0)")
    NB = len(L)
    L += reads(0, 0)
    for rho in range(8):
        L.append("s_waitcnt lgkmcnt(0)")
        R = reads((rho + 1) & 1, rho + 1) if rho < 7 else []
        for m in mf(rho & 1):
            L.append(m)
            if R: L.append(R.pop(0))
    return L, NB

def conv_flat_sb():
    L0, NB = conv_flat()
    L = L0[:NB]
    for rho in range(8):
        for P in range(8):
            off = 512 * P + 64 * rho
            bi, o4 = off // 1024, (off % 1024) // 4
            L.append(f"ds_read2_b32 v[{64+4*P}:{64+4*P+1}], v{24+bi} offset0:{o4} offset1:{o4+1}")
            L.append(f"ds_read2_b32 v[{64+4*P+2}:{64+4*P+3}], v{24+bi} offset0:{o4+2} offset1:{o4+3}")
            L.append(f"ds_read_b128 v[{96+4*P}:{96+4*P+3}], v17 offset:{512*P-64*rho+448}")
        L.append("s_waitcnt lgkmcnt(0)")
        for P in range(8):
            for Dl in range(8 - P):
                T = P + Dl
                L.append(f"v_mfma_f32_16x16x32_bf16 v[{CACC+4*T}:{CACC+4*T+3}], v[{64+4*P}:{64+4*P+3}], v[{96+4*Dl}:{96+4*Dl+3}], v[{CACC+4*T}:{CACC+4*T+3}]")
    return L, NB

def conv_epilogue(a):
    a("v_lshlrev_b32 v20, 16, v20")
    for T in range(8):
        a(f"ds_read_b64 v[{64+2*T}:{65+2*T}], v18 offset:{512*T}")
    a("s_nop 7")
    a("s_waitcnt lgkmcnt(0)")
    for T in range(8):
        c = CACC + 4 * T
        a(f"v_and_b32 v80, 0xffff0000, v{65+2*T}")
        a(f"v_lshlrev_b32 v81, 16, v{65+2*T}")
        a(f"v_and_b32 v82, 0xffff0000, v{64+2*T}")
        a(f"v_lshlrev_b32 v83, 16, v{64+2*T}")
        for r in range(4): a(f"v_mul_f32 v{80+r}, v{80+r}, v20")
        rnd2(a, 80, 81, 84); rnd2(a, 82, 83, 84)
        rnd2(a, c, c + 1, 84); rnd2(a, c + 2, c + 3, 84)
        for r in range(4): a(f"v_add_f32 v{c+r}, v{c+r}, v{80+r}")
        o = 86 + 2 * (T & 1)
        a(f"v_cvt_pk_bf16_f32 v{o}, v{c}, v{c+1}")
        a(f"v_cvt_pk_bf16_f32 v{o+1}, v{c+2}, v{c+3}")
        a(f"buffer_store_dwordx2 v[{o}:{o+1}], v19, s[56:59], 0 offen offset:{512*T}")

def gen_gemm1(a, NST=3, CSPAN=26, PFON=1, CONVON=1, NT1=0, PRIO=0, STAMP=0, R1=2048, R2=3584, XMAP=0, TP1=0, CMODE=0, IPER=2, M32=0):
    name = "gemm1_kernel"
    NK = S // 64
    SLOT = 32768
    RING = SLOT * NST
    kernel_header(a, name)
    a("s_cmp_ge_u32 s2, 256")
    a("s_cbranch_scc1 g1_done")
    a("s_load_dwordx4 s[4:7], s[0:1], 56")
    a("s_load_dwordx2 s[8:9], s[0:1], 104")
    a("s_load_dwordx4 s[68:71], s[0:1], 32")
    a("s_load_dwordx2 s[74:75], s[0:1], 72")
    a("s_and_b32 s10, s2, 7")
    a("s_lshr_b32 s11, s2, 3")
    if XMAP:
        a("s_lshr_b32 s12, s11, 3")
        a("s_lshl_b32 s12, s12, 3")
        a("s_add_u32 s14, s10, s12")
        a("s_and_b32 s15, s11, 7")
    else:
        a("s_mul_i32 s12, s11, 37")
        a("s_lshr_b32 s12, s12, 8")
        a("s_mul_i32 s13, s12, 7")
        a("s_sub_u32 s13, s11, s13")
        a("s_and_b32 s14, s10, 3")
        a("s_mul_i32 s14, s14, 7")
        a("s_add_u32 s14, s14, s13")
        a("s_lshr_b32 s15, s10, 2")
        a("s_lshl_b32 s15, s15, 2")
        a("s_add_u32 s15, s15, s12")
    a("v_and_b32 v1, 63, v0")
    a("v_lshrrev_b32 v2, 6, v0")
    a("s_nop 0")
    a("v_readfirstlane_b32 s16, v2")
    if STAMP == 1: a("s_memrealtime s[76:77]")
    a("s_waitcnt lgkmcnt(0)")
    if XMAP:
        a("s_cmp_ge_u32 s14, 28")
    else:
        a("s_cmp_ge_u32 s2, 224")
    a("s_cbranch_scc1 g1_extra")
    srd(a, 20, 4, S * F * 2)
    srd(a, 24, 8, S * D * 2, WS_H)
    a("v_lshrrev_b32 v3, 4, v1")
    BI = 28
    def epi_setup():
        srd(a, 28, 8, D * F * 2, WS_U)
        srd(a, 32, 6, F * 2)
        a("s_and_b32 s17, s16, 1")
        a("s_bfe_u32 s18, s16, 0x10001")
        a("s_lshr_b32 s19, s16, 2")
        a("s_lshl_b32 s37, s14, 7")
        a("s_lshl_b32 s38, s17, 6")
        a("s_add_u32 s37, s37, s38")
        a("s_lshl_b32 s38, s19, 5")
        a("s_add_u32 s37, s37, s38")
        a("v_lshl_add_u32 v24, v3, 2, s37")
        a("v_lshlrev_b32 v24, 1, v24")
        BI = 28
        for ii in range(2):
            a(f"buffer_load_dwordx2 v[{BI+2*ii}:{BI+2*ii+1}], v24, s[32:35], 0 offen offset:{32*ii}")
        a("s_mul_i32 s37, s15, 112")
        a("s_lshl_b32 s38, s14, 2")
        a("s_add_u32 s37, s37, s38")
        a("s_lshl_b32 s38, s17, 1")
        a("s_add_u32 s37, s37, s38")
        a("s_add_u32 s37, s37, s19")
        a("s_lshl_b32 s37, s37, 3")
        a("s_lshl_b32 s38, s18, 2")
        a("s_add_u32 s37, s37, s38")
        a("s_lshl_b32 s37, s37, 10")
        a("v_lshl_add_u32 v25, v1, 4, s37")
        a("s_and_b32 s37, s16, 3")
        a("s_lshl_b32 s37, s37, 13")
        a("v_lshl_add_u32 v26, v1, 4, s37")
        c1 = -2.0 * 0.7978845608028654 * 1.4426950408889634
        c2 = c1 * 0.044715
        a(f"s_mov_b32 s42, {fb(c1):#x}"); a(f"s_mov_b32 s43, {fb(c1):#x}")
        a(f"s_mov_b32 s44, {fb(c2):#x}"); a(f"s_mov_b32 s45, {fb(c2):#x}")

    if CMODE == 3:
        a("s_cmp_ge_u32 s16, 8")
        a("s_cbranch_scc1 g1_convw")
    a("s_cmp_ge_u32 s16, 4")
    a("s_cbranch_scc1 g1_loader")
    epi_setup()
    a("v_bfe_u32 v4, v1, 2, 2")
    a("v_and_b32 v5, 3, v1")
    a("v_and_b32 v6, 1, v3")
    a("v_lshl_or_b32 v6, v6, 2, v4")
    a("v_lshl_add_u32 v7, v3, 3, v4")
    a("v_lshlrev_b32 v7, 8, v7")
    a("v_lshl_add_u32 v7, v5, 3, v7")
    AC, BC = 8, 12
    AA, BA = 16, 20
    a("s_lshl_b32 s19, s17, 2")
    a("s_lshl_b32 s36, s18, 2")
    for i in range(4):
        a(f"s_add_u32 s37, s19, {i}")
        a(f"v_xor_b32 v{AC+i}, s37, v6")
        a(f"v_lshl_add_u32 v{AC+i}, v{AC+i}, 5, v7")
        a(f"s_add_u32 s37, s36, {i}")
        a(f"v_xor_b32 v{BC+i}, s37, v6")
        a(f"v_lshl_add_u32 v{BC+i}, v{BC+i}, 5, v7")
        a(f"v_add_u32 v{BC+i}, 0x4000, v{BC+i}")
        a(f"v_mov_b32 v{AA+i}, v{AC+i}")
        a(f"v_mov_b32 v{BA+i}, v{BC+i}")
    if R1 < S:
        tot = (S - R1) * F * 2
        perw = (tot // 224 + 127) // 128 * 128
        a(f"s_mul_i32 s37, s2, {perw}")
        a(f"s_add_u32 s37, s37, {R1*F*2}")
        a("v_lshl_add_u32 v27, v0, 7, s37")
        for t in range((perw + 32767) // 32768):
            a(f"s_mov_b32 s37, {32768*t}")
            a("buffer_load_dword v2, v27, s[20:23], s37 offen")
    if TP1:
        a("v_lshrrev_b32 v27, 4, v1")
        a("v_lshlrev_b32 v27, 6, v27")
        a("v_bfe_u32 v2, v1, 1, 3")
        a("v_add_u32 v27, v27, v2")
        a("s_lshl_b32 s37, s15, 3")
        a(f"s_add_u32 s37, s37, {TP1*64}")
        a("v_add_u32 v27, s37, v27")
        a("s_movk_i32 s37, 7168")
        a("v_mul_lo_u32 v27, v27, s37")
        a("v_and_b32 v2, 1, v1")
        a("v_lshl_add_u32 v27, v2, 7, v27")
        a("s_lshl_b32 s37, s14, 8")
        a("v_add_u32 v27, s37, v27")
        for t in range((TP1 + 15) // 16):
            a("s_lshl_b32 s37, s16, 2")
            a(f"s_add_u32 s37, s37, {16*t - TP1 & 0xffffffff}")
            a(f"s_mul_i32 s37, s37, {64*7168}")
            a("v_add_u32 v7, s37, v27")
            a("buffer_load_dword v2, v7, s[20:23], 0 offen nt")
    FA = [32, 64]; FB = [48, 80]
    ACC = 96
    for i in range(64):
        a(f"v_mov_b32 v{ACC+i}, 0")
    a("s_mov_b32 s39, 0")
    a("s_mov_b32 s40, 0")
    if PRIO: a("s_setprio 2")
    def stamp():
        if STAMP != 1: return
        a("s_memrealtime s[78:79]")
        a("s_waitcnt lgkmcnt(0)")
        a("v_mov_b32 v27, s78")
        a("buffer_store_dword v27, v2, s[48:51], 0 offen")
        a("v_add_u32 v2, 4, v2")
    if STAMP == 1:
        srd(a, 48, 8, 1 << 20, 64 * MB)
        a("s_lshl_b32 s52, s2, 2")
        a("s_add_u32 s52, s52, s16")
        a("s_lshl_b32 s52, s52, 8")
        a("v_mov_b32 v2, s52")
        a("v_mov_b32 v27, s76")
        a("buffer_store_dword v27, v2, s[48:51], 0 offen")
        a("v_add_u32 v2, 4, v2")
    a("s_barrier")
    stamp()
    def reads(buf, ks):
        L = []
        for i in range(4):
            for hh in range(2):
                L.append(f"ds_read_b64_tr_b16 v[{FA[buf]+4*i+2*hh}:{FA[buf]+4*i+2*hh+1}], v{AA+i} offset:{ks*8192+hh*1024}")
            for hh in range(2):
                L.append(f"ds_read_b64_tr_b16 v[{FB[buf]+4*i+2*hh}:{FB[buf]+4*i+2*hh+1}], v{BA+i} offset:{ks*8192+hh*1024}")
        return L
    def mfmas(buf):
        L = []
        if M32:
            for k2 in range(2):
                for i in range(2):
                    for j in range(2):
                        c = ACC + 32 * i + 16 * j
                        L.append(f"v_mfma_f32_32x32x16_bf16 v[{c}:{c+15}], v[{FA[buf]+8*i+4*k2}:{FA[buf]+8*i+4*k2+3}], v[{FB[buf]+8*j+4*k2}:{FB[buf]+8*j+4*k2+3}], v[{c}:{c+15}]")
            return L
        for i in range(4):
            for j in range(4):
                c = ACC + 16 * i + 4 * j
                L.append(f"v_mfma_f32_16x16x32_bf16 v[{c}:{c+3}], v[{FA[buf]+4*i}:{FA[buf]+4*i+3}], v[{FB[buf]+4*j}:{FB[buf]+4*j+3}], v[{c}:{c+3}]")
        return L
    for r in reads(0, 0): a(r)
    a.label("g1_cloop")
    a("s_waitcnt lgkmcnt(0)")
    interleave(a, mfmas(0), reads(1, 1), IPER)
    a("s_waitcnt lgkmcnt(0)")
    a("s_barrier")
    a(f"s_add_u32 s39, s39, {SLOT}")
    a(f"s_cmp_eq_u32 s39, {SLOT*NST}")
    a("s_cselect_b32 s39, 0, s39")
    M = mfmas(1)
    a(M[0])
    for i in range(4):
        a(f"v_add_u32 v{AA+i}, s39, v{AC+i}")
        a(f"v_add_u32 v{BA+i}, s39, v{BC+i}")
    interleave(a, M[1:], reads(0, 0), IPER)
    stamp()
    if TP1:
        a("s_and_b32 s36, s40, 15")
        a("s_lshl_b32 s37, s16, 2")
        a("s_cmp_lg_u32 s36, s37")
        a("s_cbranch_scc1 g1_notouch")
        a(f"s_mul_i32 s37, s40, {64*7168}")
        a("buffer_load_dword v2, v27, s[20:23], s37 offen nt")
        a.label("g1_notouch")
    a("s_add_u32 s40, s40, 1")
    a(f"s_cmp_lt_u32 s40, {NK}")
    a("s_cbranch_scc1 g1_cloop")
    a("s_waitcnt lgkmcnt(0)")
    a("s_nop 7")
    for q in range(8):
        a(f"ds_write_b128 v26, v[{ACC+32+4*q}:{ACC+32+4*q+3}] offset:{1024*q}")
    a("s_waitcnt lgkmcnt(0) vmcnt(0)")
    a("s_barrier")
    stamp()
    gelu_epi(a, [[ACC + 16 * ii + 4 * j for j in range(4)] for ii in range(2)], BI, 25, "s[28:31]", 32)
    stamp()
    a("s_waitcnt vmcnt(0)")
    stamp()
    a("s_endpgm")
    a.label("g1_loader")
    a("s_sub_u32 s16, s16, 4")
    a("v_and_b32 v4, 15, v1")
    assert CMODE >= 1
    a("v_lshlrev_b32 v5, 1, v3")
    a("v_xor_b32 v5, v5, v4")
    a("v_xor_b32 v6, 8, v5")
    a("s_lshl_b32 s17, s16, 4")
    a("v_add_u32 v3, s17, v3")
    a("s_lshl_b32 s18, s14, 8")
    a("s_lshl_b32 s19, s15, 8")
    a("s_movk_i32 s36, 7168")
    VA, VB = 8, 12
    for q in range(4):
        c16 = 5 if q < 2 else 6
        a(f"v_add_u32 v7, {4*q}, v3")
        a(f"v_mul_lo_u32 v{VA+q}, v7, s36")
        a(f"v_lshl_add_u32 v{VA+q}, v{c16}, 4, v{VA+q}")
        a(f"v_add_u32 v{VA+q}, s18, v{VA+q}")
        a(f"v_lshlrev_b32 v{VB+q}, 11, v7")
        a(f"v_lshl_add_u32 v{VB+q}, v{c16}, 4, v{VB+q}")
        a(f"v_add_u32 v{VB+q}, s19, v{VB+q}")
        if q:
            a(f"v_subrev_u32 v{VA+q}, {1024*q}, v{VA+q}")
            a(f"v_subrev_u32 v{VB+q}, {1024*q}, v{VB+q}")
    a("s_lshl_b32 s37, s16, 12")
    outst = []
    def issue(s):
        slot = (s % NST) * SLOT
        a(f"s_add_u32 m0, s37, {slot}")
        a(f"s_mov_b32 s38, {s*64*7168}")
        a(f"s_mov_b32 s39, {s*64*2048}")
        for q in range(4):
            a(f"buffer_load_dwordx4 v{VA+q}, s[20:23], s38 offen offset:{1024*q} {'nt ' if NT1 else ''}lds")
        a(f"s_add_u32 m0, s37, {slot+0x4000}")
        a("s_nop 0")
        for q in range(4):
            a(f"buffer_load_dwordx4 v{VB+q}, s[24:27], s39 offen offset:{1024*q} lds")
        outst.extend([s] * 8)
    def wait_stage(s):
        cand = [i for i, t in enumerate(outst) if t == s]
        if not cand: return
        idx = max(cand)
        n = len(outst) - 1 - idx
        a(f"s_waitcnt vmcnt({n})")
        del outst[:idx + 1]
    if CMODE >= 1:
        for st in range(NST): issue(st)
        a("s_add_u32 s16, s16, 4")
        a("s_mov_b32 s46, s37")
        a("v_lshrrev_b32 v3, 4, v1")
        epi_setup()
        a("s_mov_b32 s37, s46")
        a("s_sub_u32 s16, s16, 4")
        outst.extend(["b"] * 2)
        wait_stage(0)
        a("s_barrier")
        for s in range(NK):
            if s + 1 < NK: wait_stage(s + 1)
            a("s_barrier")
            if s + NST < NK: issue(s + NST)
    else:
        issue(0)
        a("s_lshl_b32 s64, s2, 2")
        a("s_add_u32 s64, s64, s16")
        conv_setup(a, RING)
        outst.extend(["c"] * 12)
        for st in range(1, NST): issue(st)
        flat, NB = conv_flat() if CONVON else (["s_nop 0"], 1)
        build, flat = flat[:NB], flat[NB:]
        wait_stage("c")
        for ins in build: a(ins)
        a("s_barrier")
        per = (len(flat) + CSPAN - 1) // CSPAN
        epi = Asm(); conv_epilogue(epi)
        epi = [l.strip() for l in epi.lines]
        nst_epi = sum("buffer_store" in l for l in epi)
        cuts = [i + 1 for i, l in enumerate(epi) if "buffer_store" in l]
        pieces = [epi[:cuts[1]], epi[cuts[1]:cuts[3]], epi[cuts[3]:cuts[5]], epi[cuts[5]:]]
        if STAMP == 2:
            srd(a, 76, 8, 1 << 20, 64 * MB)
            a("s_lshl_b32 s80, s2, 2")
            a("s_add_u32 s80, s80, s16")
            a("s_lshl_b32 s80, s80, 10")
            a("v_mov_b32 v196, s80")
        for s in range(NK):
            if STAMP == 2: a("s_memtime s[80:81]")
            if s + 1 < NK: wait_stage(s + 1)
            if STAMP == 2: a("s_memtime s[82:83]")
            a("s_barrier")
            if STAMP == 2: a("s_memtime s[84:85]")
            if PRIO: a("s_setprio 3")
            if s + NST < NK: issue(s + NST)
            if PRIO: a("s_setprio 0")
            if STAMP == 2:
                a("s_memtime s[86:87]")
                a("s_waitcnt lgkmcnt(0)")
                a("v_mov_b32 v200, s80"); a("v_mov_b32 v201, s82"); a("v_mov_b32 v202, s84"); a("v_mov_b32 v203, s86")
                a(f"buffer_store_dwordx4 v[200:203], v196, s[76:79], 0 offen offset:{16*s}")
                outst.append("st")
            if flat:
                chunk, flat = flat[:per], flat[per:]
            elif pieces:
                chunk = pieces.pop(0)
                outst.extend(["y"] * 2)
            else:
                chunk = []
            for ins in chunk: a(ins)
        assert not flat and not pieces
    a("s_barrier")
    for q in range(8):
        a(f"ds_read_b128 v[{64+4*q}:{64+4*q+3}], v26 offset:{1024*q}")
    a("s_waitcnt lgkmcnt(0)")
    gelu_epi(a, [[64 + 16 * ii + 4 * j for j in range(4)] for ii in range(2)], BI, 25, "s[28:31]", 32)
    a("s_endpgm")
    if CMODE == 3:
        def conv_wave(with_bar):
            a("s_sub_u32 s16, s16, 8")
            a("s_lshl_b32 s64, s2, 2")
            a("s_add_u32 s64, s64, s16")
            cs = Asm(); conv_setup(cs, RING)
            for l in cs.lines:
                for i in range(4): l = l.replace(f"v{192+i},", f"v{24+i},")
                a.lines.append(l)
            if with_bar:
                for _ in range(4): a("s_barrier")
            a("s_waitcnt vmcnt(0)")
            fl, nb = conv_flat_sb()
            ep = Asm(); conv_epilogue(ep)
            fl = fl + [l.strip() for l in ep.lines]
            if not with_bar:
                for ins in fl: a(ins)
            else:
                for ins in fl[:nb]: a(ins)
                fl = fl[nb:]
                per = (len(fl) + CSPAN - 1) // CSPAN
                while fl:
                    a("s_barrier")
                    for ins in fl[:per]: a(ins)
                    fl = fl[per:]
            a("s_endpgm")
        a.label("g1_convw")
        conv_wave(True)
        a.label("g1_convx")
        conv_wave(False)
    a.label("g1_extra")
    if CMODE == 3:
        a("s_cmp_ge_u32 s16, 8")
        a("s_cbranch_scc1 g1_convx")
    if CMODE in (2, 3):
        if PFON and R2:
            srd(a, 20, 74, F * S * 2)
            perw = R2 * S * 2 // 256
            assert perw % 2048 == 0
            if XMAP:
                a("s_sub_u32 s17, s10, 4")
                a("s_lshl_b32 s17, s17, 3")
                a("s_add_u32 s17, s17, s15")
            else:
                a("s_sub_u32 s17, s2, 224")
            a("s_lshl_b32 s17, s17, 3")
            a("s_add_u32 s17, s17, s16")
            a(f"s_mul_i32 s17, s17, {perw}")
            a("v_lshl_add_u32 v4, v1, 4, s17")
            a("s_mov_b32 s18, 0")
            a.label("g1_pfl")
            for k in range(2):
                a(f"buffer_load_dwordx4 v[{8+4*k}:{11+4*k}], v4, s[20:23], s18 offen")
                a("s_add_u32 s18, s18, 1024")
            a(f"s_cmp_lt_u32 s18, {perw}")
            a("s_cbranch_scc1 g1_pfl")
        a("s_endpgm")
    elif CMODE == 1:
        a("s_sub_u32 s17, s2, 224")
        a("s_lshl_b32 s64, s17, 3")
        a("s_add_u32 s64, s64, s16")
        if PFON:
            srd(a, 20, 74, F * S * 2)
            perw = R2 * S * 2 // 256
            a(f"s_mul_i32 s18, s64, {perw}")
            a("v_lshl_add_u32 v4, v1, 7, s18")
            a("s_mov_b32 s18, 0")
        if PRIO:
            a("s_cmp_ge_u32 s16, 4")
            a("s_cbranch_scc1 g1_xloop")
            a("s_setprio 2")
        def xst():
            if STAMP != 3: return
            a("s_memtime s[84:85]")
            a("s_waitcnt lgkmcnt(0)")
            a("v_mov_b32 v200, s84")
            a("buffer_store_dword v200, v196, s[76:79], 0 offen")
            a("v_add_u32 v196, 4, v196")
        if STAMP == 3:
            srd(a, 76, 8, 1 << 20, 64 * MB)
            a("s_lshl_b32 s80, s64, 8")
            a("v_mov_b32 v196, s80")
        a.label("g1_xloop")
        xst()
        conv_setup(a, 0)
        a("s_waitcnt vmcnt(0)")
        xst()
        if PFON:
            for t in range((perw // 4 + 8191) // 8192):
                a("buffer_load_dword v2, v4, s[20:23], s18 offen")
                a("s_add_u32 s18, s18, 8192")
        fl, nb = conv_flat()
        for ins in fl[:nb]: a(ins)
        xst()
        for ins in fl[nb:]: a(ins)
        xst()
        conv_epilogue(a)
        xst()
        a("s_add_u32 s64, s64, 256")
        a(f"s_cmp_lt_u32 s64, {D}")
        a("s_cbranch_scc1 g1_xloop")
        a("s_endpgm")
    else:
        a("s_cmp_lt_u32 s16, 4")
        a("s_cbranch_scc1 g1_pf")
        a("s_sub_u32 s16, s16, 4")
        a("s_lshl_b32 s64, s2, 2")
        a("s_add_u32 s64, s64, s16")
        conv_setup(a, RING)
        a("s_waitcnt vmcnt(0)")
        for ins in conv_flat()[0]: a(ins)
        conv_epilogue(a)
        a("s_add_u32 s16, s16, 4")
        a.label("g1_pf")
        if not PFON: a("s_endpgm")
        per = R2 * S * 2 // 32
        u = per // 32
        assert u % 2048 == 0
        srd(a, 20, 74, F * S * 2)
        if XMAP:
            a("s_sub_u32 s17, s10, 4")
            a("s_lshl_b32 s17, s17, 3")
            a("s_add_u32 s17, s17, s15")
        else:
            a("s_sub_u32 s17, s2, 224")
        a(f"s_mul_i32 s17, s17, {per}")
        a(f"s_mul_i32 s18, s16, {5*u}")
        a("s_sub_u32 s19, s16, 4")
        a(f"s_mul_i32 s19, s19, {3*u}")
        a(f"s_add_u32 s19, s19, {20*u}")
        a("s_cmp_lt_u32 s16, 4")
        a("s_cselect_b32 s18, s18, s19")
        a(f"s_mov_b32 s36, {5*u}")
        a(f"s_cselect_b32 s19, s36, {3*u}")
        a("s_add_u32 s17, s17, s18")
        a("v_lshl_add_u32 v4, v1, 4, s17")
        a("s_mov_b32 s18, 0")
        a.label("g1_pfl")
        for k in range(2):
            a(f"buffer_load_dwordx4 v[{8+4*k}:{11+4*k}], v4, s[20:23], s18 offen")
            a("s_add_u32 s18, s18, 1024")
        a("s_cmp_lt_u32 s18, s19")
        a("s_cbranch_scc1 g1_pfl")
    a.label("g1_done")
    a("s_endpgm")
    return kernel_desc(name, 160 if CMODE == 3 else 204, 96), (RING if CMODE == 2 else max(RING, 8 * CONV_LDS) if CMODE == 1 else RING + 4 * CONV_LDS)

def build(opts):
    a = Asm()
    a.lines.append('.amdgcn_target "amdgcn-amd-amdhsa--gfx950"')
    a.lines.append(".text")
    descs = []; launches = []
    npf = opts.get("npf", 256)
    global KNT
    KNT = " nt" if opts.get("knt", 0) else ""
    descs.append(gen_prep(a, npf, rev=1, pfw2=(0 if opts.get("knt", 0) else 2), r1=opts.get("r1", 2048), xpf=opts.get("xpf", 0), pflast=opts.get("pflast", 0), kvfirst=opts.get("kvfirst", 0)))
    launches.append(f"; @launch kernel=prep_kernel grid=({768+npf},1,1) block=(256,1,1) lds=0")
    d, lds = gen_gemm1(a, NST=opts.get("nst", 3), CSPAN=opts.get("cspan", 26), PFON=opts.get("pfon", 1), CONVON=opts.get("convon", 1), NT1=opts.get("nt1", 0), PRIO=opts.get("prio", 0), STAMP=opts.get("stamp", 0), R1=opts.get("r1", 2048), R2=opts.get("r2", 3584), XMAP=opts.get("xmap", 0), TP1=opts.get("tp1", 0), CMODE=opts.get("cmode", 0), IPER=opts.get("iper", 2), M32=opts.get("m32", 0))
    descs.append(d)
    launches.append(f"; @launch kernel=gemm1_kernel grid=(256,1,1) block=({768 if opts.get('cmode', 0) == 3 else 512},1,1) lds={lds}")
    import gen7_g2, gen8_g2
    if opts.get("splitk", 0):
        d, lds = gen8_g2.gen_gemm2(a, R2=opts.get("r2", 3584), STAMP=opts.get("stamp2", 0))
    else:
        d, lds = gen7_g2.gen_gemm2(a, NST=opts.get("nst2", 5), R2=opts.get("r2", 3584), XA0=opts.get("xa0", 4), ROT=opts.get("rot", 0), ONT=opts.get("ont", 0), CONV=opts.get("conv2", 0))
    descs.append(d)
    launches.append(f"; @launch kernel=gemm2_kernel grid=(256,1,1) block=({768 if opts.get('conv2', 0) else 512},1,1) lds={lds}")
    txt = HEADER + "\n".join(launches) + "\n" + a.text() + '.section .rodata,"a"\n.p2align 6\n' + ".p2align 6\n".join(descs)
    return txt

if __name__ == "__main__":
    opts = {}
    for arg in sys.argv[2:]:
        k, v = arg.split("=")
        opts[k] = int(v)
    open(sys.argv[1], "w").write(build(opts))
```

```python
import sys
from asmlib import *

S, D, F = 2048, 1024, 3584
MB = 1 << 20
WS_H, WS_STATS, WS_KVT, WS_Y2T, WS_U = 0, 4 * MB, 8 * MB, 12 * MB, 16 * MB

HEADER = open("parallel_sum__ssm_conv_h3__mixer_token_mlp__prompt.s.ref").read().split("; Override launch")[0]

def rnd2(a, x, y, t):
    a(f"v_cvt_pk_bf16_f32 v{t}, v{x}, v{y}")
    a(f"v_lshlrev_b32 v{x}, 16, v{t}")
    a(f"v_and_b32 v{y}, 0xffff0000, v{t}")

def wave_sum(a, v, sdst):
    for sh in (1, 2, 4, 8):
        a("s_nop 1")
        a(f"v_add_f32_dpp v{v}, v{v}, v{v} row_shr:{sh} row_mask:0xf bank_mask:0xf bound_ctrl:0")
    a("s_nop 1")
    a(f"v_add_f32_dpp v{v}, v{v}, v{v} row_bcast:15 row_mask:0xa bank_mask:0xf")
    a("s_nop 1")
    a(f"v_add_f32_dpp v{v}, v{v}, v{v} row_bcast:31 row_mask:0xc bank_mask:0xf")
    a("s_nop 1")
    a(f"v_readlane_b32 s{sdst}, v{v}, 63")
    a("s_nop 3")

def gen_prep(a, npf=256, rev=0, pfw2=1, r1=2048, xpf=0, pflast=0, kvfirst=0):
    name = "prep_kernel"
    kernel_header(a, name)
    a(f"s_cmp_ge_u32 s2, {768+npf}")
    a("s_cbranch_scc1 prep_done")
    if npf and pflast:
        a("s_cmp_lt_u32 s2, 768")
        a("s_cbranch_scc1 prep_notpf")
        a("s_sub_u32 s2, s2, 768")
        a("s_branch prep_pf")
        a.label("prep_notpf")
    elif npf:
        a(f"s_cmp_lt_u32 s2, {npf}")
        a("s_cbranch_scc1 prep_pf")
        a(f"s_sub_u32 s2, s2, {npf}")
    a("s_load_dwordx4 s[4:7], s[0:1], 0")
    a("s_load_dwordx4 s[8:11], s[0:1], 16")
    a("s_load_dwordx2 s[12:13], s[0:1], 104")
    if kvfirst:
        a("s_add_u32 s3, s2, 512")
        a("s_sub_u32 s14, s2, 256")
        a("s_cmp_lt_u32 s2, 256")
        a("s_cselect_b32 s2, s3, s14")
    a("s_cmp_ge_u32 s2, 512")
    a("s_cbranch_scc1 prep_kv")
    a("v_and_b32 v1, 63, v0")
    a("v_lshrrev_b32 v2, 6, v0")
    a("s_lshl_b32 s3, s2, 2")
    a("v_add_u32 v2, s3, v2")
    a("v_lshlrev_b32 v3, 11, v2")
    a("v_lshl_add_u32 v3, v1, 4, v3")
    a("s_waitcnt lgkmcnt(0)")
    srd(a, 16, 4, S * D * 2)
    srd(a, 20, 12, S * D * 2, WS_H)
    srd(a, 24, 12, S * 8, WS_STATS)
    a("buffer_load_dwordx4 v[4:7], v3, s[16:19], 0 offen")
    a("buffer_load_dwordx4 v[8:11], v3, s[16:19], 0 offen offset:1024")
    a("s_waitcnt vmcnt(0)")
    X = 16
    for i in range(8):
        a(f"v_lshlrev_b32 v{X+2*i}, 16, v{4+i}")
        a(f"v_and_b32 v{X+2*i+1}, 0xffff0000, v{4+i}")
    a("s_mov_b32 s30, 0x3a800000")
    a("s_mov_b32 s31, 0x3727c5ac")
    def ln_pass(save):
        T = 32
        a(f"v_add_f32 v12, v{X}, v{X+1}")
        for i in range(2, 16):
            a(f"v_add_f32 v12, v12, v{X+i}")
        wave_sum(a, 12, 28)
        a("v_mov_b32 v13, s28")
        a("v_mul_f32 v13, s30, v13")
        for i in range(16):
            a(f"v_sub_f32 v{T+i}, v{X+i}, v13")
        a(f"v_mul_f32 v12, v{T}, v{T}")
        for i in range(1, 16):
            a(f"v_fmac_f32 v12, v{T+i}, v{T+i}")
        wave_sum(a, 12, 28)
        a("v_mov_b32 v14, s28")
        a("v_mul_f32 v14, s30, v14")
        rnd2(a, 13, 14, 15)
        a("v_add_f32 v14, s31, v14")
        a("v_cvt_pk_bf16_f32 v15, v14, v14")
        a("v_lshlrev_b32 v14, 16, v15")
        a("v_sqrt_f32 v14, v14")
        a("s_nop 0")
        a("v_cvt_pk_bf16_f32 v15, v14, v14")
        a("v_lshlrev_b32 v14, 16, v15")
        a("v_rcp_f32 v15, v14")
        if save:
            a("v_lshlrev_b32 v48, 3, v2")
            a("v_cmp_eq_u32 vcc, 0, v1")
            a("s_and_saveexec_b64 s[26:27], vcc")
            a("v_mov_b32 v50, v13")
            a("v_mov_b32 v51, v14")
            a("buffer_store_dwordx2 v[50:51], v48, s[24:27], 0 offen")
            a("s_mov_b64 exec, s[26:27]")
        for i in range(16):
            a(f"v_sub_f32 v{X+i}, v{X+i}, v13")
        for i in range(0, 16, 2):
            rnd2(a, X + i, X + i + 1, 12)
        for i in range(16):
            a(f"v_mul_f32 v{T+i}, v{X+i}, v15")
            a(f"v_fma_f32 v{X+i}, -v{T+i}, v14, v{X+i}")
            a(f"v_fmac_f32 v{T+i}, v{X+i}, v15")
        for i in range(0, 16, 2):
            a(f"v_cvt_pk_bf16_f32 v{4+i//2}, v{T+i}, v{T+i+1}")
            a(f"v_lshlrev_b32 v{X+i}, 16, v{4+i//2}")
            a(f"v_and_b32 v{X+i+1}, 0xffff0000, v{4+i//2}")
    a.lines = [l.replace("s[24:27], 0 offen", "s[40:43], 0 offen") for l in a.lines]
    srd(a, 40, 12, S * 8, WS_STATS)
    ln_pass(True)
    ln_pass(False)
    a.lines = [l.replace("s[24:27], 0 offen", "s[40:43], 0 offen") for l in a.lines]
    a("buffer_store_dwordx4 v[4:7], v3, s[20:23], 0 offen")
    a("buffer_store_dwordx4 v[8:11], v3, s[20:23], 0 offen offset:1024")
    a("s_endpgm")
    a.label("prep_kv")
    a("s_sub_u32 s3, s2, 512")
    a("s_and_b32 s14, s3, 15")
    a("s_lshr_b32 s15, s3, 4")
    a("v_and_b32 v1, 7, v0")
    a("v_lshrrev_b32 v2, 3, v0")
    a("s_lshl_b32 s14, s14, 7")
    a("s_lshl_b32 s15, s15, 6")
    a("v_lshl_add_u32 v2, v2, 2, s14")
    a("v_lshl_add_u32 v1, v1, 3, s15")
    a("v_lshlrev_b32 v3, 11, v2")
    a("v_lshl_add_u32 v3, v1, 1, v3")
    a("s_waitcnt lgkmcnt(0)")
    srd(a, 16, 6, S * D * 2)
    srd(a, 20, 8, S * D * 2)
    srd(a, 24, 10, D * 8)
    srd(a, 28, 12, D * S * 2, WS_KVT)
    KO = 4
    for i in range(7):
        a(f"v_add_u32 v{KO+i}, {(i-3)*2048 & 0xffffffff:#x}, v3")
    KR = 16
    VR = 44
    WR = 60
    for i in range(7):
        a(f"buffer_load_dwordx4 v[{KR+4*i}:{KR+4*i+3}], v{KO+i}, s[16:19], 0 offen nt")
    for i in range(4):
        a(f"buffer_load_dwordx4 v[{VR+4*i}:{VR+4*i+3}], v{KO+3+i}, s[20:23], 0 offen nt")
    a("v_lshlrev_b32 v11, 3, v1")
    for i in range(4):
        a(f"buffer_load_dwordx4 v[{WR+4*i}:{WR+4*i+3}], v11, s[24:27], 0 offen offset:{16*i}")
    a("v_lshlrev_b32 v12, 12, v1")
    if rev:
        a("v_xor_b32 v13, 4, v2")
        a("v_lshl_add_u32 v12, v13, 1, v12")
    else:
        a("v_lshl_add_u32 v12, v2, 1, v12")
    a("s_waitcnt vmcnt(0)")
    KF = 80
    VF = 88
    WF = 92
    P = 96
    for j in range(8):
        dw, hi = j >> 1, j & 1
        def unp(dst, src):
            if hi: a(f"v_and_b32 v{dst}, 0xffff0000, v{src}")
            else: a(f"v_lshlrev_b32 v{dst}, 16, v{src}")
        for i in range(7): unp(KF + i, KR + 4 * i + dw)
        for i in range(4): unp(VF + i, VR + 4 * i + dw)
        a(f"v_lshlrev_b32 v{WF}, 16, v{WR+2*j}")
        a(f"v_and_b32 v{WF+1}, 0xffff0000, v{WR+2*j}")
        a(f"v_lshlrev_b32 v{WF+2}, 16, v{WR+2*j+1}")
        a(f"v_and_b32 v{WF+3}, 0xffff0000, v{WR+2*j+1}")
        for t in range(4):
            for r in range(4):
                a(f"v_mul_f32 v{P+4*t+r}, v{KF+r+t}, v{WF+3-t}")
            rnd2(a, P + 4 * t, P + 4 * t + 1, 13)
            rnd2(a, P + 4 * t + 2, P + 4 * t + 3, 13)
        for t in range(1, 4):
            for r in range(4):
                a(f"v_add_f32 v{P+r}, v{P+r}, v{P+4*t+r}")
            rnd2(a, P, P + 1, 13)
            rnd2(a, P + 2, P + 3, 13)
        for r in range(4):
            a(f"v_mul_f32 v{P+r}, v{P+r}, v{VF+r}")
        o = 112 + 2 * (j & 1)
        if rev:
            a(f"v_cvt_pk_bf16_f32 v{o}, v{P+3}, v{P+2}")
            a(f"v_cvt_pk_bf16_f32 v{o+1}, v{P+1}, v{P}")
        else:
            a(f"v_cvt_pk_bf16_f32 v{o}, v{P}, v{P+1}")
            a(f"v_cvt_pk_bf16_f32 v{o+1}, v{P+2}, v{P+3}")
        a(f"buffer_store_dwordx2 v[{o}:{o+1}], v12, s[28:31], 0 offen")
        a("v_add_u32 v12, 0x1000, v12")
    a("s_endpgm")
    if npf:
        a.label("prep_pf")
        a("s_load_dwordx2 s[4:5], s[0:1], 56")
        a(f"s_load_dwordx2 s[6:7], s[0:1], {32 if pfw2 == 2 else 72}")
        per = (r1 * F * 2 // npf + 4095) // 4096 * 4096
        a(f"s_mul_i32 s3, s2, {per}")
        a("v_lshlrev_b32 v1, 4, v0")
        a("v_add_u32 v1, s3, v1")
        a("s_waitcnt lgkmcnt(0)")
        srd(a, 8, 4, S * F * 2)
        srd(a, 12, 6, D * S * 2 if pfw2 == 2 else S * F * 2)
        n = per // 4096
        if pfw2 == 2:
            a(f"s_mul_i32 s3, s2, {D*S*2//npf}")
            a("v_lshlrev_b32 v2, 4, v0")
            a("v_add_u32 v2, s3, v2")
            for i in range(D * S * 2 // npf // 4096):
                a(f"s_mov_b32 s16, {4096*i}")
                a(f"buffer_load_dwordx4 v[{8+8*(i%8)}:{11+8*(i%8)}], v2, s[12:15], s16 offen")
        if xpf:
            a("s_and_b32 s17, s2, 7")
            a("s_lshr_b32 s18, s2, 3")
            a("s_lshl_b32 s18, s18, 6")
            a("v_lshrrev_b32 v3, 4, v0")
            a("v_add_u32 v3, s18, v3")
            a("s_movk_i32 s18, 7168")
            a("v_mul_lo_u32 v3, v3, s18")
            a("v_and_b32 v1, 15, v0")
            a("v_lshl_add_u32 v3, v1, 4, v3")
            a("s_lshl_b32 s17, s17, 8")
            a("v_add_u32 v3, s17, v3")
            for fi in range(4):
                if fi == 3:
                    a("s_cmp_ge_u32 s17, 1024")
                    a("s_cbranch_scc1 prep_done")
                for q in range(4):
                    a(f"s_mov_b32 s16, {fi*2048 + q*16*7168}")
                    a(f"buffer_load_dwordx4 v[{4+4*q}:{7+4*q}], v3, s[8:11], s16 offen{' nt' if xpf == 1 else ''}")
            n = 0
        for i in range(n):
            a(f"s_mov_b32 s16, {4096*i}")
            a(f"buffer_load_dwordx4 v[{4+8*(i%8)}:{7+8*(i%8)}], v1, s[8:11], s16 offen")
            if pfw2 == 1: a(f"buffer_load_dwordx4 v[{8+8*(i%8)}:{11+8*(i%8)}], v1, s[12:15], s16 offen")
    a.label("prep_done")
    a("s_endpgm")
    return kernel_desc(name, 120, 48)

def gen_gemm1(a, NST=4, compute=True, epilogue=True, nwg=224, only=0, blk=0):
    name = "gemm1_kernel"
    NK = S // 64
    SLOT = 32768
    kernel_header(a, name)
    a(f"s_cmp_ge_u32 s2, {nwg}")
    a("s_cbranch_scc1 g1_done")
    a("s_load_dwordx4 s[4:7], s[0:1], 56")
    a("s_load_dwordx2 s[8:9], s[0:1], 104")
    a("s_and_b32 s10, s2, 7")
    a("s_lshr_b32 s11, s2, 3")
    a("s_mul_i32 s12, s11, 37")
    a("s_lshr_b32 s12, s12, 8")
    a("s_mul_i32 s13, s12, 7")
    a("s_sub_u32 s13, s11, s13")
    a("s_and_b32 s14, s10, 3")
    a("s_mul_i32 s14, s14, 7")
    a("s_add_u32 s14, s14, s13")
    a("s_lshr_b32 s15, s10, 2")
    a("s_lshl_b32 s15, s15, 2")
    a("s_add_u32 s15, s15, s12")
    if blk == 2: a("s_mov_b32 s15, 0")
    if blk == 3:
        a("s_mov_b32 s15, 0"); a("s_mov_b32 s14, 0"); blk = 0
    a("v_and_b32 v1, 63, v0")
    a("v_lshrrev_b32 v2, 6, v0")
    a("s_nop 0")
    a("v_readfirstlane_b32 s16, v2")
    a("s_waitcnt lgkmcnt(0)")
    srd(a, 20, 4, S * F * 2)
    srd(a, 24, 8, S * D * 2, WS_H)
    srd(a, 28, 8, D * F * 2, WS_U)
    srd(a, 32, 6, F * 2)
    a("s_cmp_ge_u32 s16, 4")
    a("s_cbranch_scc1 g1_loader")
    a("s_and_b32 s17, s16, 1")
    a("s_lshr_b32 s18, s16, 1")
    a("v_lshrrev_b32 v3, 4, v1")
    a("v_bfe_u32 v4, v1, 2, 2")
    a("v_and_b32 v5, 3, v1")
    a("v_and_b32 v6, 1, v3")
    a("v_lshl_or_b32 v6, v6, 2, v4")
    a("v_lshl_add_u32 v7, v3, 3, v4")
    a("v_lshlrev_b32 v7, 8, v7")
    a("v_lshl_add_u32 v7, v5, 3, v7")
    AC, BC = 8, 12
    AA, BA = 16, 20
    a("s_lshl_b32 s19, s17, 2")
    a("s_lshl_b32 s36, s18, 2")
    for i in range(4):
        a(f"s_add_u32 s37, s19, {i}")
        a(f"v_xor_b32 v{AC+i}, s37, v6")
        a(f"v_lshl_add_u32 v{AC+i}, v{AC+i}, 5, v7")
        a(f"s_add_u32 s37, s36, {i}")
        a(f"v_xor_b32 v{BC+i}, s37, v6")
        a(f"v_lshl_add_u32 v{BC+i}, v{BC+i}, 5, v7")
        a(f"v_add_u32 v{BC+i}, 0x4000, v{BC+i}")
        a(f"v_mov_b32 v{AA+i}, v{AC+i}")
        a(f"v_mov_b32 v{BA+i}, v{BC+i}")
    a("s_lshl_b32 s37, s14, 7")
    a("s_lshl_b32 s38, s17, 6")
    a("s_add_u32 s37, s37, s38")
    a("v_lshl_add_u32 v24, v3, 2, s37")
    a("v_lshlrev_b32 v24, 1, v24")
    BI = 40
    for i in range(4):
        a(f"buffer_load_dwordx2 v[{BI+2*i}:{BI+2*i+1}], v24, s[32:35], 0 offen offset:{32*i}")
    FA = [64, 96]; FB = [80, 112]
    ACC = 128
    for i in range(64):
        a(f"v_mov_b32 v{ACC+i}, 0")
    a("s_mov_b32 s39, 0")
    a("s_mov_b32 s40, 0")
    a("s_barrier")
    def reads(buf, ks):
        L = []
        for i in range(4):
            for hh in range(2):
                L.append(f"ds_read_b64_tr_b16 v[{FA[buf]+4*i+2*hh}:{FA[buf]+4*i+2*hh+1}], v{AA+i} offset:{ks*8192+hh*1024}")
            for hh in range(2):
                L.append(f"ds_read_b64_tr_b16 v[{FB[buf]+4*i+2*hh}:{FB[buf]+4*i+2*hh+1}], v{BA+i} offset:{ks*8192+hh*1024}")
        return L
    def mfmas(buf):
        L = []
        for i in range(4):
            for j in range(4):
                c = ACC + 16 * i + 4 * j
                L.append(f"v_mfma_f32_16x16x32_bf16 v[{c}:{c+3}], v[{FA[buf]+4*i}:{FA[buf]+4*i+3}], v[{FB[buf]+4*j}:{FB[buf]+4*j+3}], v[{c}:{c+3}]")
        return L
    def interleave(M, R):
        R = list(R)
        for m in M:
            a(m)
            for _ in range(2):
                if R: a(R.pop(0))
        for r in R: a(r)
    if compute:
        for r in reads(0, 0): a(r)
    a.label("g1_cloop")
    if compute:
        a("s_waitcnt lgkmcnt(0)")
        interleave(mfmas(0), reads(1, 1))
        a("s_waitcnt lgkmcnt(0)")
    a("s_barrier")
    a(f"s_add_u32 s39, s39, {SLOT}")
    a(f"s_cmp_eq_u32 s39, {SLOT*NST}")
    a("s_cselect_b32 s39, 0, s39")
    upd = []
    for i in range(4):
        upd.append(f"v_add_u32 v{AA+i}, s39, v{AC+i}")
        upd.append(f"v_add_u32 v{BA+i}, s39, v{BC+i}")
    if compute:
        M = mfmas(1)
        a(M[0])
        for u in upd: a(u)
        interleave(M[1:], reads(0, 0))
    a("s_add_u32 s40, s40, 1")
    a(f"s_cmp_lt_u32 s40, {NK}")
    a("s_cbranch_scc1 g1_cloop")
    a("s_waitcnt lgkmcnt(0) vmcnt(0)")
    if epilogue:
        a("s_nop 7")
        a("s_lshl_b32 s41, s15, 7")
        a("s_lshl_b32 s42, s18, 6")
        a("s_add_u32 s41, s41, s42")
        a("v_and_b32 v25, 15, v1")
        a("v_add_u32 v25, s41, v25")
        a("s_movk_i32 s42, 7168")
        a("v_mul_lo_u32 v25, v25, s42")
        a("v_add_u32 v25, v25, v24")
        c1 = -2.0 * 0.7978845608028654 * 1.4426950408889634
        c2 = c1 * 0.044715
        import struct
        fb = lambda x: struct.unpack("<I", struct.pack("<f", x))[0]
        a(f"s_mov_b32 s43, {fb(c1):#x}")
        a(f"s_mov_b32 s44, {fb(c2):#x}")
        a("v_mov_b32 v26, s43")
        for i in range(4):
            a(f"v_lshlrev_b32 v48, 16, v{BI+2*i}")
            a(f"v_and_b32 v49, 0xffff0000, v{BI+2*i}")
            a(f"v_lshlrev_b32 v50, 16, v{BI+2*i+1}")
            a(f"v_and_b32 v51, 0xffff0000, v{BI+2*i+1}")
            for j in range(4):
                c = ACC + 16 * i + 4 * j
                rnd2(a, c, c + 1, 27)
                rnd2(a, c + 2, c + 3, 27)
                for r in range(4):
                    a(f"v_add_f32 v{c+r}, v{c+r}, v{48+r}")
                rnd2(a, c, c + 1, 27)
                rnd2(a, c + 2, c + 3, 27)
                for r in range(4):
                    a(f"v_mul_f32 v{52+r}, v{c+r}, v{c+r}")
                for r in range(4):
                    a(f"v_fma_f32 v{52+r}, v{52+r}, s44, v26")
                for r in range(4):
                    a(f"v_mul_f32 v{52+r}, v{52+r}, v{c+r}")
                for r in range(4):
                    a(f"v_exp_f32 v{52+r}, v{52+r}")
                for r in range(4):
                    a(f"v_add_f32 v{52+r}, 1.0, v{52+r}")
                for r in range(4):
                    a(f"v_rcp_f32 v{52+r}, v{52+r}")
                for r in range(4):
                    a(f"v_mul_f32 v{c+r}, v{c+r}, v{52+r}")
                o = 56 + 2 * (j & 1)
                a(f"v_cvt_pk_bf16_f32 v{o}, v{c}, v{c+1}")
                a(f"v_cvt_pk_bf16_f32 v{o+1}, v{c+2}, v{c+3}")
                a(f"v_add_u32 v{60+(j&1)}, {j*16*7168}, v25")
                a(f"buffer_store_dwordx2 v[{o}:{o+1}], v{60+(j&1)}, s[28:31], 0 offen offset:{32*i}")
    a("s_endpgm")
    a.label("g1_loader")
    a("s_sub_u32 s16, s16, 4")
    a("v_lshrrev_b32 v3, 4, v1")
    a("v_and_b32 v4, 15, v1")
    a("v_lshlrev_b32 v5, 1, v3")
    a("v_xor_b32 v5, v5, v4")
    a("v_xor_b32 v6, 8, v5")
    a("s_lshl_b32 s17, s16, 4")
    a("v_add_u32 v3, s17, v3")
    a("s_lshl_b32 s18, s14, 8")
    a(f"s_lshl_b32 s19, s15, {19 if blk else 8}")
    a("s_movk_i32 s36, 7168")
    VA, VB = 8, 12
    for q in range(4):
        c16 = 5 if q < 2 else 6
        a(f"v_add_u32 v7, {4*q}, v3")
        a(f"v_mul_lo_u32 v{VA+q}, v7, s36")
        a(f"v_lshl_add_u32 v{VA+q}, v{c16}, 4, v{VA+q}")
        a(f"v_add_u32 v{VA+q}, s18, v{VA+q}")
        a(f"v_lshlrev_b32 v{VB+q}, {8 if blk else 11}, v7")
        a(f"v_lshl_add_u32 v{VB+q}, v{c16}, 4, v{VB+q}")
        a(f"v_add_u32 v{VB+q}, s19, v{VB+q}")
        if q:
            a(f"v_subrev_u32 v{VA+q}, {1024*q}, v{VA+q}")
            a(f"v_subrev_u32 v{VB+q}, {1024*q}, v{VB+q}")
    a("s_lshl_b32 s37, s16, 12")
    a("s_mov_b32 s38, 0")
    a("s_mov_b32 s39, 0")
    a("s_mov_b32 s40, s37")
    def issue():
        a("s_mov_b32 m0, s40")
        a("s_nop 0")
        for q in range(4):
            if only == 2: a(f"buffer_load_dwordx4 v{VB+q}, s[24:27], s39 offen offset:{1024*q} lds")
            else: a(f"buffer_load_dwordx4 v{VA+q}, s[20:23], s38 offen offset:{1024*q} lds")
        a("s_add_u32 m0, s40, 0x4000")
        a("s_nop 0")
        for q in range(4):
            if only == 1: a(f"buffer_load_dwordx4 v{VA+q}, s[20:23], s38 offen offset:{1024*q} lds")
            else: a(f"buffer_load_dwordx4 v{VB+q}, s[24:27], s39 offen offset:{1024*q} lds")
        a(f"s_add_u32 s38, s38, {64*7168}")
        a(f"s_add_u32 s39, s39, {64*256 if blk else 64*2048}")
        a(f"s_add_u32 s40, s40, {SLOT}")
        a(f"s_add_u32 s41, s37, {SLOT*NST}")
        a("s_cmp_eq_u32 s40, s41")
        a("s_cselect_b32 s40, s37, s40")
    for st in range(NST):
        issue()
    a(f"s_waitcnt vmcnt({8*(NST-1)})")
    a("s_barrier")
    a("s_mov_b32 s42, 0")
    a.label("g1_lloop")
    a(f"s_waitcnt vmcnt({8*(NST-2)})")
    a("s_barrier")
    issue()
    a("s_add_u32 s42, s42, 1")
    a(f"s_cmp_lt_u32 s42, {NK-NST}")
    a("s_cbranch_scc1 g1_lloop")
    for j in range(NST):
        if j <= NST - 2:
            a(f"s_waitcnt vmcnt({8*(NST-2-j)})")
        a("s_barrier")
    a.label("g1_done")
    a("s_endpgm")
    return kernel_desc(name, 192, 48), SLOT * NST

def build(opts):
    a = Asm()
    a.lines.append('.amdgcn_target "amdgcn-amd-amdhsa--gfx950"')
    a.lines.append(".text")
    descs = []
    launches = []
    descs.append(gen_prep(a, 0))
    launches.append("; @launch kernel=prep_kernel grid=(768,1,1) block=(256,1,1) lds=0")
    d, lds = gen_gemm1(a, NST=opts.get("nst", 4), compute=opts.get("compute", True), epilogue=opts.get("epilogue", True), nwg=opts.get("nwg", 224), only=opts.get("only", 0), blk=opts.get("blk", 0))
    descs.append(d)
    launches.append(f"; @launch kernel=gemm1_kernel grid=(224,1,1) block=(512,1,1) lds={lds}")
    txt = HEADER + "\n".join(launches) + "\n" + a.text() + '.section .rodata,"a"\n.p2align 6\n' + ".p2align 6\n".join(descs)
    return txt

if __name__ == "__main__":
    opts = {}
    for arg in sys.argv[2:]:
        k, v = arg.split("=")
        opts[k] = int(v)
    open(sys.argv[1], "w").write(build(opts))
```

```python
import sys
from asmlib import *

S, D, F = 2048, 1024, 3584
MB = 1 << 20
WS_H, WS_STATS, WS_KVT, WS_Y2T, WS_U = 0, 4 * MB, 8 * MB, 12 * MB, 16 * MB

HEADER = open("parallel_sum__ssm_conv_h3__mixer_token_mlp__prompt.s.ref").read().split("; Override launch")[0]

def rnd2(a, x, y, t):
    a(f"v_cvt_pk_bf16_f32 v{t}, v{x}, v{y}")
    a(f"v_lshlrev_b32 v{x}, 16, v{t}")
    a(f"v_and_b32 v{y}, 0xffff0000, v{t}")

def wave_sum(a, v, sdst):
    for sh in (1, 2, 4, 8):
        a("s_nop 1")
        a(f"v_add_f32_dpp v{v}, v{v}, v{v} row_shr:{sh} row_mask:0xf bank_mask:0xf bound_ctrl:0")
    a("s_nop 1")
    a(f"v_add_f32_dpp v{v}, v{v}, v{v} row_bcast:15 row_mask:0xa bank_mask:0xf")
    a("s_nop 1")
    a(f"v_add_f32_dpp v{v}, v{v}, v{v} row_bcast:31 row_mask:0xc bank_mask:0xf")
    a("s_nop 1")
    a(f"v_readlane_b32 s{sdst}, v{v}, 63")
    a("s_nop 3")

def gen_prep(a, npf=256, rev=0, pfw2=1, r1=2048, xpf=0, pflast=0, kvfirst=0, hblk=0):
    name = "prep_kernel"
    kernel_header(a, name)
    a(f"s_cmp_ge_u32 s2, {768+npf}")
    a("s_cbranch_scc1 prep_done")
    if npf and pflast:
        a("s_cmp_lt_u32 s2, 768")
        a("s_cbranch_scc1 prep_notpf")
        a("s_sub_u32 s2, s2, 768")
        a("s_branch prep_pf")
        a.label("prep_notpf")
    elif npf:
        a(f"s_cmp_lt_u32 s2, {npf}")
        a("s_cbranch_scc1 prep_pf")
        a(f"s_sub_u32 s2, s2, {npf}")
    a("s_load_dwordx4 s[4:7], s[0:1], 0")
    a("s_load_dwordx4 s[8:11], s[0:1], 16")
    a("s_load_dwordx2 s[12:13], s[0:1], 104")
    if kvfirst:
        a("s_add_u32 s3, s2, 512")
        a("s_sub_u32 s14, s2, 256")
        a("s_cmp_lt_u32 s2, 256")
        a("s_cselect_b32 s2, s3, s14")
    a("s_cmp_ge_u32 s2, 512")
    a("s_cbranch_scc1 prep_kv")
    a("v_and_b32 v1, 63, v0")
    a("v_lshrrev_b32 v2, 6, v0")
    a("s_lshl_b32 s3, s2, 2")
    a("v_add_u32 v2, s3, v2")
    a("v_lshlrev_b32 v3, 11, v2")
    a("v_lshl_add_u32 v3, v1, 4, v3")
    a("s_waitcnt lgkmcnt(0)")
    srd(a, 16, 4, S * D * 2)
    srd(a, 20, 12, S * D * 2, WS_H)
    srd(a, 24, 12, S * 8, WS_STATS)
    a("buffer_load_dwordx4 v[4:7], v3, s[16:19], 0 offen")
    a("buffer_load_dwordx4 v[8:11], v3, s[16:19], 0 offen offset:1024")
    a("s_waitcnt vmcnt(0)")
    X = 16
    for i in range(8):
        a(f"v_lshlrev_b32 v{X+2*i}, 16, v{4+i}")
        a(f"v_and_b32 v{X+2*i+1}, 0xffff0000, v{4+i}")
    a("s_mov_b32 s30, 0x3a800000")
    a("s_mov_b32 s31, 0x3727c5ac")
    def ln_pass(save):
        T = 32
        a(f"v_add_f32 v12, v{X}, v{X+1}")
        for i in range(2, 16):
            a(f"v_add_f32 v12, v12, v{X+i}")
        wave_sum(a, 12, 28)
        a("v_mov_b32 v13, s28")
        a("v_mul_f32 v13, s30, v13")
        for i in range(16):
            a(f"v_sub_f32 v{T+i}, v{X+i}, v13")
        a(f"v_mul_f32 v12, v{T}, v{T}")
        for i in range(1, 16):
            a(f"v_fmac_f32 v12, v{T+i}, v{T+i}")
        wave_sum(a, 12, 28)
        a("v_mov_b32 v14, s28")
        a("v_mul_f32 v14, s30, v14")
        rnd2(a, 13, 14, 15)
        a("v_add_f32 v14, s31, v14")
        a("v_cvt_pk_bf16_f32 v15, v14, v14")
        a("v_lshlrev_b32 v14, 16, v15")
        a("v_sqrt_f32 v14, v14")
        a("s_nop 0")
        a("v_cvt_pk_bf16_f32 v15, v14, v14")
        a("v_lshlrev_b32 v14, 16, v15")
        a("v_rcp_f32 v15, v14")
        if save:
            a("v_lshlrev_b32 v48, 3, v2")
            a("v_cmp_eq_u32 vcc, 0, v1")
            a("s_and_saveexec_b64 s[26:27], vcc")
            a("v_mov_b32 v50, v13")
            a("v_mov_b32 v51, v14")
            a("buffer_store_dwordx2 v[50:51], v48, s[24:27], 0 offen")
            a("s_mov_b64 exec, s[26:27]")
        for i in range(16):
            a(f"v_sub_f32 v{X+i}, v{X+i}, v13")
        for i in range(0, 16, 2):
            rnd2(a, X + i, X + i + 1, 12)
        for i in range(16):
            a(f"v_mul_f32 v{T+i}, v{X+i}, v15")
            a(f"v_fma_f32 v{X+i}, -v{T+i}, v14, v{X+i}")
            a(f"v_fmac_f32 v{T+i}, v{X+i}, v15")
        for i in range(0, 16, 2):
            a(f"v_cvt_pk_bf16_f32 v{4+i//2}, v{T+i}, v{T+i+1}")
            a(f"v_lshlrev_b32 v{X+i}, 16, v{4+i//2}")
            a(f"v_and_b32 v{X+i+1}, 0xffff0000, v{4+i//2}")
    a.lines = [l.replace("s[24:27], 0 offen", "s[40:43], 0 offen") for l in a.lines]
    srd(a, 40, 12, S * 8, WS_STATS)
    ln_pass(True)
    ln_pass(False)
    a.lines = [l.replace("s[24:27], 0 offen", "s[40:43], 0 offen") for l in a.lines]
    if hblk:
        a("v_lshrrev_b32 v12, 4, v1")
        a("v_lshlrev_b32 v12, 19, v12")
        a("v_lshl_add_u32 v12, v2, 8, v12")
        a("v_and_b32 v13, 15, v1")
        a("v_lshl_add_u32 v12, v13, 4, v12")
        a("v_add_u32 v13, 0x200000, v12")
        a("buffer_store_dwordx4 v[4:7], v12, s[20:23], 0 offen")
        a("buffer_store_dwordx4 v[8:11], v13, s[20:23], 0 offen")
    else:
        a("buffer_store_dwordx4 v[4:7], v3, s[20:23], 0 offen")
        a("buffer_store_dwordx4 v[8:11], v3, s[20:23], 0 offen offset:1024")
    a("s_endpgm")
    a.label("prep_kv")
    a("s_sub_u32 s3, s2, 512")
    a("s_and_b32 s14, s3, 15")
    a("s_lshr_b32 s15, s3, 4")
    a("v_and_b32 v1, 7, v0")
    a("v_lshrrev_b32 v2, 3, v0")
    a("s_lshl_b32 s14, s14, 7")
    a("s_lshl_b32 s15, s15, 6")
    a("v_lshl_add_u32 v2, v2, 2, s14")
    a("v_lshl_add_u32 v1, v1, 3, s15")
    a("v_lshlrev_b32 v3, 11, v2")
    a("v_lshl_add_u32 v3, v1, 1, v3")
    a("s_waitcnt lgkmcnt(0)")
    srd(a, 16, 6, S * D * 2)
    srd(a, 20, 8, S * D * 2)
    srd(a, 24, 10, D * 8)
    srd(a, 28, 12, D * S * 2, WS_KVT)
    KO = 4
    for i in range(7):
        a(f"v_add_u32 v{KO+i}, {(i-3)*2048 & 0xffffffff:#x}, v3")
    KR = 16
    VR = 44
    WR = 60
    for i in range(7):
        a(f"buffer_load_dwordx4 v[{KR+4*i}:{KR+4*i+3}], v{KO+i}, s[16:19], 0 offen nt")
    for i in range(4):
        a(f"buffer_load_dwordx4 v[{VR+4*i}:{VR+4*i+3}], v{KO+3+i}, s[20:23], 0 offen nt")
    a("v_lshlrev_b32 v11, 3, v1")
    for i in range(4):
        a(f"buffer_load_dwordx4 v[{WR+4*i}:{WR+4*i+3}], v11, s[24:27], 0 offen offset:{16*i}")
    a("v_lshlrev_b32 v12, 12, v1")
    if rev:
        a("v_xor_b32 v13, 4, v2")
        a("v_lshl_add_u32 v12, v13, 1, v12")
    else:
        a("v_lshl_add_u32 v12, v2, 1, v12")
    a("s_waitcnt vmcnt(0)")
    KF = 80
    VF = 88
    WF = 92
    P = 96
    for j in range(8):
        dw, hi = j >> 1, j & 1
        def unp(dst, src):
            if hi: a(f"v_and_b32 v{dst}, 0xffff0000, v{src}")
            else: a(f"v_lshlrev_b32 v{dst}, 16, v{src}")
        for i in range(7): unp(KF + i, KR + 4 * i + dw)
        for i in range(4): unp(VF + i, VR + 4 * i + dw)
        a(f"v_lshlrev_b32 v{WF}, 16, v{WR+2*j}")
        a(f"v_and_b32 v{WF+1}, 0xffff0000, v{WR+2*j}")
        a(f"v_lshlrev_b32 v{WF+2}, 16, v{WR+2*j+1}")
        a(f"v_and_b32 v{WF+3}, 0xffff0000, v{WR+2*j+1}")
        for t in range(4):
            for r in range(4):
                a(f"v_mul_f32 v{P+4*t+r}, v{KF+r+t}, v{WF+3-t}")
            rnd2(a, P + 4 * t, P + 4 * t + 1, 13)
            rnd2(a, P + 4 * t + 2, P + 4 * t + 3, 13)
        for t in range(1, 4):
            for r in range(4):
                a(f"v_add_f32 v{P+r}, v{P+r}, v{P+4*t+r}")
            rnd2(a, P, P + 1, 13)
            rnd2(a, P + 2, P + 3, 13)
        for r in range(4):
            a(f"v_mul_f32 v{P+r}, v{P+r}, v{VF+r}")
        o = 112 + 2 * (j & 1)
        if rev:
            a(f"v_cvt_pk_bf16_f32 v{o}, v{P+3}, v{P+2}")
            a(f"v_cvt_pk_bf16_f32 v{o+1}, v{P+1}, v{P}")
        else:
            a(f"v_cvt_pk_bf16_f32 v{o}, v{P}, v{P+1}")
            a(f"v_cvt_pk_bf16_f32 v{o+1}, v{P+2}, v{P+3}")
        a(f"buffer_store_dwordx2 v[{o}:{o+1}], v12, s[28:31], 0 offen")
        a("v_add_u32 v12, 0x1000, v12")
    a("s_endpgm")
    if npf:
        a.label("prep_pf")
        a("s_load_dwordx2 s[4:5], s[0:1], 56")
        a(f"s_load_dwordx2 s[6:7], s[0:1], {32 if pfw2 == 2 else 72}")
        per = (r1 * F * 2 // npf + 4095) // 4096 * 4096
        a(f"s_mul_i32 s3, s2, {per}")
        a("v_lshlrev_b32 v1, 4, v0")
        a("v_add_u32 v1, s3, v1")
        a("s_waitcnt lgkmcnt(0)")
        srd(a, 8, 4, S * F * 2)
        srd(a, 12, 6, D * S * 2 if pfw2 == 2 else S * F * 2)
        n = per // 4096
        if pfw2 == 2:
            a(f"s_mul_i32 s3, s2, {D*S*2//npf}")
            a("v_lshlrev_b32 v2, 4, v0")
            a("v_add_u32 v2, s3, v2")
            for i in range(D * S * 2 // npf // 4096):
                a(f"s_mov_b32 s16, {4096*i}")
                a(f"buffer_load_dwordx4 v[{8+8*(i%8)}:{11+8*(i%8)}], v2, s[12:15], s16 offen")
        if xpf:
            a("s_and_b32 s17, s2, 7")
            a("s_lshr_b32 s18, s2, 3")
            a("s_lshl_b32 s18, s18, 6")
            a("v_lshrrev_b32 v3, 4, v0")
            a("v_add_u32 v3, s18, v3")
            a("s_movk_i32 s18, 7168")
            a("v_mul_lo_u32 v3, v3, s18")
            a("v_and_b32 v1, 15, v0")
            a("v_lshl_add_u32 v3, v1, 4, v3")
            a("s_lshl_b32 s17, s17, 8")
            a("v_add_u32 v3, s17, v3")
            for fi in range(4):
                if fi == 3:
                    a("s_cmp_ge_u32 s17, 1024")
                    a("s_cbranch_scc1 prep_done")
                for q in range(4):
                    a(f"s_mov_b32 s16, {fi*2048 + q*16*7168}")
                    a(f"buffer_load_dwordx4 v[{4+4*q}:{7+4*q}], v3, s[8:11], s16 offen{' nt' if xpf == 1 else ''}")
            n = 0
        for i in range(n):
            a(f"s_mov_b32 s16, {4096*i}")
            a(f"buffer_load_dwordx4 v[{4+8*(i%8)}:{7+8*(i%8)}], v1, s[8:11], s16 offen")
            if pfw2 == 1: a(f"buffer_load_dwordx4 v[{8+8*(i%8)}:{11+8*(i%8)}], v1, s[12:15], s16 offen")
    a.label("prep_done")
    a("s_endpgm")
    return kernel_desc(name, 120, 48)

def gen_gemm1(a, NST=4, compute=True, epilogue=True, nwg=224, only=0, blk=0):
    name = "gemm1_kernel"
    NK = S // 64
    SLOT = 32768
    kernel_header(a, name)
    a(f"s_cmp_ge_u32 s2, {nwg}")
    a("s_cbranch_scc1 g1_done")
    a("s_load_dwordx4 s[4:7], s[0:1], 56")
    a("s_load_dwordx2 s[8:9], s[0:1], 104")
    a("s_and_b32 s10, s2, 7")
    a("s_lshr_b32 s11, s2, 3")
    a("s_mul_i32 s12, s11, 37")
    a("s_lshr_b32 s12, s12, 8")
    a("s_mul_i32 s13, s12, 7")
    a("s_sub_u32 s13, s11, s13")
    a("s_and_b32 s14, s10, 3")
    a("s_mul_i32 s14, s14, 7")
    a("s_add_u32 s14, s14, s13")
    a("s_lshr_b32 s15, s10, 2")
    a("s_lshl_b32 s15, s15, 2")
    a("s_add_u32 s15, s15, s12")
    if blk == 2: a("s_mov_b32 s15, 0")
    if blk == 3:
        a("s_mov_b32 s15, 0"); a("s_mov_b32 s14, 0"); blk = 0
    a("v_and_b32 v1, 63, v0")
    a("v_lshrrev_b32 v2, 6, v0")
    a("s_nop 0")
    a("v_readfirstlane_b32 s16, v2")
    a("s_waitcnt lgkmcnt(0)")
    srd(a, 20, 4, S * F * 2)
    srd(a, 24, 8, S * D * 2, WS_H)
    srd(a, 28, 8, D * F * 2, WS_U)
    srd(a, 32, 6, F * 2)
    a("s_cmp_ge_u32 s16, 4")
    a("s_cbranch_scc1 g1_loader")
    a("s_and_b32 s17, s16, 1")
    a("s_lshr_b32 s18, s16, 1")
    a("v_lshrrev_b32 v3, 4, v1")
    a("v_bfe_u32 v4, v1, 2, 2")
    a("v_and_b32 v5, 3, v1")
    a("v_and_b32 v6, 1, v3")
    a("v_lshl_or_b32 v6, v6, 2, v4")
    a("v_lshl_add_u32 v7, v3, 3, v4")
    a("v_lshlrev_b32 v7, 8, v7")
    a("v_lshl_add_u32 v7, v5, 3, v7")
    AC, BC = 8, 12
    AA, BA = 16, 20
    a("s_lshl_b32 s19, s17, 2")
    a("s_lshl_b32 s36, s18, 2")
    for i in range(4):
        a(f"s_add_u32 s37, s19, {i}")
        a(f"v_xor_b32 v{AC+i}, s37, v6")
        a(f"v_lshl_add_u32 v{AC+i}, v{AC+i}, 5, v7")
        a(f"s_add_u32 s37, s36, {i}")
        a(f"v_xor_b32 v{BC+i}, s37, v6")
        a(f"v_lshl_add_u32 v{BC+i}, v{BC+i}, 5, v7")
        a(f"v_add_u32 v{BC+i}, 0x4000, v{BC+i}")
        a(f"v_mov_b32 v{AA+i}, v{AC+i}")
        a(f"v_mov_b32 v{BA+i}, v{BC+i}")
    a("s_lshl_b32 s37, s14, 7")
    a("s_lshl_b32 s38, s17, 6")
    a("s_add_u32 s37, s37, s38")
    a("v_lshl_add_u32 v24, v3, 2, s37")
    a("v_lshlrev_b32 v24, 1, v24")
    BI = 40
    for i in range(4):
        a(f"buffer_load_dwordx2 v[{BI+2*i}:{BI+2*i+1}], v24, s[32:35], 0 offen offset:{32*i}")
    FA = [64, 96]; FB = [80, 112]
    ACC = 128
    for i in range(64):
        a(f"v_mov_b32 v{ACC+i}, 0")
    a("s_mov_b32 s39, 0")
    a("s_mov_b32 s40, 0")
    a("s_barrier")
    def reads(buf, ks):
        L = []
        for i in range(4):
            for hh in range(2):
                L.append(f"ds_read_b64_tr_b16 v[{FA[buf]+4*i+2*hh}:{FA[buf]+4*i+2*hh+1}], v{AA+i} offset:{ks*8192+hh*1024}")
            for hh in range(2):
                L.append(f"ds_read_b64_tr_b16 v[{FB[buf]+4*i+2*hh}:{FB[buf]+4*i+2*hh+1}], v{BA+i} offset:{ks*8192+hh*1024}")
        return L
    def mfmas(buf):
        L = []
        for i in range(4):
            for j in range(4):
                c = ACC + 16 * i + 4 * j
                L.append(f"v_mfma_f32_16x16x32_bf16 v[{c}:{c+3}], v[{FA[buf]+4*i}:{FA[buf]+4*i+3}], v[{FB[buf]+4*j}:{FB[buf]+4*j+3}], v[{c}:{c+3}]")
        return L
    def interleave(M, R):
        R = list(R)
        for m in M:
            a(m)
            for _ in range(2):
                if R: a(R.pop(0))
        for r in R: a(r)
    if compute:
        for r in reads(0, 0): a(r)
    a.label("g1_cloop")
    if compute:
        a("s_waitcnt lgkmcnt(0)")
        interleave(mfmas(0), reads(1, 1))
        a("s_waitcnt lgkmcnt(0)")
    a("s_barrier")
    a(f"s_add_u32 s39, s39, {SLOT}")
    a(f"s_cmp_eq_u32 s39, {SLOT*NST}")
    a("s_cselect_b32 s39, 0, s39")
    upd = []
    for i in range(4):
        upd.append(f"v_add_u32 v{AA+i}, s39, v{AC+i}")
        upd.append(f"v_add_u32 v{BA+i}, s39, v{BC+i}")
    if compute:
        M = mfmas(1)
        a(M[0])
        for u in upd: a(u)
        interleave(M[1:], reads(0, 0))
    a("s_add_u32 s40, s40, 1")
    a(f"s_cmp_lt_u32 s40, {NK}")
    a("s_cbranch_scc1 g1_cloop")
    a("s_waitcnt lgkmcnt(0) vmcnt(0)")
    if epilogue:
        a("s_nop 7")
        a("s_lshl_b32 s41, s15, 7")
        a("s_lshl_b32 s42, s18, 6")
        a("s_add_u32 s41, s41, s42")
        a("v_and_b32 v25, 15, v1")
        a("v_add_u32 v25, s41, v25")
        a("s_movk_i32 s42, 7168")
        a("v_mul_lo_u32 v25, v25, s42")
        a("v_add_u32 v25, v25, v24")
        c1 = -2.0 * 0.7978845608028654 * 1.4426950408889634
        c2 = c1 * 0.044715
        import struct
        fb = lambda x: struct.unpack("<I", struct.pack("<f", x))[0]
        a(f"s_mov_b32 s43, {fb(c1):#x}")
        a(f"s_mov_b32 s44, {fb(c2):#x}")
        a("v_mov_b32 v26, s43")
        for i in range(4):
            a(f"v_lshlrev_b32 v48, 16, v{BI+2*i}")
            a(f"v_and_b32 v49, 0xffff0000, v{BI+2*i}")
            a(f"v_lshlrev_b32 v50, 16, v{BI+2*i+1}")
            a(f"v_and_b32 v51, 0xffff0000, v{BI+2*i+1}")
            for j in range(4):
                c = ACC + 16 * i + 4 * j
                rnd2(a, c, c + 1, 27)
                rnd2(a, c + 2, c + 3, 27)
                for r in range(4):
                    a(f"v_add_f32 v{c+r}, v{c+r}, v{48+r}")
                rnd2(a, c, c + 1, 27)
                rnd2(a, c + 2, c + 3, 27)
                for r in range(4):
                    a(f"v_mul_f32 v{52+r}, v{c+r}, v{c+r}")
                for r in range(4):
                    a(f"v_fma_f32 v{52+r}, v{52+r}, s44, v26")
                for r in range(4):
                    a(f"v_mul_f32 v{52+r}, v{52+r}, v{c+r}")
                for r in range(4):
                    a(f"v_exp_f32 v{52+r}, v{52+r}")
                for r in range(4):
                    a(f"v_add_f32 v{52+r}, 1.0, v{52+r}")
                for r in range(4):
                    a(f"v_rcp_f32 v{52+r}, v{52+r}")
                for r in range(4):
                    a(f"v_mul_f32 v{c+r}, v{c+r}, v{52+r}")
                o = 56 + 2 * (j & 1)
                a(f"v_cvt_pk_bf16_f32 v{o}, v{c}, v{c+1}")
                a(f"v_cvt_pk_bf16_f32 v{o+1}, v{c+2}, v{c+3}")
                a(f"v_add_u32 v{60+(j&1)}, {j*16*7168}, v25")
                a(f"buffer_store_dwordx2 v[{o}:{o+1}], v{60+(j&1)}, s[28:31], 0 offen offset:{32*i}")
    a("s_endpgm")
    a.label("g1_loader")
    a("s_sub_u32 s16, s16, 4")
    a("v_lshrrev_b32 v3, 4, v1")
    a("v_and_b32 v4, 15, v1")
    a("v_lshlrev_b32 v5, 1, v3")
    a("v_xor_b32 v5, v5, v4")
    a("v_xor_b32 v6, 8, v5")
    a("s_lshl_b32 s17, s16, 4")
    a("v_add_u32 v3, s17, v3")
    a("s_lshl_b32 s18, s14, 8")
    a(f"s_lshl_b32 s19, s15, {19 if blk else 8}")
    a("s_movk_i32 s36, 7168")
    VA, VB = 8, 12
    for q in range(4):
        c16 = 5 if q < 2 else 6
        a(f"v_add_u32 v7, {4*q}, v3")
        a(f"v_mul_lo_u32 v{VA+q}, v7, s36")
        a(f"v_lshl_add_u32 v{VA+q}, v{c16}, 4, v{VA+q}")
        a(f"v_add_u32 v{VA+q}, s18, v{VA+q}")
        a(f"v_lshlrev_b32 v{VB+q}, {8 if blk else 11}, v7")
        a(f"v_lshl_add_u32 v{VB+q}, v{c16}, 4, v{VB+q}")
        a(f"v_add_u32 v{VB+q}, s19, v{VB+q}")
        if q:
            a(f"v_subrev_u32 v{VA+q}, {1024*q}, v{VA+q}")
            a(f"v_subrev_u32 v{VB+q}, {1024*q}, v{VB+q}")
    a("s_lshl_b32 s37, s16, 12")
    a("s_mov_b32 s38, 0")
    a("s_mov_b32 s39, 0")
    a("s_mov_b32 s40, s37")
    def issue():
        a("s_mov_b32 m0, s40")
        a("s_nop 0")
        for q in range(4):
            if only == 2: a(f"buffer_load_dwordx4 v{VB+q}, s[24:27], s39 offen offset:{1024*q} lds")
            else: a(f"buffer_load_dwordx4 v{VA+q}, s[20:23], s38 offen offset:{1024*q} lds")
        a("s_add_u32 m0, s40, 0x4000")
        a("s_nop 0")
        for q in range(4):
            if only == 1: a(f"buffer_load_dwordx4 v{VA+q}, s[20:23], s38 offen offset:{1024*q} lds")
            else: a(f"buffer_load_dwordx4 v{VB+q}, s[24:27], s39 offen offset:{1024*q} lds")
        a(f"s_add_u32 s38, s38, {64*7168}")
        a(f"s_add_u32 s39, s39, {64*256 if blk else 64*2048}")
        a(f"s_add_u32 s40, s40, {SLOT}")
        a(f"s_add_u32 s41, s37, {SLOT*NST}")
        a("s_cmp_eq_u32 s40, s41")
        a("s_cselect_b32 s40, s37, s40")
    for st in range(NST):
        issue()
    a(f"s_waitcnt vmcnt({8*(NST-1)})")
    a("s_barrier")
    a("s_mov_b32 s42, 0")
    a.label("g1_lloop")
    a(f"s_waitcnt vmcnt({8*(NST-2)})")
    a("s_barrier")
    issue()
    a("s_add_u32 s42, s42, 1")
    a(f"s_cmp_lt_u32 s42, {NK-NST}")
    a("s_cbranch_scc1 g1_lloop")
    for j in range(NST):
        if j <= NST - 2:
            a(f"s_waitcnt vmcnt({8*(NST-2-j)})")
        a("s_barrier")
    a.label("g1_done")
    a("s_endpgm")
    return kernel_desc(name, 192, 48), SLOT * NST

def build(opts):
    a = Asm()
    a.lines.append('.amdgcn_target "amdgcn-amd-amdhsa--gfx950"')
    a.lines.append(".text")
    descs = []
    launches = []
    descs.append(gen_prep(a, 0))
    launches.append("; @launch kernel=prep_kernel grid=(768,1,1) block=(256,1,1) lds=0")
    d, lds = gen_gemm1(a, NST=opts.get("nst", 4), compute=opts.get("compute", True), epilogue=opts.get("epilogue", True), nwg=opts.get("nwg", 224), only=opts.get("only", 0), blk=opts.get("blk", 0))
    descs.append(d)
    launches.append(f"; @launch kernel=gemm1_kernel grid=(224,1,1) block=(512,1,1) lds={lds}")
    txt = HEADER + "\n".join(launches) + "\n" + a.text() + '.section .rodata,"a"\n.p2align 6\n' + ".p2align 6\n".join(descs)
    return txt

if __name__ == "__main__":
    opts = {}
    for arg in sys.argv[2:]:
        k, v = arg.split("=")
        opts[k] = int(v)
    open(sys.argv[1], "w").write(build(opts))
```

```python
import sys, struct
from asmlib import *
from gen import rnd2, wave_sum, gen_prep, HEADER, S, D, F, MB, WS_H, WS_STATS, WS_KVT, WS_Y2T, WS_U
from gen3 import gelu_epi, gen_gemm2, interleave, fb

KOFF = 4608
KNT = ""
KCP2 = 4160
CONV_LDS = KOFF + 2 * KCP2

def conv_setup(a, ring_bytes):
    a("s_lshl_b32 s65, s64, 12")
    a("s_add_u32 s48, s68, s65"); a("s_addc_u32 s49, s69, 0"); a("s_movk_i32 s50, 4096"); a("s_mov_b32 s51, 0x00020000")
    a("s_add_u32 s52, s8, s65"); a("s_addc_u32 s53, s9, 0")
    a(f"s_add_u32 s56, s52, {WS_Y2T}"); a("s_addc_u32 s57, s53, 0"); a("s_movk_i32 s58, 4096"); a("s_mov_b32 s59, 0x00020000")
    a(f"s_add_u32 s52, s52, {WS_KVT}"); a("s_addc_u32 s53, s53, 0"); a("s_movk_i32 s54, 4096"); a("s_mov_b32 s55, 0x00020000")
    srd(a, 60, 70, D * 2)
    a(f"s_mul_i32 s66, s16, {CONV_LDS}")
    a(f"s_add_u32 s66, s66, {ring_bytes}")
    a("v_lshlrev_b32 v21, 4, v1")
    a("s_add_u32 m0, s66, 480")
    a("s_nop 0")
    for q in range(4):
        a(f"buffer_load_dwordx4 v21, s[52:55], 0 offen offset:{1024*q} lds")
    a("v_lshlrev_b32 v22, 6, v1")
    a("v_subrev_u32 v22, 32, v22")
    for i in range(4):
        a(f"v_add_u32 v23, {16*i}, v22")
        a(f"buffer_load_dwordx4 v[{64+4*i}:{67+4*i}], v23, s[48:51], 0 offen{KNT}")
    a("v_add_u32 v23, 64, v22")
    a("buffer_load_dword v80, v23, s[48:51], 0 offen")
    a("v_mov_b32 v23, 4064")
    a("buffer_load_dwordx4 v[84:87], v23, s[48:51], 0 offen")
    a("buffer_load_dwordx4 v[88:91], v23, s[48:51], 0 offen offset:16")
    a("v_mov_b32 v92, 0")
    a("s_lshl_b32 s65, s64, 1")
    a("v_mov_b32 v22, s65")
    a("buffer_load_ushort v20, v22, s[60:63], 0 offen")
    for i in range(4): a(f"v_mov_b32 v{32+i}, 0")
    a("v_add_u32 v22, s66, v21")
    a("v_cmp_gt_u32 vcc, 30, v1")
    a("s_and_saveexec_b64 s[72:73], vcc")
    a("ds_write_b128 v22, v[32:35]")
    a("s_mov_b64 exec, s[72:73]")
    a("v_and_b32 v22, 15, v1")
    a("v_lshrrev_b32 v23, 4, v1")
    a("v_add_u32 v16, 1, v22")
    a("v_and_b32 v16, 1, v16")
    a("v_lshlrev_b32 v17, 3, v23")
    a("v_sub_u32 v17, v22, v17")
    a("v_sub_u32 v17, v17, v16")
    a("v_lshlrev_b32 v17, 1, v17")
    a(f"v_mul_u32_u24 v16, {KCP2}, v16")
    a("v_add_u32 v16, v16, v17")
    a("v_add_u32 v16, s66, v16")
    a(f"v_add_u32 v192, {KOFF+50}, v16")
    for i in range(1, 4): a(f"v_add_u32 v{192+i}, {KOFF+50+1024*i}, v16")
    a("v_lshlrev_b32 v17, 5, v22")
    a("v_lshl_add_u32 v17, v23, 4, v17")
    a("v_add_u32 v17, s66, v17")
    a("v_and_b32 v18, 1, v23")
    a("v_lshlrev_b32 v18, 3, v18")
    a("v_lshrrev_b32 v19, 1, v23")
    a("v_lshlrev_b32 v19, 4, v19")
    a("v_lshl_add_u32 v19, v22, 5, v19")
    a("v_sub_u32 v18, v19, v18")
    a("v_add_u32 v18, s66, v18")
    a("v_add_u32 v18, 488, v18")
    a("v_lshlrev_b32 v19, 5, v22")
    a("v_lshl_add_u32 v19, v23, 3, v19")

CACC = 32
CFA = [64, 128]; CFB = [96, 160]
def conv_flat():
    L = []
    for i in range(32): L.append(f"v_mov_b32 v{CACC+i}, 0")
    def reads(buf, rho):
        R = []
        for P in range(8):
            off = 512 * P + 64 * rho
            bi, o4 = off // 1024, (off % 1024) // 4
            R.append(f"ds_read2_b32 v[{CFA[buf]+4*P}:{CFA[buf]+4*P+1}], v{192+bi} offset0:{o4} offset1:{o4+1}")
            R.append(f"ds_read2_b32 v[{CFA[buf]+4*P+2}:{CFA[buf]+4*P+3}], v{192+bi} offset0:{o4+2} offset1:{o4+3}")
            R.append(f"ds_read_b128 v[{CFB[buf]+4*P}:{CFB[buf]+4*P+3}], v17 offset:{512*P-64*rho+448}")
        return R
    def mf(buf):
        M = []
        for P in range(8):
            for Dl in range(8 - P):
                T = P + Dl
                M.append(f"v_mfma_f32_16x16x32_bf16 v[{CACC+4*T}:{CACC+4*T+3}], v[{CFA[buf]+4*P}:{CFA[buf]+4*P+3}], v[{CFB[buf]+4*Dl}:{CFB[buf]+4*Dl+3}], v[{CACC+4*T}:{CACC+4*T+3}]")
        return M
    L.append("v_lshlrev_b32 v21, 6, v1")
    L.append("v_add_u32 v21, s66, v21")
    for m in range(16):
        L.append(f"v_alignbit_b32 v{96+m}, v{64+m+1}, v{64+m}, 16")
    for q in range(4):
        L.append(f"ds_write_b128 v21, v[{64+4*q}:{67+4*q}] offset:{KOFF+16*q}")
        L.append(f"ds_write_b128 v21, v[{96+4*q}:{99+4*q}] offset:{KOFF+KCP2+16*q}")
    for m in range(8):
        L.append(f"v_alignbit_b32 v{112+m}, v{84+m+1}, v{84+m}, 16")
    L.append("v_cmp_eq_u32 vcc, 0, v1")
    L.append("s_and_saveexec_b64 s[72:73], vcc")
    for q in range(2):
        L.append(f"ds_write_b128 v21, v[{84+4*q}:{87+4*q}] offset:{KOFF+4096+16*q}")
        L.append(f"ds_write_b128 v21, v[{112+4*q}:{115+4*q}] offset:{KOFF+KCP2+4096+16*q}")
    L.append("s_mov_b64 exec, s[72:73]")
    L.append("s_waitcnt lgkmcnt(0)")
    NB = len(L)
    L += reads(0, 0)
    for rho in range(8):
        L.append("s_waitcnt lgkmcnt(0)")
        R = reads((rho + 1) & 1, rho + 1) if rho < 7 else []
        for m in mf(rho & 1):
            L.append(m)
            if R: L.append(R.pop(0))
    return L, NB

def conv_flat_sb():
    L0, NB = conv_flat()
    L = L0[:NB]
    for rho in range(8):
        for P in range(8):
            off = 512 * P + 64 * rho
            bi, o4 = off // 1024, (off % 1024) // 4
            L.append(f"ds_read2_b32 v[{64+4*P}:{64+4*P+1}], v{24+bi} offset0:{o4} offset1:{o4+1}")
            L.append(f"ds_read2_b32 v[{64+4*P+2}:{64+4*P+3}], v{24+bi} offset0:{o4+2} offset1:{o4+3}")
            L.append(f"ds_read_b128 v[{96+4*P}:{96+4*P+3}], v17 offset:{512*P-64*rho+448}")
        L.append("s_waitcnt lgkmcnt(0)")
        for P in range(8):
            for Dl in range(8 - P):
                T = P + Dl
                L.append(f"v_mfma_f32_16x16x32_bf16 v[{CACC+4*T}:{CACC+4*T+3}], v[{64+4*P}:{64+4*P+3}], v[{96+4*Dl}:{96+4*Dl+3}], v[{CACC+4*T}:{CACC+4*T+3}]")
    return L, NB

def conv_epilogue(a):
    a("v_lshlrev_b32 v20, 16, v20")
    for T in range(8):
        a(f"ds_read_b64 v[{64+2*T}:{65+2*T}], v18 offset:{512*T}")
    a("s_nop 7")
    a("s_waitcnt lgkmcnt(0)")
    for T in range(8):
        c = CACC + 4 * T
        a(f"v_and_b32 v80, 0xffff0000, v{65+2*T}")
        a(f"v_lshlrev_b32 v81, 16, v{65+2*T}")
        a(f"v_and_b32 v82, 0xffff0000, v{64+2*T}")
        a(f"v_lshlrev_b32 v83, 16, v{64+2*T}")
        for r in range(4): a(f"v_mul_f32 v{80+r}, v{80+r}, v20")
        rnd2(a, 80, 81, 84); rnd2(a, 82, 83, 84)
        rnd2(a, c, c + 1, 84); rnd2(a, c + 2, c + 3, 84)
        for r in range(4): a(f"v_add_f32 v{c+r}, v{c+r}, v{80+r}")
        o = 86 + 2 * (T & 1)
        a(f"v_cvt_pk_bf16_f32 v{o}, v{c}, v{c+1}")
        a(f"v_cvt_pk_bf16_f32 v{o+1}, v{c+2}, v{c+3}")
        a(f"buffer_store_dwordx2 v[{o}:{o+1}], v19, s[56:59], 0 offen offset:{512*T}")

def gen_gemm1(a, NST=3, CSPAN=26, PFON=1, CONVON=1, NT1=0, PRIO=0, STAMP=0, R1=2048, R2=3584, XMAP=0, TP1=0, CMODE=0, IPER=2, M32=0, LP1=0, HBLK=0, CPRIO=0):
    name = "gemm1_kernel"
    NK = S // 64
    SLOT = 32768
    RING = SLOT * NST
    kernel_header(a, name)
    a("s_cmp_ge_u32 s2, 256")
    a("s_cbranch_scc1 g1_done")
    a("s_load_dwordx4 s[4:7], s[0:1], 56")
    a("s_load_dwordx2 s[8:9], s[0:1], 104")
    a("s_load_dwordx4 s[68:71], s[0:1], 32")
    a("s_load_dwordx2 s[74:75], s[0:1], 72")
    a("s_and_b32 s10, s2, 7")
    a("s_lshr_b32 s11, s2, 3")
    if XMAP:
        a("s_lshr_b32 s12, s11, 3")
        a("s_lshl_b32 s12, s12, 3")
        a("s_add_u32 s14, s10, s12")
        a("s_and_b32 s15, s11, 7")
    else:
        a("s_mul_i32 s12, s11, 37")
        a("s_lshr_b32 s12, s12, 8")
        a("s_mul_i32 s13, s12, 7")
        a("s_sub_u32 s13, s11, s13")
        a("s_and_b32 s14, s10, 3")
        a("s_mul_i32 s14, s14, 7")
        a("s_add_u32 s14, s14, s13")
        a("s_lshr_b32 s15, s10, 2")
        a("s_lshl_b32 s15, s15, 2")
        a("s_add_u32 s15, s15, s12")
    a("v_and_b32 v1, 63, v0")
    a("v_lshrrev_b32 v2, 6, v0")
    a("s_nop 0")
    a("v_readfirstlane_b32 s16, v2")
    if STAMP == 1: a("s_memrealtime s[76:77]")
    a("s_waitcnt lgkmcnt(0)")
    if XMAP:
        a("s_cmp_ge_u32 s14, 28")
    else:
        a("s_cmp_ge_u32 s2, 224")
    a("s_cbranch_scc1 g1_extra")
    srd(a, 20, 4, S * F * 2)
    srd(a, 24, 8, S * D * 2, WS_H)
    a("v_lshrrev_b32 v3, 4, v1")
    BI = 28
    def epi_setup():
        srd(a, 28, 8, D * F * 2, WS_U)
        srd(a, 32, 6, F * 2)
        a("s_and_b32 s17, s16, 1")
        a("s_bfe_u32 s18, s16, 0x10001")
        a("s_lshr_b32 s19, s16, 2")
        a("s_lshl_b32 s37, s14, 7")
        a("s_lshl_b32 s38, s17, 6")
        a("s_add_u32 s37, s37, s38")
        a("s_lshl_b32 s38, s19, 5")
        a("s_add_u32 s37, s37, s38")
        a("v_lshl_add_u32 v24, v3, 2, s37")
        a("v_lshlrev_b32 v24, 1, v24")
        BI = 28
        for ii in range(2):
            a(f"buffer_load_dwordx2 v[{BI+2*ii}:{BI+2*ii+1}], v24, s[32:35], 0 offen offset:{32*ii}")
        a("s_mul_i32 s37, s15, 112")
        a("s_lshl_b32 s38, s14, 2")
        a("s_add_u32 s37, s37, s38")
        a("s_lshl_b32 s38, s17, 1")
        a("s_add_u32 s37, s37, s38")
        a("s_add_u32 s37, s37, s19")
        a("s_lshl_b32 s37, s37, 3")
        a("s_lshl_b32 s38, s18, 2")
        a("s_add_u32 s37, s37, s38")
        a("s_lshl_b32 s37, s37, 10")
        a("v_lshl_add_u32 v25, v1, 4, s37")
        a("s_and_b32 s37, s16, 3")
        a("s_lshl_b32 s37, s37, 13")
        a("v_lshl_add_u32 v26, v1, 4, s37")
        c1 = -2.0 * 0.7978845608028654 * 1.4426950408889634
        c2 = c1 * 0.044715
        a(f"s_mov_b32 s42, {fb(c1):#x}"); a(f"s_mov_b32 s43, {fb(c1):#x}")
        a(f"s_mov_b32 s44, {fb(c2):#x}"); a(f"s_mov_b32 s45, {fb(c2):#x}")

    if CMODE == 3:
        a("s_cmp_ge_u32 s16, 8")
        a("s_cbranch_scc1 g1_convw")
    a("s_cmp_ge_u32 s16, 4")
    a("s_cbranch_scc1 g1_loader")
    epi_setup()
    a("v_bfe_u32 v4, v1, 2, 2")
    a("v_and_b32 v5, 3, v1")
    a("v_and_b32 v6, 1, v3")
    a("v_lshl_or_b32 v6, v6, 2, v4")
    a("v_lshl_add_u32 v7, v3, 3, v4")
    a("v_lshlrev_b32 v7, 8, v7")
    a("v_lshl_add_u32 v7, v5, 3, v7")
    AC, BC = 8, 12
    AA, BA = 16, 20
    a("s_lshl_b32 s19, s17, 2")
    a("s_lshl_b32 s36, s18, 2")
    for i in range(4):
        a(f"s_add_u32 s37, s19, {i}")
        a(f"v_xor_b32 v{AC+i}, s37, v6")
        a(f"v_lshl_add_u32 v{AC+i}, v{AC+i}, 5, v7")
        a(f"s_add_u32 s37, s36, {i}")
        a(f"v_xor_b32 v{BC+i}, s37, v6")
        a(f"v_lshl_add_u32 v{BC+i}, v{BC+i}, 5, v7")
        a(f"v_add_u32 v{BC+i}, 0x4000, v{BC+i}")
        a(f"v_mov_b32 v{AA+i}, v{AC+i}")
        a(f"v_mov_b32 v{BA+i}, v{BC+i}")
    if R1 < S:
        tot = (S - R1) * F * 2
        perw = (tot // 224 + 127) // 128 * 128
        a(f"s_mul_i32 s37, s2, {perw}")
        a(f"s_add_u32 s37, s37, {R1*F*2}")
        a("v_lshl_add_u32 v27, v0, 7, s37")
        for t in range((perw + 32767) // 32768):
            a(f"s_mov_b32 s37, {32768*t}")
            a("buffer_load_dword v2, v27, s[20:23], s37 offen")
    if TP1:
        a("v_lshrrev_b32 v27, 4, v1")
        a("v_lshlrev_b32 v27, 6, v27")
        a("v_bfe_u32 v2, v1, 1, 3")
        a("v_add_u32 v27, v27, v2")
        a("s_lshl_b32 s37, s15, 3")
        a(f"s_add_u32 s37, s37, {TP1*64}")
        a("v_add_u32 v27, s37, v27")
        a("s_movk_i32 s37, 7168")
        a("v_mul_lo_u32 v27, v27, s37")
        a("v_and_b32 v2, 1, v1")
        a("v_lshl_add_u32 v27, v2, 7, v27")
        a("s_lshl_b32 s37, s14, 8")
        a("v_add_u32 v27, s37, v27")
        for t in range((TP1 + 15) // 16):
            a("s_lshl_b32 s37, s16, 2")
            a(f"s_add_u32 s37, s37, {16*t - TP1 & 0xffffffff}")
            a(f"s_mul_i32 s37, s37, {64*7168}")
            a("v_add_u32 v7, s37, v27")
            a("buffer_load_dword v2, v7, s[20:23], 0 offen nt")
    FA = [32, 64]; FB = [48, 80]
    ACC = 96
    for i in range(64):
        a(f"v_mov_b32 v{ACC+i}, 0")
    a("s_mov_b32 s39, 0")
    a("s_mov_b32 s40, 0")
    if PRIO: a("s_setprio 2")
    def stamp():
        if STAMP != 1: return
        a("s_memrealtime s[78:79]")
        a("s_waitcnt lgkmcnt(0)")
        a("v_mov_b32 v27, s78")
        a("buffer_store_dword v27, v2, s[48:51], 0 offen")
        a("v_add_u32 v2, 4, v2")
    if STAMP == 1:
        srd(a, 48, 8, 1 << 20, 64 * MB)
        a("s_lshl_b32 s52, s2, 2")
        a("s_add_u32 s52, s52, s16")
        a("s_lshl_b32 s52, s52, 8")
        a("v_mov_b32 v2, s52")
        a("v_mov_b32 v27, s76")
        a("buffer_store_dword v27, v2, s[48:51], 0 offen")
        a("v_add_u32 v2, 4, v2")
    a("s_barrier")
    stamp()
    def reads(buf, ks):
        L = []
        for i in range(4):
            for hh in range(2):
                L.append(f"ds_read_b64_tr_b16 v[{FA[buf]+4*i+2*hh}:{FA[buf]+4*i+2*hh+1}], v{AA+i} offset:{ks*8192+hh*1024}")
            for hh in range(2):
                L.append(f"ds_read_b64_tr_b16 v[{FB[buf]+4*i+2*hh}:{FB[buf]+4*i+2*hh+1}], v{BA+i} offset:{ks*8192+hh*1024}")
        return L
    def mfmas(buf):
        L = []
        if M32:
            for k2 in range(2):
                for i in range(2):
                    for j in range(2):
                        c = ACC + 32 * i + 16 * j
                        L.append(f"v_mfma_f32_32x32x16_bf16 v[{c}:{c+15}], v[{FA[buf]+8*i+4*k2}:{FA[buf]+8*i+4*k2+3}], v[{FB[buf]+8*j+4*k2}:{FB[buf]+8*j+4*k2+3}], v[{c}:{c+15}]")
            return L
        for i in range(4):
            for j in range(4):
                c = ACC + 16 * i + 4 * j
                L.append(f"v_mfma_f32_16x16x32_bf16 v[{c}:{c+3}], v[{FA[buf]+4*i}:{FA[buf]+4*i+3}], v[{FB[buf]+4*j}:{FB[buf]+4*j+3}], v[{c}:{c+3}]")
        return L
    for r in reads(0, 0): a(r)
    a.label("g1_cloop")
    a("s_waitcnt lgkmcnt(0)")
    interleave(a, mfmas(0), reads(1, 1), IPER)
    a("s_waitcnt lgkmcnt(0)")
    a("s_barrier")
    a(f"s_add_u32 s39, s39, {SLOT}")
    a(f"s_cmp_eq_u32 s39, {SLOT*NST}")
    a("s_cselect_b32 s39, 0, s39")
    M = mfmas(1)
    a(M[0])
    for i in range(4):
        a(f"v_add_u32 v{AA+i}, s39, v{AC+i}")
        a(f"v_add_u32 v{BA+i}, s39, v{BC+i}")
    interleave(a, M[1:], reads(0, 0), IPER)
    stamp()
    if TP1:
        a("s_and_b32 s36, s40, 15")
        a("s_lshl_b32 s37, s16, 2")
        a("s_cmp_lg_u32 s36, s37")
        a("s_cbranch_scc1 g1_notouch")
        a(f"s_mul_i32 s37, s40, {64*7168}")
        a("buffer_load_dword v2, v27, s[20:23], s37 offen nt")
        a.label("g1_notouch")
    a("s_add_u32 s40, s40, 1")
    a(f"s_cmp_lt_u32 s40, {NK}")
    a("s_cbranch_scc1 g1_cloop")
    a("s_waitcnt lgkmcnt(0)")
    a("s_nop 7")
    for q in range(8):
        a(f"ds_write_b128 v26, v[{ACC+32+4*q}:{ACC+32+4*q+3}] offset:{1024*q}")
    a("s_waitcnt lgkmcnt(0) vmcnt(0)")
    a("s_barrier")
    stamp()
    gelu_epi(a, [[ACC + 16 * ii + 4 * j for j in range(4)] for ii in range(2)], BI, 25, "s[28:31]", 32)
    stamp()
    a("s_waitcnt vmcnt(0)")
    stamp()
    a("s_endpgm")
    a.label("g1_loader")
    if LP1: a(f"s_setprio {LP1}")
    a("s_sub_u32 s16, s16, 4")
    a("v_and_b32 v4, 15, v1")
    assert CMODE >= 1
    a("v_lshlrev_b32 v5, 1, v3")
    a("v_xor_b32 v5, v5, v4")
    a("v_xor_b32 v6, 8, v5")
    a("s_lshl_b32 s17, s16, 4")
    a("v_add_u32 v3, s17, v3")
    a("s_lshl_b32 s18, s14, 8")
    a(f"s_lshl_b32 s19, s15, {19 if HBLK else 8}")
    a("s_movk_i32 s36, 7168")
    VA, VB = 8, 12
    for q in range(4):
        c16 = 5 if q < 2 else 6
        a(f"v_add_u32 v7, {4*q}, v3")
        a(f"v_mul_lo_u32 v{VA+q}, v7, s36")
        a(f"v_lshl_add_u32 v{VA+q}, v{c16}, 4, v{VA+q}")
        a(f"v_add_u32 v{VA+q}, s18, v{VA+q}")
        a(f"v_lshlrev_b32 v{VB+q}, {8 if HBLK else 11}, v7")
        a(f"v_lshl_add_u32 v{VB+q}, v{c16}, 4, v{VB+q}")
        a(f"v_add_u32 v{VB+q}, s19, v{VB+q}")
        if q:
            a(f"v_subrev_u32 v{VA+q}, {1024*q}, v{VA+q}")
            a(f"v_subrev_u32 v{VB+q}, {1024*q}, v{VB+q}")
    a("s_lshl_b32 s37, s16, 12")
    outst = []
    def issue(s):
        slot = (s % NST) * SLOT
        a(f"s_add_u32 m0, s37, {slot}")
        a(f"s_mov_b32 s38, {s*64*7168}")
        a(f"s_mov_b32 s39, {s*64*(256 if HBLK else 2048)}")
        for q in range(4):
            a(f"buffer_load_dwordx4 v{VA+q}, s[20:23], s38 offen offset:{1024*q} {'nt ' if NT1 else ''}lds")
        a(f"s_add_u32 m0, s37, {slot+0x4000}")
        a("s_nop 0")
        for q in range(4):
            a(f"buffer_load_dwordx4 v{VB+q}, s[24:27], s39 offen offset:{1024*q} lds")
        outst.extend([s] * 8)
    def wait_stage(s):
        cand = [i for i, t in enumerate(outst) if t == s]
        if not cand: return
        idx = max(cand)
        n = len(outst) - 1 - idx
        a(f"s_waitcnt vmcnt({n})")
        del outst[:idx + 1]
    if CMODE >= 1:
        for st in range(NST): issue(st)
        a("s_add_u32 s16, s16, 4")
        a("s_mov_b32 s46, s37")
        a("v_lshrrev_b32 v3, 4, v1")
        epi_setup()
        a("s_mov_b32 s37, s46")
        a("s_sub_u32 s16, s16, 4")
        outst.extend(["b"] * 2)
        wait_stage(0)
        a("s_barrier")
        for s in range(NK):
            if s + 1 < NK: wait_stage(s + 1)
            a("s_barrier")
            if s + NST < NK: issue(s + NST)
    else:
        issue(0)
        a("s_lshl_b32 s64, s2, 2")
        a("s_add_u32 s64, s64, s16")
        conv_setup(a, RING)
        outst.extend(["c"] * 12)
        for st in range(1, NST): issue(st)
        flat, NB = conv_flat() if CONVON else (["s_nop 0"], 1)
        build, flat = flat[:NB], flat[NB:]
        wait_stage("c")
        for ins in build: a(ins)
        a("s_barrier")
        per = (len(flat) + CSPAN - 1) // CSPAN
        epi = Asm(); conv_epilogue(epi)
        epi = [l.strip() for l in epi.lines]
        nst_epi = sum("buffer_store" in l for l in epi)
        cuts = [i + 1 for i, l in enumerate(epi) if "buffer_store" in l]
        pieces = [epi[:cuts[1]], epi[cuts[1]:cuts[3]], epi[cuts[3]:cuts[5]], epi[cuts[5]:]]
        if STAMP == 2:
            srd(a, 76, 8, 1 << 20, 64 * MB)
            a("s_lshl_b32 s80, s2, 2")
            a("s_add_u32 s80, s80, s16")
            a("s_lshl_b32 s80, s80, 10")
            a("v_mov_b32 v196, s80")
        for s in range(NK):
            if STAMP == 2: a("s_memtime s[80:81]")
            if s + 1 < NK: wait_stage(s + 1)
            if STAMP == 2: a("s_memtime s[82:83]")
            a("s_barrier")
            if STAMP == 2: a("s_memtime s[84:85]")
            if PRIO: a("s_setprio 3")
            if s + NST < NK: issue(s + NST)
            if PRIO: a("s_setprio 0")
            if STAMP == 2:
                a("s_memtime s[86:87]")
                a("s_waitcnt lgkmcnt(0)")
                a("v_mov_b32 v200, s80"); a("v_mov_b32 v201, s82"); a("v_mov_b32 v202, s84"); a("v_mov_b32 v203, s86")
                a(f"buffer_store_dwordx4 v[200:203], v196, s[76:79], 0 offen offset:{16*s}")
                outst.append("st")
            if flat:
                chunk, flat = flat[:per], flat[per:]
            elif pieces:
                chunk = pieces.pop(0)
                outst.extend(["y"] * 2)
            else:
                chunk = []
            for ins in chunk: a(ins)
        assert not flat and not pieces
    a("s_barrier")
    for q in range(8):
        a(f"ds_read_b128 v[{64+4*q}:{64+4*q+3}], v26 offset:{1024*q}")
    a("s_waitcnt lgkmcnt(0)")
    gelu_epi(a, [[64 + 16 * ii + 4 * j for j in range(4)] for ii in range(2)], BI, 25, "s[28:31]", 32)
    a("s_endpgm")
    if CMODE == 3:
        def conv_wave(with_bar):
            if CPRIO: a(f"s_setprio {CPRIO}")
            a("s_sub_u32 s16, s16, 8")
            a("s_lshl_b32 s64, s2, 2")
            a("s_add_u32 s64, s64, s16")
            cs = Asm(); conv_setup(cs, RING)
            for l in cs.lines:
                for i in range(4): l = l.replace(f"v{192+i},", f"v{24+i},")
                a.lines.append(l)
            if with_bar:
                for _ in range(4): a("s_barrier")
            a("s_waitcnt vmcnt(0)")
            fl, nb = conv_flat_sb()
            ep = Asm(); conv_epilogue(ep)
            fl = fl + [l.strip() for l in ep.lines]
            if not with_bar:
                for ins in fl: a(ins)
            else:
                for ins in fl[:nb]: a(ins)
                fl = fl[nb:]
                per = (len(fl) + CSPAN - 1) // CSPAN
                while fl:
                    a("s_barrier")
                    for ins in fl[:per]: a(ins)
                    fl = fl[per:]
            a("s_endpgm")
        a.label("g1_convw")
        conv_wave(True)
        a.label("g1_convx")
        conv_wave(False)
    a.label("g1_extra")
    if CMODE == 3:
        a("s_cmp_ge_u32 s16, 8")
        a("s_cbranch_scc1 g1_convx")
    if CMODE in (2, 3):
        if PFON and R2:
            srd(a, 20, 74, F * S * 2)
            perw = R2 * S * 2 // 256
            assert perw % 2048 == 0
            if XMAP:
                a("s_sub_u32 s17, s10, 4")
                a("s_lshl_b32 s17, s17, 3")
                a("s_add_u32 s17, s17, s15")
            else:
                a("s_sub_u32 s17, s2, 224")
            a("s_lshl_b32 s17, s17, 3")
            a("s_add_u32 s17, s17, s16")
            a(f"s_mul_i32 s17, s17, {perw}")
            a("v_lshl_add_u32 v4, v1, 4, s17")
            a("s_mov_b32 s18, 0")
            a.label("g1_pfl")
            for k in range(2):
                a(f"buffer_load_dwordx4 v[{8+4*k}:{11+4*k}], v4, s[20:23], s18 offen")
                a("s_add_u32 s18, s18, 1024")
            a(f"s_cmp_lt_u32 s18, {perw}")
            a("s_cbranch_scc1 g1_pfl")
        a("s_endpgm")
    elif CMODE == 1:
        a("s_sub_u32 s17, s2, 224")
        a("s_lshl_b32 s64, s17, 3")
        a("s_add_u32 s64, s64, s16")
        if PFON:
            srd(a, 20, 74, F * S * 2)
            perw = R2 * S * 2 // 256
            a(f"s_mul_i32 s18, s64, {perw}")
            a("v_lshl_add_u32 v4, v1, 7, s18")
            a("s_mov_b32 s18, 0")
        if PRIO:
            a("s_cmp_ge_u32 s16, 4")
            a("s_cbranch_scc1 g1_xloop")
            a("s_setprio 2")
        def xst():
            if STAMP != 3: return
            a("s_memtime s[84:85]")
            a("s_waitcnt lgkmcnt(0)")
            a("v_mov_b32 v200, s84")
            a("buffer_store_dword v200, v196, s[76:79], 0 offen")
            a("v_add_u32 v196, 4, v196")
        if STAMP == 3:
            srd(a, 76, 8, 1 << 20, 64 * MB)
            a("s_lshl_b32 s80, s64, 8")
            a("v_mov_b32 v196, s80")
        a.label("g1_xloop")
        xst()
        conv_setup(a, 0)
        a("s_waitcnt vmcnt(0)")
        xst()
        if PFON:
            for t in range((perw // 4 + 8191) // 8192):
                a("buffer_load_dword v2, v4, s[20:23], s18 offen")
                a("s_add_u32 s18, s18, 8192")
        fl, nb = conv_flat()
        for ins in fl[:nb]: a(ins)
        xst()
        for ins in fl[nb:]: a(ins)
        xst()
        conv_epilogue(a)
        xst()
        a("s_add_u32 s64, s64, 256")
        a(f"s_cmp_lt_u32 s64, {D}")
        a("s_cbranch_scc1 g1_xloop")
        a("s_endpgm")
    else:
        a("s_cmp_lt_u32 s16, 4")
        a("s_cbranch_scc1 g1_pf")
        a("s_sub_u32 s16, s16, 4")
        a("s_lshl_b32 s64, s2, 2")
        a("s_add_u32 s64, s64, s16")
        conv_setup(a, RING)
        a("s_waitcnt vmcnt(0)")
        for ins in conv_flat()[0]: a(ins)
        conv_epilogue(a)
        a("s_add_u32 s16, s16, 4")
        a.label("g1_pf")
        if not PFON: a("s_endpgm")
        per = R2 * S * 2 // 32
        u = per // 32
        assert u % 2048 == 0
        srd(a, 20, 74, F * S * 2)
        if XMAP:
            a("s_sub_u32 s17, s10, 4")
            a("s_lshl_b32 s17, s17, 3")
            a("s_add_u32 s17, s17, s15")
        else:
            a("s_sub_u32 s17, s2, 224")
        a(f"s_mul_i32 s17, s17, {per}")
        a(f"s_mul_i32 s18, s16, {5*u}")
        a("s_sub_u32 s19, s16, 4")
        a(f"s_mul_i32 s19, s19, {3*u}")
        a(f"s_add_u32 s19, s19, {20*u}")
        a("s_cmp_lt_u32 s16, 4")
        a("s_cselect_b32 s18, s18, s19")
        a(f"s_mov_b32 s36, {5*u}")
        a(f"s_cselect_b32 s19, s36, {3*u}")
        a("s_add_u32 s17, s17, s18")
        a("v_lshl_add_u32 v4, v1, 4, s17")
        a("s_mov_b32 s18, 0")
        a.label("g1_pfl")
        for k in range(2):
            a(f"buffer_load_dwordx4 v[{8+4*k}:{11+4*k}], v4, s[20:23], s18 offen")
            a("s_add_u32 s18, s18, 1024")
        a("s_cmp_lt_u32 s18, s19")
        a("s_cbranch_scc1 g1_pfl")
    a.label("g1_done")
    a("s_endpgm")
    return kernel_desc(name, 160 if CMODE == 3 else 204, 96), (RING if CMODE == 2 else max(RING, 8 * CONV_LDS) if CMODE == 1 else RING + 4 * CONV_LDS)

def build(opts):
    a = Asm()
    a.lines.append('.amdgcn_target "amdgcn-amd-amdhsa--gfx950"')
    a.lines.append(".text")
    descs = []; launches = []
    npf = opts.get("npf", 256)
    global KNT
    KNT = " nt" if opts.get("knt", 0) else ""
    descs.append(gen_prep(a, npf, rev=1, pfw2=(0 if opts.get("knt", 0) else 2), r1=opts.get("r1", 2048), xpf=opts.get("xpf", 0), pflast=opts.get("pflast", 0), kvfirst=opts.get("kvfirst", 0), hblk=opts.get("hblk", 0)))
    launches.append(f"; @launch kernel=prep_kernel grid=({768+npf},1,1) block=(256,1,1) lds=0")
    d, lds = gen_gemm1(a, NST=opts.get("nst", 3), CSPAN=opts.get("cspan", 26), PFON=opts.get("pfon", 1), CONVON=opts.get("convon", 1), NT1=opts.get("nt1", 0), PRIO=opts.get("prio", 0), STAMP=opts.get("stamp", 0), R1=opts.get("r1", 2048), R2=opts.get("r2", 3584), XMAP=opts.get("xmap", 0), TP1=opts.get("tp1", 0), CMODE=opts.get("cmode", 0), IPER=opts.get("iper", 2), M32=opts.get("m32", 0), LP1=opts.get("lp1", 0), HBLK=opts.get("hblk", 0), CPRIO=opts.get("cprio", 0))
    descs.append(d)
    launches.append(f"; @launch kernel=gemm1_kernel grid=(256,1,1) block=({768 if opts.get('cmode', 0) == 3 else 512},1,1) lds={lds}")
    import gen7_g2, gen8_g2
    if opts.get("splitk", 0):
        d, lds = gen8_g2.gen_gemm2(a, R2=opts.get("r2", 3584), STAMP=opts.get("stamp2", 0))
    else:
        d, lds = gen7_g2.gen_gemm2(a, NST=opts.get("nst2", 5), R2=opts.get("r2", 3584), XA0=opts.get("xa0", 4), ROT=opts.get("rot", 0), ONT=opts.get("ont", 0), CONV=opts.get("conv2", 0), LPRIO=opts.get("lprio", 0))
    descs.append(d)
    launches.append(f"; @launch kernel=gemm2_kernel grid=(256,1,1) block=({768 if opts.get('conv2', 0) else 512},1,1) lds={lds}")
    txt = HEADER + "\n".join(launches) + "\n" + a.text() + '.section .rodata,"a"\n.p2align 6\n' + ".p2align 6\n".join(descs)
    return txt

if __name__ == "__main__":
    opts = {}
    for arg in sys.argv[2:]:
        k, v = arg.split("=")
        opts[k] = int(v)
    open(sys.argv[1], "w").write(build(opts))
```
